```python
import torch

def _softmax(x, axis=-1):
    return torch.softmax(x, dim=axis)
def _gelu(x):
    return torch.nn.functional.gelu(x, approximate="tanh")
def _silu(x):
    return torch.nn.functional.silu(x)
def _sigmoid(x):
    return torch.sigmoid(x)
def _layernorm(x, axis=-1, eps=1e-5):
    m = x.mean(dim=axis, keepdim=True)
    v = x.var(dim=axis, keepdim=True, unbiased=False)
    return (x - m) / torch.sqrt(v + eps)
def _scatter_add(tgt, idx, src, axis=0):
    return tgt.clone().index_add_(axis, idx, src)
def _segment_sum(src, seg, n):
    out = torch.zeros((n,) + src.shape[1:], dtype=src.dtype)
    return out.index_add_(0, seg, src)
def _pad(x, pw):
    flat = tuple(v for pair in reversed(pw) for v in pair)
    return torch.nn.functional.pad(x, flat)

kernel_name = 'sequential_preLN__linear_kernel_hedgehog__glu_gated_swiglu__prompt'

def setup_inputs():

    _w = (lambda a: (lambda t: t.to(torch.bfloat16) if t.is_floating_point() else t)(torch.as_tensor(a)))
    def _A_setup():
        B, S, D, H = 1, 2048, 1024, 32
        Dh = D // H
        return {
            "x": _w((lambda *s: torch.randn(*s, dtype=torch.bfloat16) * 0.05)(B, S, D)),
            "wqkv": _w((lambda *s: torch.randn(*s, dtype=torch.bfloat16) * 0.2)(D, 3 * D)),
            "w_phi": _w((lambda *s: torch.randn(*s, dtype=torch.bfloat16) * 0.2)(H, Dh, Dh) * (Dh ** -0.5)),
            "wo": _w((lambda *s: torch.randn(*s, dtype=torch.bfloat16) * 0.05)(D, D)),
        }
    _A_in = _A_setup()

    def _B_setup():
        B, S, D, F = 1, 2048, 1024, 3584
        return {
            "x": _w((lambda *s: torch.randn(*s, dtype=torch.bfloat16) * 0.05)(B, S, D)),
            "w1": _w((lambda *s: torch.randn(*s, dtype=torch.bfloat16) * 0.4)(D, F) * (2.0 / D) ** 0.5),
            "w3": _w((lambda *s: torch.randn(*s, dtype=torch.bfloat16) * 0.4)(D, F) * (2.0 / D) ** 0.5),
            "w2": _w((lambda *s: torch.randn(*s, dtype=torch.bfloat16) * 0.4)(F, D) * (2.0 / F) ** 0.5),
        }
    _B_in = _B_setup()

    return {
        "A_x": _A_in["x"],
        "A_wqkv": _A_in["wqkv"],
        "A_w_phi": _A_in["w_phi"],
        "A_wo": _A_in["wo"],
        "B_x": _B_in["x"],
        "B_w1": _B_in["w1"],
        "B_w3": _B_in["w3"],
        "B_w2": _B_in["w2"],
    }

def reference(A_x, A_wqkv, A_w_phi, A_wo, B_x, B_w1, B_w3, B_w2):
    def _A_ref(x, wqkv, w_phi, wo):
        B, S, D = x.shape
        H = 32; Dh = D // H
        qkv = (lambda x, *d: x.permute(*d))((x @ wqkv).reshape(B, S, 3, H, Dh), 2, 0, 3, 1, 4)
        q, k, v = qkv[0], qkv[1], qkv[2]
        pq = torch.einsum("bhsd,hdf->bhsf", q, w_phi)
        pk = torch.einsum("bhsd,hdf->bhsf", k, w_phi)
        phi_q = torch.concatenate([_softmax(pq, axis=-1), _softmax(-pq, axis=-1)], axis=-1)
        phi_k = torch.concatenate([_softmax(pk, axis=-1), _softmax(-pk, axis=-1)], axis=-1)
        kv = torch.einsum("bhsf,bhsd->bhfd", phi_k, v)
        z  = torch.einsum("bhsf->bhf", phi_k)
        num = torch.einsum("bhqf,bhfd->bhqd", phi_q, kv)
        den = torch.einsum("bhqf,bhf->bhq", phi_q, z)[..., None] + 1e-6
        o = num / den
        return (lambda x, *d: x.permute(*d))(o, 0, 2, 1, 3).reshape(B, S, D) @ wo

    def _B_ref(x, w1, w3, w2):
        gate = torch.einsum("bsd,df->bsf", x, w1)
        up = torch.einsum("bsd,df->bsf", x, w3)
        h = _silu(gate) * up
        out = torch.einsum("bsf,fd->bsd", h, w2)
        return out

    x = A_x
    h = x + _A_ref(_layernorm(x, axis=-1), A_wqkv, A_w_phi, A_wo)
    h2 = h + _B_ref(_layernorm(h, axis=-1), B_w1, B_w3, B_w2)
    return h2
```

```python
class VM:
    def __init__(self, tag, text): self.tag = tag; self.text = text
class WaitVM:
    def __init__(self, tags, extra=""): self.tags = tags; self.n = None; self.extra = extra

class Prog:
    def __init__(self):
        self.pre = []; self.body = []; self.post = []
        self.niter = 0; self.unr = 0; self.skip = set()
    def resolve(self):
        seq = []
        for it in self.pre: seq.append((it, 0))
        for j in range(self.niter):
            for it in self.body: seq.append((it, j * self.unr))
        for it in self.post: seq.append((it, self.niter * self.unr))
        issued = []
        for it, base in seq:
            if isinstance(it, VM):
                k, t, i = it.tag
                if k in self.skip: continue
                issued.append((k, None if t is None else t + base, i))
            elif isinstance(it, WaitVM):
                last = -1
                for (k, t, i) in it.tags:
                    ta = None if t is None else t + base
                    found = False
                    for pos in range(len(issued) - 1, -1, -1):
                        kk, tt, ii = issued[pos]
                        if kk == k and tt == ta and (i is None or ii == i):
                            last = max(last, pos); found = True
                            break
                    assert found or k in self.skip, f"wait for unissued op {(k, ta, i)}"
                n = len(issued) - 1 - last
                it.n = n if it.n is None else min(it.n, n)
    def text(self, items):
        out = []
        for it in items:
            if isinstance(it, VM):
                if it.tag[0] not in self.skip: out.append(it.text)
            elif isinstance(it, WaitVM):
                n = min(it.n, 63)
                out.append(f"s_waitcnt vmcnt({n}){it.extra}")
            else: out.append(it)
        return out

def interleave(spine, fillers, first=0, last=None):
    n = len(spine)
    if last is None: last = n - 1
    slots = last - first + 1
    out = []
    k = 0
    nf = len(fillers)
    for i, s in enumerate(spine):
        out.append(s)
        if first <= i <= last:
            tgt = (nf * (i - first + 1) + slots - 1) // slots
            while k < tgt:
                f = fillers[k]
                if isinstance(f, list): out.extend(f)
                else: out.append(f)
                k += 1
    assert k == nf
    return out

def merge_fillers(*lists):
    total = sum(len(l) for l in lists)
    res = []
    idx = [0] * len(lists)
    for step in range(total):
        best = None; bf = None
        for j, l in enumerate(lists):
            if idx[j] < len(l):
                fr = (idx[j] + 0.5) / len(l)
                if bf is None or fr < bf: bf = fr; best = j
        res.append(lists[best][idx[best]]); idx[best] += 1
    return res

def vr(b, n=1, k="v"):
    return f"{k}{b}" if n == 1 else f"{k}[{b}:{b+n-1}]"
def ar(b, n=1): return vr(b, n, "a")
def sr(b, n=1): return vr(b, n, "s")

def kernel_header(name):
    return [f".globl {name}", ".p2align 8", f".type {name},@function", f"{name}:"]

def kernel_desc(name, nvgpr, accum_offset, nsgpr=100):
    return [f'.amdhsa_kernel {name}',
            f"  .amdhsa_next_free_vgpr {nvgpr}",
            f"  .amdhsa_next_free_sgpr {nsgpr}",
            f"  .amdhsa_accum_offset {accum_offset}",
            "  .amdhsa_group_segment_fixed_size 0",
            "  .amdhsa_kernarg_size 88",
            "  .amdhsa_user_sgpr_count 2",
            "  .amdhsa_user_sgpr_kernarg_segment_ptr 1",
            "  .amdhsa_system_sgpr_workgroup_id_x 1",
            "  .amdhsa_float_denorm_mode_32 3",
            "  .amdhsa_float_denorm_mode_16_64 3",
            ".end_amdhsa_kernel"]


def icost(x):
    if isinstance(x, list): return sum(icost(y) for y in x)
    if isinstance(x, VM): return 1.0
    if isinstance(x, WaitVM): return 0.5
    t = x.strip()
    if t.endswith(":"): return 0
    if t.startswith("s_"): return 0.5
    if t.startswith(("v_exp", "v_rcp", "v_rsq", "v_permlane")): return 2.0
    return 1.0

def pack_gaps(spine, rd, dl, ex, cap=2.0, rd_last=None, ex_first=0):
    n = len(spine)
    gaps = [[] for _ in range(n)]; used = [0.0] * n
    if rd_last is None: rd_last = min(n - 1, max(len(rd) - 1, 0))
    for i, x in enumerate(rd):
        g = min(rd_last, i * (rd_last + 1) // max(len(rd), 1))
        gaps[g].append(x); used[g] += icost(x)
    m = len(dl)
    span = max(n - 3, 1)
    for i, x in enumerate(dl):
        g = min(n - 1, (i * span + span // 2) // max(m, 1))
        gaps[g].append(x); used[g] += icost(x)
    total_ex = sum(icost(x) for x in ex)
    free = []
    carry = 0.0
    for g in range(n):
        f = cap - used[g] - carry
        if f < 0: carry = -f; f = 0
        else: carry = 0
        free.append(f if g >= ex_first else 0.0)
    tf = sum(free)
    extra = max(0.0, total_ex - tf) / max(n - ex_first, 1)
    scale = min(1.0, total_ex / tf) if tf > 0 else 1.0
    k = 0; budget = 0.0
    for g in range(n):
        if g >= ex_first: budget += free[g] * scale + extra
        while k < len(ex) and (budget >= icost(ex[k]) - 1e-6 or g == n - 1):
            gaps[g].append(ex[k]); budget -= icost(ex[k]); k += 1
    out = []
    for g in range(n):
        out.append(spine[g]); out.extend(gaps[g])
    return out
```

```python
import sys, struct
from asmlib import *
import hazard

OFF_O, OFF_H, OFF_HH, OFF_ST, OFF_CS, OFF_PQ, OFF_KV, OFF_XN, OFF_DBG = (0, 4<<20, 8<<20, 24<<20, (24<<20) + (512<<10), 25<<20, 34<<20, 40<<20, 64<<20)
WS_BYTES = 268435456
LOG2E = 1.4426950408889634
def f2u(x): return struct.unpack("<I", struct.pack("<f", x))[0]
def fh(x): return hex(f2u(x))
MFMA = "v_mfma_f32_16x16x32_bf16"

STAMPS = False
NSTAMPS = {}
PREFETCH = True

def srd(base, ptr_lo, ptr_hi, nrec):
    return [f"s_mov_b32 s{base}, s{ptr_lo}", f"s_mov_b32 s{base+1}, s{ptr_hi}",
            f"s_mov_b32 s{base+2}, {nrec}", f"s_mov_b32 s{base+3}, 0x00020000"]

def srd_add(base, sreg_or_imm):
    return [f"s_add_u32 s{base}, s{base}, {sreg_or_imm}", f"s_addc_u32 s{base+1}, s{base+1}, 0"]

def srd_advance(base, step):
    return [f"s_add_u32 s{base}, s{base}, {step}", f"s_addc_u32 s{base+1}, s{base+1}, 0",
            f"s_sub_u32 s{base+2}, s{base+2}, {step}", f"s_cselect_b32 s{base+2}, 0, s{base+2}"]

def stamp(idx):
    if not STAMPS: return []
    return ["s_memtime s[98:99]", "s_memrealtime s[96:97]", "s_waitcnt lgkmcnt(0)", f"s_mov_b32 s{80+idx}, s98", f"s_mov_b32 s{72+idx}, s96"]

def stamp_store(kid, nst, srd_ws):
    if not STAMPS: return []
    NSTAMPS[kid] = nst
    L = [f"s_lshl_b32 s98, s2, 6", f"s_add_u32 s98, s98, {OFF_DBG + kid*65536}",
         "v_mov_b32 v1, 0"]
    L += ["s_mov_b64 exec, 1"]
    for i in range(nst):
        L += [f"v_mov_b32 v2, s{80+i}", f"buffer_store_dword v2, v1, s[{srd_ws}:{srd_ws+3}], s98 offen offset:{4*i}"]
        L += [f"v_mov_b32 v3, s{72+i}", f"buffer_store_dword v3, v1, s[{srd_ws}:{srd_ws+3}], s98 offen offset:{32+4*i}"]
    return L

C3D = 96 << 20
def lane16(dst, tmp=None):
    return [f"v_lshlrev_b32 v{dst}, 4, v0",
            ["s_mov_b32 exec_lo, 0xff000000", "s_mov_b32 exec_hi, 0", f"v_add_u32 v{dst}, {C3D + 128}, v{dst}", "s_mov_b64 exec, -1"]]

def flat(l):
    o = []
    for e in l:
        if isinstance(e, list): o.extend(flat(e))
        else: o.append(e)
    return o

def bc(reg):
    return (f"v[{reg & ~1}:{(reg & ~1) + 1}]", reg & 1)

def xreduce(reg, tmp, op):
    return [f"v_mov_b32 v{tmp}, v{reg}", f"v_permlane16_swap_b32 v{tmp}, v{reg}", f"{op} v{reg}, v{reg}, v{tmp}",
            f"v_mov_b32 v{tmp}, v{reg}", f"v_permlane32_swap_b32 v{tmp}, v{reg}", f"{op} v{reg}, v{reg}, v{tmp}"]

def zip_streams(*streams):
    out = []
    n = max(len(x) for x in streams)
    for i in range(n):
        for x in streams:
            if i < len(x): out.append(x[i])
    return out

def finish(P, name, nv, accum, lds, block=256, grid=256):
    P.resolve()
    pre, body, post = P.text(P.pre), P.text(P.body), P.text(P.post)
    MARK1, MARK2 = "; --body--", "; --post--"
    allt = hazard.fix(pre + [MARK1] + body + [MARK2] + post)
    i1, i2 = allt.index(MARK1), allt.index(MARK2)
    bad = hazard.check_loop(allt[i1 + 1:i2])
    assert not bad, bad
    desc = kernel_desc(name, nv, accum)
    launch = f"; @launch kernel={name} grid=({grid},1,1) block=({block},1,1) lds={lds}"
    return launch, allt, desc

def wg_decode(sRB, sCB, sT0, sT1, sT2, rbits_x, rb_per, cb_per):
    import math
    lr = int(math.log2(rb_per)); lc = int(math.log2(cb_per))
    return [f"s_and_b32 s{sT0}, s2, 7", f"s_lshr_b32 s{sT1}, s2, 3",
            f"s_and_b32 s{sRB}, s{sT0}, {(1<<rbits_x)-1}", f"s_lshl_b32 s{sRB}, s{sRB}, {lr}",
            f"s_and_b32 s{sT2}, s{sT1}, {rb_per-1}", f"s_add_u32 s{sRB}, s{sRB}, s{sT2}",
            f"s_lshr_b32 s{sCB}, s{sT0}, {rbits_x}", f"s_lshl_b32 s{sCB}, s{sCB}, {lc}",
            f"s_lshr_b32 s{sT2}, s{sT1}, {lr}", f"s_add_u32 s{sCB}, s{sCB}, s{sT2}"]

def gen_k4(name="k4_kernel", abl=()):
    P = Prog()
    A = P.pre.append
    def X(l): P.pre.extend(flat(l))
    NT, UNR = 16, 2
    UPO = 14336
    SS = 32768
    CSO = 28672
    sW, sX, sWS = 4, 8, 12
    sXO = 16
    sCNT, sM0, sWAVE, sRB, sCB, sT0, sT1, sT2, sTT0 = 20, 21, 22, 23, 24, 25, 26, 27, 28
    vXO, vDS, vDMA = 1, 2, 4
    aX, aW, aST, aCS = 0, 64, 120, 152
    def acc(h, i, tt): return 32 + ((h * 7 + i) * 4 + tt) * 4
    def wreg(p, i, t=None):
        b = aW + (p & 1) * 28 + 4 * i
        return ar(b, 4) if t is None else ar(b + 2 * t, 2)
    def xreg(slot, tt): return ar(aX + slot * 16 + tt * 4, 4)

    X(kernel_header(name))
    A("s_cmp_ge_u32 s2, 256"); A(f"s_cbranch_scc1 L_{name}_end")
    X(stamp(0))
    A("s_load_dwordx4 s[36:39], s[0:1], 40")
    A("s_load_dwordx2 s[40:41], s[0:1], 80")
    A("v_mov_b32 v31, v0")
    A("v_lshrrev_b32 v1, 6, v0"); A("v_and_b32 v0, 63, v0")
    A(f"v_readfirstlane_b32 s{sWAVE}, v1")
    X(wg_decode(sRB, sCB, sT0, sT1, sT2, 1, 4, 8))
    A(f"s_and_b32 s{sT0}, s{sWAVE}, 1"); A(f"s_mul_i32 s{sT0}, s{sT0}, {32*7168}")
    A(f"s_mul_i32 s{sT1}, s{sCB}, 224"); A(f"s_add_u32 s{sT0}, s{sT0}, s{sT1}")
    A(f"s_and_b32 s{sT1}, s{sCB}, 1"); A(f"s_lshl_b32 s{sT1}, s{sT1}, 1")
    for q in range(7):
        A(f"v_add_u32 v11, {64*q}, v0")
        A(f"v_mul_u32_u24 v12, 4682, v11"); A("v_lshrrev_b32 v12, 16, v12")
        A("v_mul_u32_u24 v13, 14, v12"); A("v_sub_u32 v13, v11, v13")
        A(f"v_add_u32 v13, s{sT1}, v13"); A("v_subrev_u32 v14, 14, v13"); A("v_min_u32 v13, v13, v14")
        A(f"v_mul_u32_u24 v12, 7168, v12"); A("v_lshlrev_b32 v13, 4, v13")
        A(f"v_add3_u32 v{vDMA+q}, v12, v13, s{sT0}")
        if q & 3: A(f"v_subrev_u32 v{vDMA+q}, {(q&3)*1024}, v{vDMA+q}")
    A(f"v_lshlrev_b32 v{vXO}, 4, v0")
    for tt in range(1, 4): A(f"s_mov_b32 s{sXO+tt-1}, {tt*32768}")
    A(f"s_lshr_b32 s{sT0}, s{sWAVE}, 1"); A(f"s_mul_i32 s{sM0}, s{sT0}, {UPO}")
    A(f"s_and_b32 s{sT0}, s{sWAVE}, 1"); A(f"s_mul_i32 s{sT0}, s{sT0}, 7168"); A(f"s_add_u32 s{sM0}, s{sM0}, s{sT0}")
    A(f"s_lshl_b32 s{sTT0}, s{sRB}, 4"); A(f"s_lshl_b32 s{sT1}, s{sWAVE}, 2"); A(f"s_add_u32 s{sTT0}, s{sTT0}, s{sT1}")
    A(f"s_lshl_b32 s{sT0}, s{sTT0}, 15"); A(f"s_add_u32 s{sT0}, s{sT0}, {OFF_H}")
    A(f"s_cmp_ge_u32 s{sWAVE}, 2")
    A("s_waitcnt lgkmcnt(0)")
    A(f"s_cselect_b32 s{sW}, s38, s36"); A(f"s_cselect_b32 s{sW+1}, s39, s37")
    A(f"s_mov_b32 s{sW+2}, {1024*7168}"); A(f"s_mov_b32 s{sW+3}, 0x00020000")
    X(srd(sX, 40, 41, 4*32768)); X(srd_add(sX, f"s{sT0}"))
    X(srd(sWS, 40, 41, WS_BYTES))

    def dma(tile_rel, stage_off):
        L = []
        for q in range(7):
            grp = []
            if q in (0, 4):
                grp.append(f"s_add_u32 m0, s{sM0}, {stage_off + q*1024}")
            grp.append(VM(("D", tile_rel, q), f"buffer_load_dwordx4 v{vDMA+q}, s[{sW}:{sW+3}], 0 offen offset:{(q&3)*1024} lds"))
            L.append(grp)
        L.append(srd_advance(sW, 64 * 7168))
        return L
    def xload(tile_rel, ks, slot):
        return [VM(("X", tile_rel, ks), f"buffer_load_dwordx4 {xreg(slot, tt)}, v{vXO}, s[{sX}:{sX+3}], {'0' if tt == 0 else 's%d' % (sXO+tt-1)} offen offset:{ks*1024}") for tt in range(4)]
    xadv = [srd_add(sX, 2048)]

    X(dma(0, 0)); X(xload(0, 0, 0)); X(xload(0, 1, 1)); X(xadv)
    X(dma(1, SS)); X(xload(1, 0, 2))
    A("v_lshrrev_b32 v11, 4, v0"); A("v_lshlrev_b32 v11, 2, v11")
    A("v_and_b32 v12, 15, v0"); A("v_lshrrev_b32 v12, 2, v12"); A("v_add_u32 v11, v11, v12")
    A("v_mul_u32_u24 v11, 224, v11")
    A("v_and_b32 v12, 3, v0"); A(f"v_lshl_add_u32 v{vDS}, v12, 3, v11")
    A("v_and_b32 v11, 15, v0"); A("v_lshrrev_b32 v12, 4, v0")
    A("v_lshlrev_b32 v11, 7, v11"); A("v_lshl_add_u32 v11, v12, 5, v11")
    A(f"s_lshl_b32 s{sT0}, s{sTT0}, 11"); A(f"s_add_u32 s{sT0}, s{sT0}, {OFF_ST}")
    for tt in range(4):
        for i in range(2):
            P.pre.append(VM(("S", None, 0), f"buffer_load_dwordx4 {ar(aST + tt*8 + i*4, 4)}, v11, s[{sWS}:{sWS+3}], s{sT0} offen offset:{(tt&1)*2048 + i*16}"))
        if tt == 1: A(f"s_add_u32 s{sT0}, s{sT0}, 4096")
    A("v_cmp_le_u32 vcc, 112, v31"); A("v_subrev_u32 v11, 112, v31"); A("v_mov_b32 v13, 0"); A(f"v_mov_b32 v14, {3584*64}")
    A("v_cndmask_b32 v11, v31, v11, vcc"); A("v_cndmask_b32 v13, v13, v14, vcc")
    A(f"s_and_b32 s{sT1}, s{sCB}, 1"); A(f"s_lshl_b32 s{sT1}, s{sT1}, 4")
    A(f"v_add_u32 v11, s{sT1}, v11"); A("v_subrev_u32 v12, 112, v11"); A("v_min_u32 v11, v11, v12")
    A("v_lshl_add_u32 v11, v11, 6, v13")
    A(f"s_mul_i32 s{sT0}, s{sCB}, {112*64}"); A(f"s_add_u32 s{sT0}, s{sT0}, {OFF_CS}")
    for i in range(4):
        P.pre.append(VM(("C", None, 0), f"buffer_load_dwordx4 {ar(aCS+4*i, 4)}, v11, s[{sWS}:{sWS+3}], s{sT0} offen offset:{16*i}"))
    for r in range(32, 256): A(f"v_mov_b32 v{r}, 0")
    def trreads(p, stage_imm):
        ks, h = p >> 1, p & 1
        return [f"ds_read_b64_tr_b16 {wreg(p, i, t)}, v{vDS} offset:{stage_imm + h*UPO + (32*ks + 16*t)*224 + i*32}" for i in range(7) for t in range(2)]
    P.pre.append(WaitVM([("D", 0, None)]))
    A("s_barrier")
    X(trreads(0, 0))
    A(f"s_mov_b32 s{sCNT}, 0")
    A(f"s_xor_b32 s{sM0}, s{sM0}, 0x10000")
    X(stamp(1))
    A(f"L_{name}_loop:")
    B = P.body
    for u in range(UNR):
        for p in range(4):
            ks, h = p >> 1, p & 1
            slot = u * 2 + ks
            mf = [f"{MFMA} {vr(acc(h,i,tt),4)}, {wreg(p,i)}, {xreg(slot,tt)}, {vr(acc(h,i,tt),4)}" for i in range(7) for tt in (range(4) if i % 2 == 0 else range(3, -1, -1))]
            if p == 3: pre = [WaitVM([("D", u + 1, None)], " lgkmcnt(0)"), "s_barrier"]
            elif h == 0: pre = [WaitVM([("X", u, ks)], " lgkmcnt(0)")]
            else: pre = ["s_waitcnt lgkmcnt(0)"]
            if p < 3: rd = trreads(p + 1, u * SS)
            else:
                rd = trreads(0, ((u + 1) & 1) * SS)
                if u == 1: rd = [f"v_xor_b32 v{vDS}, 0x10000, v{vDS}"] + rd
            if p == 0:
                xl = xload(u + 1, 1, ((u + 1) & 1) * 2 + 1) + xadv
                if u == 0: xl += [[f"s_cmp_eq_u32 s{sCNT}, {NT//UNR - 1}", f"s_cselect_b32 s{sX+2}, 0, s{sX+2}"]]
            elif p == 2: xl = xload(u + 2, 0, u * 2)
            else: xl = []
            d = dma(u + 2, u * SS)
            if p == 1: dl = d[0:4]
            elif p == 3: dl = d[4:8]
            else: dl = []
            if "dma" in abl: dl = []
            if "x" in abl: xl = []
            if "tr" in abl: rd = []
            if "bar" in abl: pre = [x for x in pre if x != "s_barrier"]
            if "dma" in abl or "x" in abl: pre = [("s_waitcnt lgkmcnt(0)" if isinstance(x, WaitVM) else x) for x in pre]
            body = interleave(mf, merge_fillers(rd, xl + dl), 0, 22)
            B.extend(pre + flat(body))
    B.append(f"s_xor_b32 s{sM0}, s{sM0}, 0x10000")
    B.append(f"s_add_u32 s{sCNT}, s{sCNT}, 1"); B.append(f"s_cmp_lt_u32 s{sCNT}, {NT//UNR}")
    B.append(f"s_cbranch_scc1 L_{name}_loop")
    P.niter = NT // UNR; P.unr = UNR
    E = P.post.append
    def EX(l): P.post.extend(flat(l))
    EX(stamp(2))
    P.post.append(WaitVM([("S", None, 0), ("C", None, 0)]))
    for i in range(16): E(f"v_accvgpr_read_b32 v{4+i}, a{aCS+i}")
    for s in (8, 4, 2, 1):
        for i in range(s): E(f"v_add_f32 v{4+i}, v{4+i}, v{4+s+i}")
    E("v_lshlrev_b32 v3, 2, v31")
    E(f"ds_write_b32 v3, v4 offset:{CSO}")
    vST = 20
    for tt in range(4):
        for i in range(8): E(f"v_accvgpr_read_b32 v{4+i}, a{aST + tt*8 + i}")
        E("v_add_f32 v4, v4, v6"); E("v_add_f32 v5, v5, v7"); E("v_add_f32 v8, v8, v10"); E("v_add_f32 v9, v9, v11")
        E("v_add_f32 v4, v4, v8"); E("v_add_f32 v5, v5, v9")
        EX(zip_streams(xreduce(4, 6, "v_add_f32"), xreduce(5, 7, "v_add_f32")))
        nm, c1, ve = vST + tt * 3, vST + tt * 3 + 1, vST + tt * 3 + 2
        E(f"v_mul_f32 v{nm}, {fh(-1.0/1024)}, v4")
        E(f"v_mul_f32 v{ve}, {fh(1.0/1024)}, v5")
        E(f"v_fma_f32 v{ve}, -v{nm}, v{nm}, v{ve}")
        E(f"v_max_f32 v{ve}, 0, v{ve}")
        E(f"v_add_f32 v{ve}, {fh(1e-5)}, v{ve}")
        E(f"v_rsq_f32 v{c1}, v{ve}")
        E(f"v_mul_f32 v{c1}, {fh(-LOG2E)}, v{c1}")
    E("s_waitcnt lgkmcnt(0)"); E("s_barrier")
    EX(stamp(3))
    E("v_lshrrev_b32 v3, 4, v0"); E("v_lshlrev_b32 v3, 4, v3")
    E(f"s_mul_i32 s{sT0}, s{sCB}, 7"); E(f"s_and_b32 s{sT1}, s{sCB}, 1"); E(f"s_add_u32 s{sT0}, s{sT0}, s{sT1}"); E(f"s_lshr_b32 s{sT0}, s{sT0}, 1")
    E(f"s_mul_i32 s{sT2}, s{sTT0}, 112"); E(f"s_add_u32 s{sT0}, s{sT0}, s{sT2}")
    E(f"s_lshl_b32 s{sT0}, s{sT0}, 10"); E(f"s_add_u32 s{sT0}, s{sT0}, {OFF_HH}")
    sO = 44
    for tt in range(4): E(f"s_add_u32 s{sO+tt}, s{sT0}, {tt*112*1024}")
    E(f"s_mov_b32 s{sT2}, {(-1024 + 8) & 0xffffffff}"); E(f"s_cmp_eq_u32 s{sT1}, 0"); E(f"s_cselect_b32 s{sT2}, {3*1024}, s{sT2}")
    for tt in range(4): E(f"s_add_u32 s{sO+4+tt}, s{sO+tt}, s{sT2}")
    def csread(grp, buf):
        L = []
        for k, i in enumerate(grp):
            L.append(f"ds_read_b128 {vr(buf + 8*k, 4)}, v3 offset:{CSO + i*64}")
            L.append(f"ds_read_b128 {vr(buf + 8*k + 4, 4)}, v3 offset:{CSO + 448 + i*64}")
        return L
    groups = [(0, 1), (2, 3), (4, 5), (6,)]
    EX(csread(groups[0], 4))
    E("s_waitcnt lgkmcnt(0)")
    for gi, grp in enumerate(groups):
        cbuf = 4 if gi == 0 else acc(0, 0, 0) + 16 * ((gi - 1) & 1)
        for tt in range(4):
            nm, c1, ve = vST + tt * 3, vST + tt * 3 + 1, vST + tt * 3 + 2
            (pn, sn), (pc, sc), (pv, sv) = bc(nm), bc(c1), bc(ve)
            G = [acc(0, i, tt) for i in grp]; U = [acc(1, i, tt) for i in grp]
            for k in range(len(grp)):
                for j in (0, 2):
                    E(f"v_pk_fma_f32 {vr(G[k]+j,2)}, {vr(cbuf+8*k+j,2)}, {pn}, {vr(G[k]+j,2)} op_sel:[0,{sn},0] op_sel_hi:[1,{sn},1]")
                for j in (0, 2):
                    E(f"v_pk_fma_f32 {vr(U[k]+j,2)}, {vr(cbuf+8*k+4+j,2)}, {pn}, {vr(U[k]+j,2)} op_sel:[0,{sn},0] op_sel_hi:[1,{sn},1]")
            for k in range(len(grp)):
                for j in (0, 2): E(f"v_pk_mul_f32 {vr(U[k]+j,2)}, {vr(U[k]+j,2)}, {vr(G[k]+j,2)}")
            for k in range(len(grp)):
                for j in (0, 2): E(f"v_pk_mul_f32 {vr(G[k]+j,2)}, {vr(G[k]+j,2)}, {pc} op_sel:[0,{sc}] op_sel_hi:[1,{sc}]")
            for k in range(len(grp)):
                for j in range(4): E(f"v_exp_f32 v{G[k]+j}, v{G[k]+j}")
            for k in range(len(grp)):
                for j in (0, 2): E(f"v_pk_fma_f32 {vr(G[k]+j,2)}, {vr(G[k]+j,2)}, {pv}, {pv} op_sel:[0,{sv},{sv}] op_sel_hi:[1,{sv},{sv}]")
            for k in range(len(grp)):
                for j in range(4): E(f"v_rcp_f32 v{G[k]+j}, v{G[k]+j}")
            for k in range(len(grp)):
                for j in (0, 2): E(f"v_pk_mul_f32 {vr(G[k]+j,2)}, {vr(G[k]+j,2)}, {vr(U[k]+j,2)}")
            for k in range(len(grp)):
                for j in (0, 1): E(f"v_cvt_pk_bf16_f32 v{U[0]+2*k+j}, v{G[k]+2*j}, v{G[k]+2*j+1}")
            if len(grp) == 2:
                E(f"buffer_store_dwordx4 {vr(U[0],4)}, v{vXO}, s[{sWS}:{sWS+3}], s{sO+tt} offen offset:{gi*1024}")
            else:
                E(f"buffer_store_dwordx2 {vr(U[0],2)}, v{vXO}, s[{sWS}:{sWS+3}], s{sO+4+tt} offen")
            if tt == 3 and gi == 0:
                EX(csread(groups[1], acc(0, 0, 0))); EX(csread(groups[2], acc(0, 0, 0) + 16)); E("s_waitcnt lgkmcnt(4)")
            if tt == 3 and gi == 1:
                EX(csread(groups[3], acc(0, 0, 0))); E("s_waitcnt lgkmcnt(2)")
            if tt == 3 and gi == 2:
                E("s_waitcnt lgkmcnt(0)")
    if STAMPS:
        EX(stamp(4))
        E("s_waitcnt vmcnt(0)")
        EX(stamp(5))
        EX(stamp_store(4, 6, sWS))
    E(f"L_{name}_end:"); E("s_endpgm")
    return finish(P, name, 256 + 168, 256, 4 * SS)


def unpack_lo(dst, src): return f"v_lshlrev_b32 v{dst}, 16, v{src}"
def unpack_hi(dst, src): return f"v_and_b32 v{dst}, 0xffff0000, v{src}"

def rowmajor_voff(dst, t1, t2, row_stride_log2):
    return [f"v_and_b32 v{t1}, 15, v0", f"v_lshlrev_b32 v{t1}, {row_stride_log2}, v{t1}",
            f"v_and_b32 v{t2}, 16, v0", f"v_lshl_add_u32 v{t1}, v{t2}, 1, v{t1}",
            f"v_and_b32 v{t2}, 32, v0", f"v_lshrrev_b32 v{t2}, 1, v{t2}", f"v_add_u32 v{dst}, v{t1}, v{t2}"]

def tr_addr_128(vDS, t1, t2, t3):
    L = [f"v_lshrrev_b32 v{t1}, 2, v0",
         f"v_lshrrev_b32 v{t2}, 1, v{t1}", f"v_and_b32 v{t2}, 3, v{t2}",
         f"v_lshlrev_b32 v{t1}, 7, v{t1}",
         f"v_and_b32 v{t3}, 3, v0", f"v_lshl_add_u32 v{t1}, v{t3}, 3, v{t1}"]
    for i in range(4):
        L += [f"v_xor_b32 v{t3}, {i}, v{t2}", f"v_lshl_add_u32 v{vDS+i}, v{t3}, 5, v{t1}"]
    return L

def dma_voff_128(dst, t1, t2, row_stride):
    return [f"v_lshrrev_b32 v{t1}, 3, v0", f"v_and_b32 v{t2}, 6, v{t1}",
            f"v_mul_u32_u24 v{t1}, {row_stride}, v{t1}",
            f"v_xor_b32 v{t2}, v{t2}, v0", f"v_and_b32 v{t2}, 7, v{t2}",
            f"v_lshl_add_u32 v{dst}, v{t2}, 4, v{t1}"]

def gen_n64(kind, abl=(), WN=1, ra=0, rb_=0):
    name = f"{kind}_kernel"
    k3 = kind == "k3"
    KS = 32 if k3 else 112
    NT, UNR = KS // 4, 4
    if WN is None: WN = 8 if k3 else 7
    XOFF = OFF_O if k3 else OFF_HH
    P = Prog(); A = P.pre.append
    def X(l): P.pre.extend(flat(l))
    SS = 16384
    sW, sX, sWS, sAUX = 4, 8, 12, 16
    sXO, sDO, sCNT, sM0, sWAVE, sRB, sCB, sT0, sT1, sT2, sTT0 = 20, 21, 24, 25, 26, 27, 28, 29, 30, 31, 32
    sJ, sC, sWB, sTI = 33, 34, 35, 42
    sXB, sWBASE = 44, 36
    vXO, vDMA, vDS, vRM, vRES = 1, 2, 4, 8, 16
    aX, aW = 0, 128
    def acc(i, tt): return 32 + (i * 2 + tt) * 4
    def wreg(p, k2, i, t=None):
        b = aW + (p & 1) * 32 + (k2 * 4 + i) * 4
        return ar(b, 4) if t is None else ar(b + 2 * t, 2)
    def xreg(u, ks, tt): return ar(aX + ((u * 4 + ks) * 2 + tt) * 4, 4)
    X(kernel_header(name))
    A("s_cmp_ge_u32 s2, 256"); A(f"s_cbranch_scc1 L_{name}_end")
    X(stamp(0))
    A(f"s_load_dwordx2 s[36:37], s[0:1], {24 if k3 else 56}")
    A(f"s_load_dwordx2 s[38:39], s[0:1], {0 if k3 else 64}")
    A("s_load_dwordx2 s[40:41], s[0:1], 80")
    A("v_lshrrev_b32 v1, 6, v0"); A("v_and_b32 v0, 63, v0")
    A(f"v_readfirstlane_b32 s{sWAVE}, v1")
    X(wg_decode(sRB, sCB, sT0, sT1, sT2, 2, 4, 8))
    X(dma_voff_128(vDMA, 10, 11, 2048))
    A(f"s_lshl_b32 s{sT0}, s{sWAVE}, 16"); A(f"s_lshl_b32 s{sT1}, s{sCB}, 7"); A(f"s_add_u32 s{sT0}, s{sT0}, s{sT1}")
    A(f"v_add_u32 v{vDMA}, s{sT0}, v{vDMA}")
    X(lane16(vXO))
    A(f"s_mov_b32 s{sXO}, {KS*1024}")
    for q in range(1, 4): A(f"s_mov_b32 s{sDO+q-1}, {q*15360}")
    A(f"s_lshl_b32 s{sM0}, s{sWAVE}, 12")
    A(f"s_lshl_b32 s{sTT0}, s{sRB}, 3"); A(f"s_lshl_b32 s{sT1}, s{sWAVE}, 1"); A(f"s_add_u32 s{sTT0}, s{sTT0}, s{sT1}")
    A(f"s_and_b32 s{sT0}, s{sCB}, 7"); A(f"s_mul_i32 s{sT0}, s{sT0}, {ra}"); A(f"s_and_b32 s{sT1}, s{sRB}, 3"); A(f"s_mul_i32 s{sT1}, s{sT1}, {rb_}")
    A(f"s_add_u32 s{sJ}, s{sT0}, s{sT1}")
    mx = ra * 7 + rb_ * 3
    k = 1
    while WN * k * 2 <= mx: k *= 2
    while k >= 1:
        A(f"s_sub_u32 s{sT0}, s{sJ}, {WN*k}"); A(f"s_cselect_b32 s{sJ}, s{sJ}, s{sT0}"); k //= 2
    A(f"s_mov_b32 s{sC}, 0"); A(f"s_mov_b32 s{sWB}, 0")
    A(f"s_mul_i32 s{sT0}, s{sTT0}, {KS*1024}"); A(f"s_add_u32 s{sT0}, s{sT0}, {XOFF}")
    A("s_waitcnt lgkmcnt(0)")
    A(f"s_add_u32 s{sXB}, s40, s{sT0}"); A(f"s_addc_u32 s{sXB+1}, s41, 0")
    X(srd(sW, 36, 37, 128 * 2048))
    X(srd(sX, sXB, sXB + 1, C3D + KS * 1024 + 4096))
    X(srd(sWS, 40, 41, WS_BYTES)); X(srd(sAUX, 38, 39, 2048 * 2048))
    settile = [[f"s_add_u32 s{sTI}, s{sWB}, s{sJ}",
                f"s_lshl_b32 s{sT0}, s{sTI}, 12", f"s_add_u32 s{sX}, s{sXB}, s{sT0}", f"s_addc_u32 s{sX+1}, s{sXB+1}, 0"],
               [f"s_lshl_b32 s{sT0}, s{sTI}, 18", f"s_add_u32 s{sW}, s{sWBASE}, s{sT0}", f"s_addc_u32 s{sW+1}, s{sWBASE+1}, 0"],
               [f"s_add_u32 s{sJ}, s{sJ}, 1", f"s_cmp_eq_u32 s{sJ}, {WN}", f"s_cselect_b32 s{sJ}, 0, s{sJ}"],
               [f"s_add_u32 s{sC}, s{sC}, 1", f"s_cmp_eq_u32 s{sC}, {WN}", f"s_cselect_b32 s{sC}, 0, s{sC}", f"s_cselect_b32 s{sT0}, {WN}, 0", f"s_add_u32 s{sWB}, s{sWB}, s{sT0}"]]
    def dma(tile_rel, stage):
        L = []
        for q in range(4):
            grp = [f"s_add_u32 m0, s{sM0}, {stage*SS}"] if q == 0 else []
            grp.append(VM(("D", tile_rel, q), f"buffer_load_dwordx4 v{vDMA}, s[{sW}:{sW+3}], {'0' if q == 0 else 's%d' % (sDO+q-1)} offen offset:{q*1024} lds"))
            L.append(grp)
        return L
    def xload(tile_rel, p, u):
        return [VM(("X", tile_rel, p), f"buffer_load_dwordx4 {xreg(u, ks, tt)}, v{vXO}, s[{sX}:{sX+3}], {'0' if tt == 0 else 's%d' % sXO} offen offset:{ks*1024}")
                for ks in (2 * p, 2 * p + 1) for tt in range(2)]
    for t in range(4):
        X(settile)
        X(dma(t, t)); X(xload(t, 0, t))
        if t < 3: X(xload(t, 1, t))
        if t == 0:
            X(tr_addr_128(vDS, 10, 11, 12))
            for r in range(32, 64): A(f"v_mov_b32 v{r}, 0")
            X(rowmajor_voff(vRM, 10, 11, 11))
    if k3:
        A(f"s_lshl_b32 s{sT0}, s{sTT0}, 15"); A(f"s_lshl_b32 s{sT1}, s{sCB}, 7"); A(f"s_add_u32 s{sT0}, s{sT0}, s{sT1}")
        A(f"s_add_u32 s{sT1}, s{sT0}, 32768")
        for tt in range(2):
            for m in range(2):
                P.pre.append(VM(("R", None, 0), f"buffer_load_dwordx4 {vr(vRES + (tt*2+m)*4, 4)}, v{vRM}, s[{sAUX}:{sAUX+3}], s{sT0 if tt == 0 else sT1} offen offset:{m*64}"))
    else:
        A(f"s_lshl_b32 s{sT0}, s{sTT0}, 15"); A(f"s_lshl_b32 s{sT1}, s{sCB}, 11"); A(f"s_add_u32 s{sT0}, s{sT0}, s{sT1}")
        A(f"s_add_u32 s{sT0}, s{sT0}, {OFF_H}"); A(f"s_add_u32 s{sT1}, s{sT0}, 32768")
        for tt in range(2):
            for m in range(2):
                P.pre.append(VM(("R", None, 0), f"buffer_load_dwordx4 {vr(vRES + (tt*2+m)*4, 4)}, v{vXO}, s[{sWS}:{sWS+3}], s{sT0 if tt == 0 else sT1} offen offset:{m*1024}"))
    def trreads(p, stage):
        return [f"ds_read_b64_tr_b16 {wreg(p, k2, i, t)}, v{vDS+i} offset:{stage*SS + (32*(2*p+k2) + 16*t)*128}" for k2 in range(2) for i in range(4) for t in range(2)]
    P.pre.append(WaitVM([("D", 0, None)]))
    A("s_barrier")
    X(trreads(0, 0))
    A(f"s_mov_b32 s{sCNT}, 0")
    X(stamp(1))
    def tile(u, tail):
        L = []
        for p in range(2):
            mf = [f"{MFMA} {vr(acc(i,tt),4)}, {wreg(p,k2,i)}, {xreg(u,2*p+k2,tt)}, {vr(acc(i,tt),4)}" for k2 in range(2) for i in range(4) for tt in range(2)]
            last = tail and u == 3
            if p == 1:
                if last: pre = [WaitVM([("X", u, 1)], " lgkmcnt(0)")]
                else: pre = [WaitVM([("D", u + 1, None), ("X", u, 1)], " lgkmcnt(0)"), "s_barrier"]
            else: pre = [WaitVM([("X", u, 0)], " lgkmcnt(0)")]
            rd = trreads(1, u) if p == 0 else ([] if last else trreads(0, (u + 1) & 3))
            if p == 0:
                xl = xload(u + 3, 1, (u + 3) & 3) if (not tail or u == 0) else []
                if not tail: xl = xl + settile
            else: xl = [] if tail else dma(u + 4, u) + xload(u + 4, 0, u)
            if "mfma" in abl: mf = ["s_nop 0"] * len(mf)
            if "tr" in abl: rd = []
            if "bar" in abl: pre = [x for x in pre if x != "s_barrier"]
            body = interleave(mf, merge_fillers(rd, xl), 0, 13)
            L.extend(pre + flat(body))
        return L
    A(f"L_{name}_loop:")
    B = P.body
    for u in range(UNR): B.extend(tile(u, False))
    if NT // UNR - 1 > 1:
        B.append(f"s_add_u32 s{sCNT}, s{sCNT}, 1"); B.append(f"s_cmp_lt_u32 s{sCNT}, {NT//UNR - 1}")
        B.append(f"s_cbranch_scc1 L_{name}_loop")
    P.niter = NT // UNR - 1; P.unr = UNR
    for u in range(UNR): P.post.extend(tile(u, True))
    E = P.post.append
    def EX(l): P.post.extend(flat(l))
    EX(stamp(2))
    P.post.append(WaitVM([("R", None, 0)]))
    if k3:
        E(f"s_lshl_b32 s{sT0}, s{sTT0}, 15"); E(f"s_lshl_b32 s{sT1}, s{sCB}, 11"); E(f"s_add_u32 s{sT0}, s{sT0}, s{sT1}")
        E(f"s_add_u32 s{sT0}, s{sT0}, {OFF_H}"); E(f"s_add_u32 s{sT1}, s{sT0}, 32768")
        E(f"s_mov_b32 s{sT2}, 0x3f803f80")
        for q in range(4):
            r = vRES + 4 * q
            E(f"v_permlane16_swap_b32 v{r}, v{r+2}"); E(f"v_permlane16_swap_b32 v{r+1}, v{r+3}")
    else:
        E(f"s_lshl_b32 s{sT0}, s{sTT0}, 15"); E(f"s_lshl_b32 s{sT1}, s{sCB}, 7"); E(f"s_add_u32 s{sT0}, s{sT0}, s{sT1}")
        E(f"s_add_u32 s{sT1}, s{sT0}, 32768")
    for tt in range(2):
        if k3: E(f"v_mov_b32 v{12+2*tt}, 0"); E(f"v_mov_b32 v{13+2*tt}, 0")
        for m in range(2):
            r = vRES + (tt * 2 + m) * 4
            for d in range(4):
                a = acc(2 * m + (d >> 1), tt) + 2 * (d & 1)
                E(unpack_lo(10, r + d)); E(unpack_hi(11, r + d))
                E(f"v_add_f32 v{a}, v{a}, v10"); E(f"v_add_f32 v{a+1}, v{a+1}, v11")
                E(f"v_cvt_pk_bf16_f32 v{r+d}, v{a}, v{a+1}")
            if k3:
                E(f"buffer_store_dwordx4 {vr(r,4)}, v{vXO}, s[{sWS}:{sWS+3}], s{sT0 if tt == 0 else sT1} offen offset:{m*1024}")
                for d in range(4):
                    E(f"v_dot2c_f32_bf16 v{12+2*tt}, s{sT2}, v{r+d}"); E(f"v_dot2c_f32_bf16 v{13+2*tt}, v{r+d}, v{r+d}")
            else:
                E(f"v_permlane16_swap_b32 v{r}, v{r+2}"); E(f"v_permlane16_swap_b32 v{r+1}, v{r+3}")
                E(f"buffer_store_dwordx4 {vr(r,4)}, v{vRM}, s[{sAUX}:{sAUX+3}], s{sT0 if tt == 0 else sT1} offen offset:{m*64}")
    if k3:
        EX(zip_streams(*[xreduce(12 + j, 32 + j, "v_add_f32") for j in range(4)]))
        E(f"s_lshl_b32 s{sT0}, s{sTT0}, 11"); E(f"s_lshl_b32 s{sT1}, s{sCB}, 8"); E(f"s_add_u32 s{sT0}, s{sT0}, s{sT1}")
        E(f"s_add_u32 s{sT0}, s{sT0}, {OFF_ST}")
        E("s_mov_b64 exec, 0xffff")
        E(f"buffer_store_dwordx4 v[12:15], v{vXO}, s[{sWS}:{sWS+3}], s{sT0} offen")
        E("s_mov_b64 exec, -1")
    if STAMPS:
        EX(stamp(3)); E("s_waitcnt vmcnt(0)"); EX(stamp(4)); EX(stamp_store(3 if k3 else 5, 5, sWS))
    E(f"L_{name}_end:"); E("s_endpgm")
    if "nox" in abl: P.skip.add("X")
    if "nod" in abl: P.skip.add("D")
    return finish(P, name, 64 + 192, 64, 4 * SS)

def gen_k0(name="k0_kernel"):
    P = Prog(); A = P.pre.append
    def X(l): P.pre.extend(flat(l))
    sXS, sWS, sWAVE, sT0, sT1, sONE = 4, 8, 12, 13, 14, 15
    X(kernel_header(name))
    A("s_cmp_ge_u32 s2, 128"); A(f"s_cbranch_scc1 L_{name}_end")
    A("s_load_dwordx2 s[36:37], s[0:1], 0"); A("s_load_dwordx2 s[40:41], s[0:1], 80")
    A("v_lshrrev_b32 v1, 6, v0"); A("v_and_b32 v0, 63, v0")
    A(f"v_readfirstlane_b32 s{sWAVE}, v1")
    X(rowmajor_voff(2, 10, 11, 11))
    A(f"s_lshl_b32 s{sT0}, s2, 15"); A(f"s_lshl_b32 s{sT1}, s{sWAVE}, 9"); A(f"s_add_u32 s{sT0}, s{sT0}, s{sT1}")
    A(f"s_mov_b32 s{sONE}, 0x3f803f80")
    A("s_waitcnt lgkmcnt(0)")
    X(srd(sXS, 36, 37, 2048 * 2048)); X(srd(sWS, 40, 41, WS_BYTES))
    for j in range(8): A(f"buffer_load_dwordx4 {vr(16+4*j,4)}, v2, s[{sXS}:{sXS+3}], s{sT0} offen offset:{j*64}")
    A("v_mov_b32 v4, 0"); A("v_mov_b32 v5, 0")
    A("s_waitcnt vmcnt(0)")
    for r in range(16, 48): A(f"v_dot2c_f32_bf16 v4, s{sONE}, v{r}"); A(f"v_dot2c_f32_bf16 v5, v{r}, v{r}")
    X(zip_streams(xreduce(4, 6, "v_add_f32"), xreduce(5, 7, "v_add_f32")))
    A("v_and_b32 v8, 15, v0"); A("v_lshlrev_b32 v8, 3, v8"); A(f"s_lshl_b32 s{sT1}, s{sWAVE}, 7"); A(f"v_add_u32 v9, s{sT1}, v8")
    A("ds_write_b64 v9, v[4:5]"); A("s_waitcnt lgkmcnt(0)"); A("s_barrier")
    for w in range(4): A(f"ds_read_b64 {vr(48+2*w,2)}, v8 offset:{w*128}")
    A("s_waitcnt lgkmcnt(0)")
    A("v_add_f32 v4, v48, v50"); A("v_add_f32 v5, v49, v51"); A("v_add_f32 v6, v52, v54"); A("v_add_f32 v7, v53, v55")
    A("v_add_f32 v4, v4, v6"); A("v_add_f32 v5, v5, v7")
    A(f"v_mul_f32 v4, {fh(-1.0/1024)}, v4"); A(f"v_mul_f32 v5, {fh(1.0/1024)}, v5")
    A("v_fma_f32 v5, -v4, v4, v5"); A("v_max_f32 v5, 0, v5"); A(f"v_add_f32 v5, {fh(1e-5)}, v5"); A("v_rsq_f32 v5, v5")
    A("v_mul_f32 v4, v4, v5")
    A(f"s_lshl_b32 s{sT0}, s2, 15"); A(f"s_lshl_b32 s{sT1}, s{sWAVE}, 13"); A(f"s_add_u32 s{sT0}, s{sT0}, s{sT1}"); A(f"s_add_u32 s{sT0}, s{sT0}, {OFF_XN}")
    A(f"s_add_u32 s{sT1}, s{sT0}, 4096")
    A("v_lshlrev_b32 v3, 4, v0")
    for j in range(8):
        r = 16 + 4 * j
        for d in range(4):
            A(unpack_lo(10, r + d)); A(unpack_hi(11, r + d))
            A("v_fma_f32 v10, v10, v5, v4"); A("v_fma_f32 v11, v11, v5, v4")
            A(f"v_cvt_pk_bf16_f32 v{r+d}, v10, v11")
        A(f"v_permlane16_swap_b32 v{r}, v{r+2}"); A(f"v_permlane16_swap_b32 v{r+1}, v{r+3}")
        A(f"buffer_store_dwordx4 {vr(r,4)}, v3, s[{sWS}:{sWS+3}], s{sT0 if j < 4 else sT1} offen offset:{(j&3)*1024}")
    A(f"L_{name}_end:"); A("s_endpgm")
    return finish(P, name, 64, 64, 1024, grid=128)


def softmax_pm(src, tp, tn, t0, qp, qn):
    mx, mn, a, b, sp, sn = t0, t0 + 1, t0 + 2, t0 + 3, t0 + 4, t0 + 5
    L = []
    s1 = [f"v_max3_f32 v{mx}, v{src}, v{src+1}, v{src+2}", f"v_max3_f32 v{mx}, v{mx}, v{src+3}, v{src+4}",
          f"v_max3_f32 v{mx}, v{mx}, v{src+5}, v{src+6}", f"v_max_f32 v{mx}, v{mx}, v{src+7}"] + xreduce(mx, a, "v_max_f32")
    s2 = [f"v_min3_f32 v{mn}, v{src}, v{src+1}, v{src+2}", f"v_min3_f32 v{mn}, v{mn}, v{src+3}, v{src+4}",
          f"v_min3_f32 v{mn}, v{mn}, v{src+5}, v{src+6}", f"v_min_f32 v{mn}, v{mn}, v{src+7}"] + xreduce(mn, b, "v_min_f32")
    L += zip_streams(s1, s2)
    L += [f"v_mul_f32 v{mx}, {fh(-LOG2E)}, v{mx}", f"v_mul_f32 v{mn}, {fh(LOG2E)}, v{mn}"]
    for j in range(8): L.append(f"v_fma_f32 v{tp+j}, v{src+j}, s{SLOG2E}, v{mx}")
    for j in range(8): L.append(f"v_fma_f32 v{tn+j}, -v{src+j}, s{SLOG2E}, v{mn}")
    for j in range(8): L.append(f"v_exp_f32 v{tp+j}, v{tp+j}")
    for j in range(8): L.append(f"v_exp_f32 v{tn+j}, v{tn+j}")
    def summ(t, d, tmp):
        return [f"v_add_f32 v{d}, v{t}, v{t+1}"] + [f"v_add_f32 v{d}, v{d}, v{t+j}" for j in range(2, 8)] + xreduce(d, tmp, "v_add_f32") + [f"v_rcp_f32 v{d}, v{d}"]
    L += zip_streams(summ(tp, sp, a), summ(tn, sn, b))
    for j in range(8): L.append(f"v_mul_f32 v{tp+j}, v{tp+j}, v{sp}")
    for j in range(8): L.append(f"v_mul_f32 v{tn+j}, v{tn+j}, v{sn}")
    for j in range(4): L.append(f"v_cvt_pk_bf16_f32 v{qp+j}, v{tp+2*j}, v{tp+2*j+1}")
    for j in range(4): L.append(f"v_cvt_pk_bf16_f32 v{qn+j}, v{tn+2*j}, v{tn+2*j+1}")
    return L
SLOG2E = 60

OFF_Z = OFF_KV + (4 << 20)
def gen_k1(name="k1_kernel"):
    P = Prog(); A = P.pre.append
    def X(l): P.pre.extend(flat(l))
    NT, UNR, SS = 16, 2, 32768
    WPO = 3 * SS + 24576
    RS = 416
    sW, sX, sWS, sWP = 4, 8, 12, 16
    sXO, sDO, sCNT, sM0, sWAVE, sRB, sHP, sT0, sT1, sT2, sTT0 = 20, 21, 27, 28, 29, 30, 31, 32, 33, 34, 35
    vXO, vDMA, vDS = 1, 2, 4
    aX, aW = 0, 32
    def acc(nt, tt): return 64 + (nt * 2 + tt) * 4
    def wreg(p, k, t=None):
        b = aW + (p & 1) * 24 + 4 * k
        return ar(b, 4) if t is None else ar(b + 2 * t, 2)
    def xreg(slot, tt): return ar(aX + slot * 8 + tt * 4, 4)
    X(kernel_header(name))
    A("s_cmp_ge_u32 s2, 256"); A(f"s_cbranch_scc1 L_{name}_end")
    X(stamp(0))
    A("s_load_dwordx4 s[36:39], s[0:1], 8")
    A("s_load_dwordx2 s[40:41], s[0:1], 80")
    A("v_lshrrev_b32 v1, 6, v0"); A("v_and_b32 v0, 63, v0")
    A(f"v_readfirstlane_b32 s{sWAVE}, v1")
    X(wg_decode(sRB, sHP, sT0, sT1, sT2, 1, 8, 4))
    X(dma_voff_128(vDMA, 10, 11, 6144))
    A(f"s_lshl_b32 s{sT1}, s{sHP}, 7"); A(f"v_add_u32 v{vDMA}, s{sT1}, v{vDMA}")
    A(f"v_lshlrev_b32 v{vXO}, 4, v0")
    A(f"s_mov_b32 s{sXO}, 32768")
    A(f"s_mov_b32 s{SLOG2E}, {fh(LOG2E)}")
    A(f"s_mul_i32 s{sT0}, s{sWAVE}, 6")
    for q in range(6):
        A(f"s_add_u32 s{sT1}, s{sT0}, {q}")
        A(f"s_and_b32 s{sT2}, s{sT1}, 7"); A(f"s_mul_i32 s{sT2}, s{sT2}, {8*6144}")
        A(f"s_lshr_b32 s{sT1}, s{sT1}, 3"); A(f"s_lshl_b32 s{sT1}, s{sT1}, 11")
        A(f"s_add_u32 s{sDO+q}, s{sT1}, s{sT2}")
        if q & 3: A(f"s_sub_u32 s{sDO+q}, s{sDO+q}, {(q&3)*1024}")
    A(f"s_mul_i32 s{sM0}, s{sWAVE}, 6144")
    A(f"s_lshl_b32 s{sTT0}, s{sRB}, 3"); A(f"s_lshl_b32 s{sT1}, s{sWAVE}, 1"); A(f"s_add_u32 s{sTT0}, s{sTT0}, s{sT1}")
    A(f"s_lshl_b32 s{sT0}, s{sTT0}, 15"); A(f"s_add_u32 s{sT0}, s{sT0}, {OFF_XN}")
    A("s_waitcnt lgkmcnt(0)")
    X(srd(sW, 36, 37, 1024 * 6144)); X(srd(sWP, 38, 39, 65536))
    X(srd(sX, 40, 41, 65536)); X(srd_add(sX, f"s{sT0}"))
    X(srd(sWS, 40, 41, WS_BYTES))
    def dma(tile_rel, stage_off):
        L = []
        for q in range(6):
            grp = [f"s_add_u32 m0, s{sM0}, {stage_off + q*1024}"] if q in (0, 4) else []
            grp.append(VM(("D", tile_rel, q), f"buffer_load_dwordx4 v{vDMA}, s[{sW}:{sW+3}], s{sDO+q} offen offset:{(q&3)*1024} lds"))
            L.append(grp)
        L.append(srd_advance(sW, 64 * 6144))
        return L
    def xload(tile_rel, ks, slot):
        return [VM(("X", tile_rel, ks), f"buffer_load_dwordx4 {xreg(slot, tt)}, v{vXO}, s[{sX}:{sX+3}], {'0' if tt == 0 else 's%d' % sXO} offen offset:{ks*1024}") for tt in range(2)]
    xadv = [srd_add(sX, 2048)]
    X(dma(0, 0)); X(xload(0, 0, 0)); X(xload(0, 1, 1)); X(xadv)
    X(dma(1, SS)); X(xload(1, 0, 2))
    A(f"s_lshl_b32 s{sT0}, s{sHP}, 12"); A(f"s_lshl_b32 s{sT1}, s{sWAVE}, 10"); A(f"s_add_u32 s{sT0}, s{sT0}, s{sT1}")
    A(f"s_add_u32 m0, s{sT1}, {WPO}")
    P.pre.append(VM(("P", None, 0), f"buffer_load_dwordx4 v{vXO}, s[{sWP}:{sWP+3}], s{sT0} offen lds"))
    X(tr_addr_128(vDS, 10, 11, 12))
    for r in range(64, 160): A(f"v_mov_b32 v{r}, 0")
    def trreads(p, stage_imm):
        ks, h = p >> 1, p & 1
        L = []
        for k in range(6):
            nt = h * 6 + k; m, i = nt >> 2, nt & 3
            for t in range(2):
                L.append(f"ds_read_b64_tr_b16 {wreg(p, k, t)}, v{vDS+i} offset:{stage_imm + m*8192 + (32*ks + 16*t)*128}")
        return L
    P.pre.append(WaitVM([("D", 0, None)]))
    A("s_barrier")
    X(trreads(0, 0))
    A(f"s_mov_b32 s{sCNT}, 0")
    A(f"s_xor_b32 s{sM0}, s{sM0}, 0x10000")
    X(stamp(1))
    A(f"L_{name}_loop:")
    B = P.body
    for u in range(UNR):
        for p in range(4):
            ks, h = p >> 1, p & 1
            slot = u * 2 + ks
            mf = [f"{MFMA} {vr(acc(h*6+k,tt),4)}, {wreg(p,k)}, {xreg(slot,tt)}, {vr(acc(h*6+k,tt),4)}" for k in range(6) for tt in ((0, 1) if k % 2 == 0 else (1, 0))]
            if p == 3: pre = [WaitVM([("D", u + 1, None)], " lgkmcnt(0)"), "s_barrier"]
            elif h == 0: pre = [WaitVM([("X", u, ks)], " lgkmcnt(0)")]
            else: pre = ["s_waitcnt lgkmcnt(0)"]
            if p < 3: rd = trreads(p + 1, u * SS)
            else:
                rd = trreads(0, ((u + 1) & 1) * SS)
                if u == 1: rd = [[f"v_xor_b32 v{vDS+i}, 0x10000, v{vDS+i}" for i in range(4)]] + rd
            if p == 0:
                xl = xload(u + 1, 1, ((u + 1) & 1) * 2 + 1) + xadv
                if u == 0: xl += [[f"s_cmp_eq_u32 s{sCNT}, {NT//UNR - 1}", f"s_cselect_b32 s{sX+2}, 0, s{sX+2}"]]
            elif p == 2: xl = xload(u + 2, 0, u * 2)
            else: xl = []
            d = dma(u + 2, u * SS)
            dl = {0: d[0:1], 1: d[1:4], 2: d[4:5], 3: d[5:7]}[p]
            body = interleave(mf, merge_fillers(rd, xl + dl), 0, 9)
            B.extend(pre + flat(body))
    B.append(f"s_xor_b32 s{sM0}, s{sM0}, 0x10000")
    B.append(f"s_add_u32 s{sCNT}, s{sCNT}, 1"); B.append(f"s_cmp_lt_u32 s{sCNT}, {NT//UNR}")
    B.append(f"s_cbranch_scc1 L_{name}_loop")
    P.niter = NT // UNR; P.unr = UNR
    E = P.post.append
    def EX(l): P.post.extend(flat(l))
    EX(stamp(2))
    E("s_waitcnt vmcnt(0) lgkmcnt(0)"); E("s_barrier")
    if PREFETCH:
        E("s_load_dwordx2 s[44:45], s[0:1], 24"); E("s_load_dwordx2 s[48:49], s[0:1], 56")
        E(f"s_lshl_b32 s{sT0}, s2, 2"); E(f"s_add_u32 s{sT0}, s{sT0}, s{sWAVE}")
        E(f"s_mul_i32 s{sT1}, s{sT0}, {56*128}"); E(f"s_lshl_b32 s{sT0}, s{sT0}, 11")
        E("v_min_u32 v13, 55, v0"); E("v_lshlrev_b32 v13, 7, v13")
        E("v_and_b32 v14, 15, v0"); E("v_lshlrev_b32 v14, 7, v14")
        E("s_waitcnt lgkmcnt(0)")
        E("s_mov_b32 s46, 2097152"); E("s_mov_b32 s47, 0x00020000"); E("s_mov_b32 s50, 7340032"); E("s_mov_b32 s51, 0x00020000")
        E(f"buffer_load_dword v254, v14, s[44:47], s{sT0} offen"); E(f"buffer_load_dword v255, v13, s[48:51], s{sT1} offen")
    E("v_lshrrev_b32 v10, 2, v0"); E("v_lshlrev_b32 v10, 6, v10"); E("v_and_b32 v11, 3, v0"); E("v_lshl_add_u32 v10, v11, 3, v10")
    E(f"v_add_u32 v10, {WPO}, v10")
    for hd in range(2):
        for ft in range(2):
            for t in range(2):
                E(f"ds_read_b64_tr_b16 {ar((hd*2+ft)*4 + 2*t, 2)}, v10 offset:{hd*2048 + t*1024 + ft*32}")
    E("v_and_b32 v11, 15, v0"); E(f"s_lshl_b32 s{sT0}, s{sWAVE}, 5"); E(f"v_add_u32 v11, s{sT0}, v11"); E(f"v_mul_u32_u24 v11, {RS}, v11")
    E("v_lshrrev_b32 v12, 4, v0"); E("v_lshl_add_u32 v3, v12, 3, v11")
    def quad(m, hd, tt): return acc(m * 4 + hd * 2, tt)
    for m in (1, 2, 0):
        for hd in range(2):
            for tt in range(2):
                a0, a1 = acc(m*4 + hd*2, tt), acc(m*4 + hd*2 + 1, tt)
                E(f"v_cvt_pk_bf16_f32 v{a0}, v{a0}, v{a0+1}"); E(f"v_cvt_pk_bf16_f32 v{a0+1}, v{a0+2}, v{a0+3}")
                E(f"v_cvt_pk_bf16_f32 v{a0+2}, v{a1}, v{a1+1}"); E(f"v_cvt_pk_bf16_f32 v{a0+3}, v{a1+2}, v{a1+3}")
                if m == 2:
                    E(f"ds_write_b64 v3, {vr(a0,2)} offset:{tt*16*RS + 256 + hd*64}")
                    E(f"ds_write_b64 v3, {vr(a0+2,2)} offset:{tt*16*RS + 256 + hd*64 + 32}")
    E("s_waitcnt lgkmcnt(8)")
    def pbuf(m, hd, tt): return 160 + ((m * 2 + hd) * 2 + tt) * 8
    for m in (1, 0):
        for hd in range(2):
            for tt in range(2):
                for ft in range(2):
                    E(f"{MFMA} {vr(pbuf(m,hd,tt) + 4*ft, 4)}, {ar((hd*2+ft)*4, 4)}, {vr(quad(m,hd,tt), 4)}, 0")
    TP, TN, T0, QP, QN = 16, 24, 32, 40, 44
    for hd in range(2):
        for tt in range(2):
            EX(softmax_pm(pbuf(1, hd, tt), TP, TN, T0, QP, QN))
            for k, r in enumerate((QP, QP + 2, QN, QN + 2)):
                E(f"ds_write_b64 v3, {vr(r,2)} offset:{tt*16*RS + hd*128 + k*32}")
    E("s_waitcnt lgkmcnt(0)"); E("s_barrier")
    E("v_lshrrev_b32 v10, 2, v0"); E(f"v_mul_u32_u24 v10, {RS}, v10"); E("v_and_b32 v11, 3, v0"); E("v_lshl_add_u32 v10, v11, 3, v10")
    E(f"s_lshl_b32 s{sT0}, s{sWAVE}, 6"); E(f"v_add_u32 v11, s{sT0}, v10")
    E(f"s_lshr_b32 s{sT0}, s{sWAVE}, 1"); E(f"s_lshl_b32 s{sT0}, s{sT0}, 6"); E(f"s_add_u32 s{sT0}, s{sT0}, 256"); E(f"v_add_u32 v12, s{sT0}, v10")
    for j in range(4): E(f"v_mov_b32 v{48+j}, 0x3f803f80")
    aF = 16
    for ks in range(4):
        for x, (va, c) in enumerate(((11, 0), (11, 32), (12, 0), (12, 32))):
            for t in range(2):
                E(f"ds_read_b64_tr_b16 {ar(aF + ks*16 + x*4 + 2*t, 2)}, v{va} offset:{(32*ks + 16*t)*RS + c}")
        if ks == 1: pass
    KV = 224
    for ks in range(4):
        E(f"s_waitcnt lgkmcnt({min(15, (3-ks)*8)})")
        for ft in range(2):
            for dt in range(2):
                d = KV + (dt * 2 + ft) * 4
                E(f"{MFMA} {vr(d,4)}, {ar(aF + ks*16 + ft*4, 4)}, {ar(aF + ks*16 + 8 + dt*4, 4)}, {'0' if ks == 0 else vr(d,4)}")
            d = KV + 16 + ft * 4
            E(f"{MFMA} {vr(d,4)}, {ar(aF + ks*16 + ft*4, 4)}, v[48:51], {'0' if ks == 0 else vr(d,4)}")
    E(f"s_lshl_b32 s{sT0}, s{sRB}, 6"); E(f"s_lshl_b32 s{sT1}, s{sHP}, 2"); E(f"s_add_u32 s{sT0}, s{sT0}, s{sT1}"); E(f"s_add_u32 s{sT0}, s{sT0}, s{sWAVE}")
    E(f"s_lshl_b32 s{sT1}, s{sT0}, 7"); E(f"s_add_u32 s{sT1}, s{sT1}, {OFF_Z}")
    E(f"s_lshl_b32 s{sT0}, s{sT0}, 12"); E(f"s_add_u32 s{sT0}, s{sT0}, {OFF_KV}")
    for k in range(4): E(f"buffer_store_dwordx4 {vr(KV+4*k,4)}, v{vXO}, s[{sWS}:{sWS+3}], s{sT0} offen offset:{k*1024}")
    E("v_and_b32 v10, 48, v0")
    E("s_mov_b32 exec_lo, 0x00010001"); E("s_mov_b32 exec_hi, 0x00010001")
    for ft in range(2): E(f"buffer_store_dwordx4 {vr(KV+16+4*ft,4)}, v10, s[{sWS}:{sWS+3}], s{sT1} offen offset:{ft*64}")
    E("s_mov_b64 exec, -1")
    E(f"s_lshl_b32 s{sT0}, s{sHP}, 8"); E(f"s_add_u32 s{sT0}, s{sT0}, s{sTT0}"); E(f"s_lshl_b32 s{sT0}, s{sT0}, 11"); E(f"s_add_u32 s{sT0}, s{sT0}, {OFF_PQ}")
    E(f"s_add_u32 s{sT1}, s{sT0}, {128*2048}")
    for hd in range(2):
        for tt in range(2):
            qp = 64 + (hd * 2 + tt) * 8
            EX(softmax_pm(pbuf(0, hd, tt), TP, TN, T0, qp, qp + 4))
            for k in range(2):
                E(f"buffer_store_dwordx4 {vr(qp+4*k,4)}, v{vXO}, s[{sWS}:{sWS+3}], s{sT0 if hd == 0 else sT1} offen offset:{tt*2048 + k*1024}")
    if STAMPS:
        EX(stamp(3)); E("s_waitcnt vmcnt(0)"); EX(stamp(4)); EX(stamp_store(1, 5, sWS))
    E(f"L_{name}_end:"); E("s_endpgm")
    return finish(P, name, 256 + 80, 256, 4 * SS)

def gen_k2(name="k2_kernel"):
    P = Prog(); A = P.pre.append
    def X(l): P.pre.extend(flat(l))
    sWS, sW, sWAVE, sH, sR, sT0, sT1, sT2 = 4, 8, 12, 13, 14, 15, 16, 17
    X(kernel_header(name))
    A("s_cmp_ge_u32 s2, 256"); A(f"s_cbranch_scc1 L_{name}_end")
    X(stamp(0))
    A("s_load_dwordx4 s[36:39], s[0:1], 40"); A("s_load_dwordx2 s[40:41], s[0:1], 80")
    A("v_lshrrev_b32 v1, 6, v0"); A("v_and_b32 v0, 63, v0")
    A(f"v_readfirstlane_b32 s{sWAVE}, v1")
    A(f"s_and_b32 s{sH}, s2, 7"); A(f"s_lshl_b32 s{sH}, s{sH}, 2"); A(f"s_lshr_b32 s{sT0}, s2, 3"); A(f"s_and_b32 s{sT0}, s{sT0}, 3"); A(f"s_add_u32 s{sH}, s{sH}, s{sT0}")
    A(f"s_lshr_b32 s{sR}, s2, 5")
    A("v_lshlrev_b32 v1, 4, v0")
    A("s_bitcmp1_b32 s2, 7")
    A("s_waitcnt lgkmcnt(0)")
    A(f"s_cselect_b32 s{sW}, s38, s36"); A(f"s_cselect_b32 s{sW+1}, s39, s37")
    A(f"s_mov_b32 s{sW+2}, {1024*7168}"); A(f"s_mov_b32 s{sW+3}, 0x00020000")
    X(srd(sWS, 40, 41, WS_BYTES))
    A(f"s_lshl_b32 s{sT0}, s{sH}, 13"); A(f"s_lshl_b32 s{sT1}, s{sWAVE}, 11"); A(f"s_add_u32 s{sT0}, s{sT0}, s{sT1}"); A(f"s_add_u32 s{sT0}, s{sT0}, {OFF_KV}")
    KVL = 64
    for rb in range(16):
        for ft in range(2):
            P.pre.append(VM(("KV", None, rb), f"buffer_load_dwordx4 {vr(KVL + rb*8 + ft*4, 4)}, v1, s[{sWS}:{sWS+3}], s{sT0} offen offset:{ft*1024}"))
        if rb < 15: A(f"s_add_u32 s{sT0}, s{sT0}, {32*8192}")
    A("v_and_b32 v2, 15, v0"); A("v_lshlrev_b32 v2, 13, v2"); A("v_and_b32 v3, 48, v0"); A("v_add_u32 v2, v2, v3")
    A(f"s_lshl_b32 s{sT0}, s{sH}, 8"); A(f"s_lshl_b32 s{sT1}, s{sWAVE}, 6"); A(f"s_add_u32 s{sT0}, s{sT0}, s{sT1}"); A(f"s_add_u32 s{sT0}, s{sT0}, {OFF_Z}")
    P.pre.append(VM(("Z", None, 0), f"buffer_load_dwordx4 v[4:7], v2, s[{sWS}:{sWS+3}], s{sT0} offen"))
    A(f"s_lshl_b32 s{sT2}, s{sR}, 4"); A(f"s_lshl_b32 s{sT1}, s{sWAVE}, 2"); A(f"s_add_u32 s{sT2}, s{sT2}, s{sT1}")
    A(f"s_lshl_b32 s{sT0}, s{sH}, 7"); A(f"s_add_u32 s{sT0}, s{sT0}, s{sT2}"); A(f"s_lshl_b32 s{sT0}, s{sT0}, 11"); A(f"s_add_u32 s{sT0}, s{sT0}, {OFF_PQ}")
    A(f"s_add_u32 s{sT1}, s{sT0}, 4096")
    for i in range(4):
        for k in range(2):
            P.pre.append(VM(("Q", None, i), f"buffer_load_dwordx4 {ar((i*2+k)*4, 4)}, v1, s[{sWS}:{sWS+3}], s{sT0 if i < 2 else sT1} offen offset:{(i&1)*2048 + k*1024}"))
    A("v_min_u32 v8, 55, v0"); A("v_lshlrev_b32 v8, 4, v8")
    A(f"s_lshr_b32 s{sT0}, s2, 3"); A(f"s_and_b32 s{sT0}, s{sT0}, 15"); A(f"s_lshl_b32 s{sT0}, s{sT0}, 2"); A(f"s_add_u32 s{sT0}, s{sT0}, s{sWAVE}")
    A(f"s_mul_i32 s{sT0}, s{sT0}, {16*7168}"); A(f"s_and_b32 s{sT1}, s2, 7"); A(f"s_mul_i32 s{sT1}, s{sT1}, 896"); A(f"s_add_u32 s{sT0}, s{sT0}, s{sT1}")
    CL = 192
    for j in range(16):
        P.pre.append(VM(("W", None, j), f"buffer_load_dwordx4 {vr(CL + 4*j, 4)}, v8, s[{sW}:{sW+3}], s{sT0} offen"))
        if j < 15: A(f"s_add_u32 s{sT0}, s{sT0}, 7168")
    for rb in range(1, 16):
        P.pre.append(WaitVM([("KV", None, rb)]))
        for j in range(8): A(f"v_add_f32 v{KVL+j}, v{KVL+j}, v{KVL + rb*8 + j}")
    for j in range(4): A(f"v_cvt_pk_bf16_f32 v{KVL+8+j}, v{KVL+2*j}, v{KVL+2*j+1}")
    A(f"s_lshl_b32 s{sT0}, s{sWAVE}, 10"); A(f"v_add_u32 v2, s{sT0}, v1")
    A(f"ds_write_b128 v2, {vr(KVL+8,4)}")
    P.pre.append(WaitVM([("Z", None, 0)]))
    for sh in (8, 4, 2, 1):
        for j in range(4): A(f"v_add_f32_dpp v{4+j}, v{4+j}, v{4+j} row_ror:{sh} row_mask:0xf bank_mask:0xf")
    A("v_cvt_pk_bf16_f32 v4, v4, v5"); A("v_cvt_pk_bf16_f32 v5, v6, v7")
    A(f"s_lshr_b32 s{sT0}, s{sWAVE}, 1"); A(f"s_lshl_b32 s{sT0}, s{sT0}, 10"); A(f"s_and_b32 s{sT1}, s{sWAVE}, 1"); A(f"s_lshl_b32 s{sT1}, s{sT1}, 3")
    A(f"s_add_u32 s{sT0}, s{sT0}, s{sT1}"); A(f"v_add_u32 v2, s{sT0}, v1")
    A("ds_write_b64 v2, v[4:5] offset:4096")
    A("s_waitcnt lgkmcnt(0)"); A("s_barrier")
    for k in range(6): A(f"ds_read_b128 {ar(32+4*k,4)}, v1 offset:{k*1024}")
    A("s_waitcnt lgkmcnt(0)")
    A(f"s_lshl_b32 s{sT0}, s{sT2}, 5"); A(f"s_add_u32 s{sT0}, s{sT0}, s{sH}"); A(f"s_lshl_b32 s{sT0}, s{sT0}, 10"); A(f"s_add_u32 s{sT0}, s{sT0}, {OFF_O}")
    for i in range(4):
        P.pre.append(WaitVM([("Q", None, i)]))
        d = 64 + i * 12
        for fh_ in range(2):
            for dt in range(2):
                A(f"{MFMA} {vr(d+4*dt,4)}, {ar(32 + (fh_*2+dt)*4, 4)}, {ar((i*2+fh_)*4, 4)}, {'0' if fh_ == 0 else vr(d+4*dt,4)}")
            A(f"{MFMA} {vr(d+8,4)}, {ar(48 + fh_*4, 4)}, {ar((i*2+fh_)*4, 4)}, {'0' if fh_ == 0 else vr(d+8,4)}")
    for i in range(4):
        d = 64 + i * 12
        A(f"v_add_f32 v{d+8}, {fh(1e-6)}, v{d+8}"); A(f"v_rcp_f32 v{d+8}, v{d+8}")
        for j in range(8): A(f"v_mul_f32 v{d+j}, v{d+j}, v{d+8}")
        for j in range(4): A(f"v_cvt_pk_bf16_f32 v{d+8+j}, v{d+2*j}, v{d+2*j+1}")
        A(f"buffer_store_dwordx4 {vr(d+8,4)}, v1, s[{sWS}:{sWS+3}], s{sT0} offen")
        if i < 3: A(f"s_add_u32 s{sT0}, s{sT0}, 32768")
    X(stamp(1))
    for j in range(8): A(f"v_mov_b32 v{16+j}, 0")
    for j in range(16):
        P.pre.append(WaitVM([("W", None, j)]))
        for d in range(4):
            A(unpack_lo(10, CL + 4*j + d)); A(unpack_hi(11, CL + 4*j + d))
            A(f"v_add_f32 v{16+2*d}, v{16+2*d}, v10"); A(f"v_add_f32 v{17+2*d}, v{17+2*d}, v11")
    A(f"s_lshl_b32 s{sT0}, s{sWAVE}, 11"); A("v_lshlrev_b32 v2, 5, v0"); A(f"v_add_u32 v2, s{sT0}, v2")
    A("ds_write_b128 v2, v[16:19] offset:8192"); A("ds_write_b128 v2, v[20:23] offset:8208")
    A("s_waitcnt lgkmcnt(0)"); A("s_barrier")
    A(f"s_lshl_b32 s{sT0}, s{sWAVE}, 6"); A(f"v_add_u32 v2, s{sT0}, v0"); A("v_lshlrev_b32 v3, 2, v2")
    for c in range(2):
        for w in range(4): A(f"ds_read_b32 v{16 + c*4 + w}, v3 offset:{8192 + w*2048 + c*1024}")
    A("s_waitcnt lgkmcnt(0)")
    for c in range(2):
        A(f"v_add_f32 v{16+c*4}, v{16+c*4}, v{17+c*4}"); A(f"v_add_f32 v{18+c*4}, v{18+c*4}, v{19+c*4}"); A(f"v_add_f32 v{16+c*4}, v{16+c*4}, v{18+c*4}")
    A(f"s_lshr_b32 s{sT0}, s2, 7"); A(f"s_mul_i32 s{sT0}, s{sT0}, 3584"); A(f"s_and_b32 s{sT1}, s2, 7"); A(f"s_mul_i32 s{sT1}, s{sT1}, 448"); A(f"s_add_u32 s{sT0}, s{sT0}, s{sT1}")
    A(f"s_lshl_b32 s{sT0}, s{sT0}, 6"); A(f"s_lshr_b32 s{sT1}, s2, 3"); A(f"s_and_b32 s{sT1}, s{sT1}, 15"); A(f"s_lshl_b32 s{sT1}, s{sT1}, 2"); A(f"s_add_u32 s{sT0}, s{sT0}, s{sT1}")
    A(f"s_add_u32 s{sT0}, s{sT0}, {OFF_CS}"); A(f"s_add_u32 s{sT1}, s{sT0}, {256*64}")
    A("v_lshlrev_b32 v3, 6, v2")
    A(f"buffer_store_dword v16, v3, s[{sWS}:{sWS+3}], s{sT0} offen")
    A(f"s_cmp_ge_u32 s{sWAVE}, 3"); A(f"s_cbranch_scc1 L_{name}_skip")
    A(f"buffer_store_dword v20, v3, s[{sWS}:{sWS+3}], s{sT1} offen")
    A(f"L_{name}_skip:")
    if STAMPS:
        X(stamp(2)); A("s_waitcnt vmcnt(0)"); X(stamp(3)); X(stamp_store(2, 4, sWS))
    A(f"L_{name}_end:"); A("s_endpgm")
    return finish(P, name, 256 + 56, 256, 16384)

def all_kernels():
    return [gen_k0(), gen_k1(), gen_k2(), gen_n64("k3"), gen_k4(), gen_n64("k5")]

HEADER = open("sequential_preLN__linear_kernel_hedgehog__glu_gated_swiglu__prompt.s.ref").read().split("; Override launch")[0] if __name__ == "__main__" else ""

def build(kernels):
    launches = [k[0] for k in kernels]
    out = launches + ['.amdgcn_target "amdgcn-amd-amdhsa--gfx950"', ".text"]
    for k in kernels: out += k[1]
    out += ['.section .rodata,"a"']
    for k in kernels: out += [".p2align 6"] + k[2]
    return "\n".join(out) + "\n"

if __name__ == "__main__":
    out = sys.argv[1] if len(sys.argv) > 1 else "sequential_preLN__linear_kernel_hedgehog__glu_gated_swiglu__prompt.s"
    open(out, "w").write(HEADER + build(all_kernels()))
```

```python
from gen import *
import gen

OFF_XS  = (38 << 20) + (256 << 10)
OFF_QCS = (38 << 20) + (512 << 10)
OFF_KVP = 34 << 20
OFF_KVR = 38 << 20
OFF_ZP  = (38 << 20) + (704 << 10)
OFF_FL  = (38 << 20) + (832 << 10)
OFF_NONCE = (38 << 20) + (840 << 10)
SPIN = 20000

def sw16(a, b): return f"v_permlane16_swap_b32 v{a}, v{b}"
def sw32(a, b): return f"v_permlane32_swap_b32 v{a}, v{b}"

def gen_k1f(name="k1_kernel", abl=()):
    P = Prog(); A = P.pre.append
    def X(l): P.pre.extend(flat(l))
    def V(tag, text): P.pre.append(VM(tag, text))
    def W(tags, extra=""): P.pre.append(WaitVM(tags, extra))
    NT, S = 16, 3
    H1AT = 3 if 'h13' in abl else (1 if 'h11' in abl else 2)
    H2AT = 0 if 'h20' in abl else (2 if 'h22' in abl else 1)
    LOOPST = "ls" in abl
    lsmap = {1: 2, 4: 3, 8: 4, 12: 5, 14: 6}
    def stamp(i, loop=False):
        if LOOPST:
            if loop or i in (0, 1): return gen.stamp(i)
            if i == 2: return gen.stamp(7)
            return []
        return [] if loop else gen.stamp(i)
    XS, WB, WS_ = 16384, 49152, 24576
    WPO = WB + 3 * WS_
    RS = 608
    CSL = 81920
    sXs, sW, sWS, sDBG, sWP, sW13, sWO = 4, 8, 12, 16, 20, 24, 28
    sWAVE, sM, sHD, sRB, sHP, sR, sT0, sT1, sT2, sTT0, sNON, sT3, sCNT = 32, 33, 34, 35, 36, 37, 38, 39, 61, 62, 63, 64, 65
    sXO, sM0X, sM0W, sKX, sKW, sSEL, sDO = 66, 70, 71, 69, 60, 44, 88
    sO = 94
    sMK = 48
    PTR = 40
    vL16, vXD, vWD, vXR, vWR, vXR2 = 1, 2, 4, 6, 8, 12
    FR, ACC, vWP, vST, vCS = 16, 96, 192, 200, 232
    vFM, vFA, vFV, vFL = 224, 225, 226, 227
    def xf(b, tt): return FR + b * 40 + tt * 4
    def wf(b, k): return FR + b * 40 + 16 + k * 4
    def acc(k, tt): return ACC + (k * 4 + tt) * 4
    X(kernel_header(name))
    A("s_cmp_ge_u32 s2, 256"); A(f"s_cbranch_scc1 L_{name}_end")
    A(f"s_load_dwordx16 s[{PTR}:{PTR+15}], s[0:1], 0")
    A("s_load_dwordx4 s[56:59], s[0:1], 72")
    A("v_lshrrev_b32 v1, 6, v0"); A("v_and_b32 v0, 63, v0")
    A(f"v_readfirstlane_b32 s{sWAVE}, v1")
    X(wg_decode(sRB, sHP, sT0, sT1, sT2, 1, 8, 4))
    A(f"s_lshr_b32 s{sM}, s{sWAVE}, 1"); A(f"s_and_b32 s{sHD}, s{sWAVE}, 1")
    A(f"s_and_b32 s{sT0}, s{sHP}, 3"); A(f"s_lshl_b32 s{sT0}, s{sT0}, 2"); A(f"s_lshr_b32 s{sT1}, s{sHP}, 2"); A(f"s_add_u32 s{sR}, s{sT0}, s{sT1}")
    A(f"s_and_b32 s{sT0}, s{sRB}, 7"); A(f"s_lshl_b32 s{sT0}, s{sT0}, 1"); A(f"s_lshr_b32 s{sT1}, s{sRB}, 3"); A(f"s_add_u32 s{sR}, s{sR}, s{sT0}"); A(f"s_add_u32 s{sR}, s{sR}, s{sT1}")
    if "off" in abl:
        A(f"s_and_b32 s{sO}, s{sHP}, 12"); A(f"s_and_b32 s{sT0}, s{sRB}, 8"); A(f"s_lshr_b32 s{sT0}, s{sT0}, 2"); A(f"s_add_u32 s{sO}, s{sO}, s{sT0}")
    else: A(f"s_mov_b32 s{sO}, 0")
    A(f"s_sub_u32 s{sR}, s{sR}, s{sO}"); A(f"s_and_b32 s{sR}, s{sR}, 15")
    A(f"v_lshlrev_b32 v{vL16}, 4, v0")
    A("v_lshrrev_b32 v12, 3, v0"); A("v_lshrrev_b32 v13, 4, v0"); A("v_xor_b32 v13, v13, v0"); A("v_and_b32 v13, 7, v13")
    A("v_lshlrev_b32 v14, 11, v12")
    A(f"s_lshl_b32 s{sT0}, s{sRB}, 18"); A(f"s_lshl_b32 s{sT1}, s{sWAVE}, 16"); A(f"s_add_u32 s{sT0}, s{sT0}, s{sT1}")
    A(f"v_add_u32 v14, s{sT0}, v14")
    A(f"v_lshl_add_u32 v{vXD}, v13, 4, v14"); A("v_xor_b32 v13, 4, v13"); A(f"v_lshl_add_u32 v{vXD+1}, v13, 4, v14")
    A("v_and_b32 v13, 2, v12"); A("v_xor_b32 v13, v13, v0"); A("v_and_b32 v13, 7, v13")
    A("v_mul_u32_u24 v14, 6144, v12"); A(f"s_lshl_b32 s{sT0}, s{sHP}, 7"); A(f"v_add_u32 v14, s{sT0}, v14")
    A(f"v_lshl_add_u32 v{vWD}, v13, 4, v14"); A("v_xor_b32 v13, 4, v13"); A(f"v_lshl_add_u32 v{vWD+1}, v13, 4, v14")
    for q in range(1, 4): A(f"s_mov_b32 s{sXO+q-1}, {q*15360}")
    A(f"s_lshl_b32 s{sM0X}, s{sWAVE}, 12")
    A(f"s_mul_i32 s{sM0W}, s{sWAVE}, 6144"); A(f"s_add_u32 s{sM0W}, s{sM0W}, {WB}")
    A(f"s_mul_i32 s{sT0}, s{sWAVE}, 6")
    for q in range(6):
        A(f"s_add_u32 s{sT1}, s{sT0}, {q}")
        A(f"s_and_b32 s{sT2}, s{sT1}, 7"); A(f"s_mul_i32 s{sT2}, s{sT2}, {8*6144}")
        A(f"s_lshr_b32 s{sT1}, s{sT1}, 3"); A(f"s_lshl_b32 s{sT1}, s{sT1}, 11")
        A(f"s_add_u32 s{sDO+q}, s{sT1}, s{sT2}")
        if q & 3: A(f"s_sub_u32 s{sDO+q}, s{sDO+q}, {(q&3)*1024}")
    A(f"s_mov_b32 s{sXs+2}, {2048*2048 - 15*128}"); A(f"s_mov_b32 s{sXs+3}, 0x00020000")
    A(f"s_mov_b32 s{sW+2}, {64*6144}"); A(f"s_mov_b32 s{sW+3}, 0x00020000")
    A("s_waitcnt lgkmcnt(0)")
    X(stamp(0))
    def settile(si):
        if si == 0: pre = [f"s_add_u32 s{sKX}, s{sR}, s{sO}", f"s_and_b32 s{sKX}, s{sKX}, 15"]
        else: pre = [f"s_cmp_le_u32 s{sR}, {si-1}", f"s_addc_u32 s{sKX}, s{sO}, {si-1}", f"s_and_b32 s{sKX}, s{sKX}, 15"]
        return [pre + [f"s_lshl_b32 s{sT0}, s{sKX}, 7", f"s_add_u32 s{sXs}, s{PTR}, s{sT0}", f"s_addc_u32 s{sXs+1}, s{PTR+1}, 0"],
                [f"s_mul_i32 s{sT0}, s{sKX}, {64*6144}", f"s_add_u32 s{sW}, s{PTR+2}, s{sT0}", f"s_addc_u32 s{sW+1}, s{PTR+3}, 0"]]
    def dma(si):
        stg = si % S
        L = settile(si)
        for q in range(4):
            grp = [f"s_add_u32 m0, s{sM0X}, {stg*XS}"] if q == 0 else []
            grp.append(VM(("D", si, q), f"buffer_load_dwordx4 v{vXD+(q&1)}, s[{sXs}:{sXs+3}], {'0' if q == 0 else 's%d' % (sXO+q-1)} offen offset:{q*1024} lds"))
            L.append(grp)
        for q in range(6):
            grp = [f"s_add_u32 m0, s{sM0W}, {stg*WS_ + q*1024}"] if q in (0, 4) else []
            grp.append(VM(("D", si, 4 + q), f"buffer_load_dwordx4 v{vWD+(q&1)}, s[{sW}:{sW+3}], s{sDO+q} offen offset:{(q&3)*1024} lds"))
            L.append(grp)
        return L
    X(dma(0)); X(dma(1))
    A("s_bitcmp1_b32 s2, 7")
    A(f"s_cselect_b32 s{sW13}, s{PTR+12}, s{PTR+10}"); A(f"s_cselect_b32 s{sW13+1}, s{PTR+13}, s{PTR+11}")
    A(f"s_mov_b32 s{sW13+2}, {1024*7168}"); A(f"s_mov_b32 s{sW13+3}, 0x00020000")
    X(srd(sWP, PTR + 4, PTR + 5, 65536)); X(srd(sWO, PTR + 6, PTR + 7, 2097152))
    X(srd(sDBG, 56, 57, 256)); X(srd(sWS, 58, 59, WS_BYTES))
    if "c3" in abl:
        A(f"s_and_b32 s{sT0}, s{sHP}, 7"); A(f"s_cmp_ge_u32 s{sT0}, 3"); A(f"s_cbranch_scc1 L_{name}_c3")
        A(f"s_cmp_lg_u32 s{sWAVE}, 0"); A(f"s_cbranch_scc1 L_{name}_c3")
        A(f"s_lshr_b32 s{sT1}, s{sHP}, 2"); A(f"s_lshr_b32 s{sT2}, s{sRB}, 3"); A(f"s_add_u32 s{sT1}, s{sT1}, s{sT2}")
        A(f"s_and_b32 s{sT2}, s{sRB}, 7"); A(f"s_lshl_b32 s{sT2}, s{sT2}, 1"); A(f"s_add_u32 s{sT1}, s{sT1}, s{sT2}"); A(f"s_add_u32 s{sT1}, s{sT1}, 13"); A(f"s_and_b32 s{sT1}, s{sT1}, 15")
        A(f"s_mul_i32 s{sT1}, s{sT1}, {64*6144}"); A(f"s_add_u32 s{sW}, s{PTR+2}, s{sT1}"); A(f"s_addc_u32 s{sW+1}, s{PTR+3}, 0")
        A(f"s_lshl_b32 s{sT0}, s{sT0}, 11"); A(f"s_or_b32 s{sT1}, s{sHP}, 3"); A(f"s_lshl_b32 s{sT1}, s{sT1}, 7"); A(f"s_add_u32 s{sT0}, s{sT0}, s{sT1}")
        A("v_mul_u32_u24 v14, 6144, v0")
        A(f"buffer_load_dword a0, v14, s[{sW}:{sW+3}], s{sT0} offen")
        A(f"buffer_load_dword a0, v14, s[{sW}:{sW+3}], s{sT0} offen offset:64")
        A(f"L_{name}_c3:")
    A(f"s_lshl_b32 s{sT0}, s{sHP}, 1"); A(f"s_add_u32 s{sT0}, s{sT0}, s{sHD}"); A(f"s_lshl_b32 s{sT0}, s{sT0}, 11")
    A(f"s_lshl_b32 s{sT1}, s{sWAVE}, 11"); A(f"s_add_u32 m0, s{sT1}, {WPO}")
    for q in range(2): V(("P", None, 0), f"buffer_load_dwordx4 v{vL16}, s[{sWP}:{sWP+3}], s{sT0} offen offset:{q*1024} lds")
    if "pt" in abl or "ptall" in abl:
        n, base = (8, OFF_KVR) if "ptall" in abl else (3, OFF_QCS)
        A(f"s_lshl_b32 s{sT0}, s2, 2"); A(f"s_add_u32 s{sT0}, s{sT0}, s{sWAVE}"); A(f"s_mul_i32 s{sT0}, s{sT0}, {n*128}"); A(f"s_add_u32 s{sT0}, s{sT0}, {base}")
        A(f"v_min_u32 v14, {n-1}, v0"); A("v_lshlrev_b32 v14, 7, v14")
        V(("T", None, 9), f"buffer_load_dword a0, v14, s[{sWS}:{sWS+3}], s{sT0} offen sc1")
    A(f"s_lshl_b32 s{sTT0}, s{sRB}, 3"); A(f"s_lshl_b32 s{sT1}, s{sM}, 2"); A(f"s_add_u32 s{sTT0}, s{sTT0}, s{sT1}")
    A("v_and_b32 v14, 15, v0"); A("v_lshrrev_b32 v15, 1, v14"); A("v_lshrrev_b32 v16, 4, v0"); A("v_xor_b32 v15, v15, v16")
    A("v_lshlrev_b32 v14, 7, v14"); A(f"s_lshl_b32 s{sT0}, s{sM}, 13"); A(f"s_lshl_b32 s{sT1}, s{sHD}, 12"); A(f"s_add_u32 s{sT0}, s{sT0}, s{sT1}")
    A(f"v_add_u32 v14, s{sT0}, v14")
    A(f"v_lshl_add_u32 v{vXR}, v15, 4, v14"); A(f"v_xor_b32 v{vXR+1}, 64, v{vXR}")
    A(f"v_xor_b32 v{vXR2}, 4096, v{vXR}"); A(f"v_xor_b32 v{vXR2+1}, 4096, v{vXR+1}")
    A("v_lshrrev_b32 v14, 4, v0"); A("v_bfe_u32 v15, v0, 2, 2")
    A("v_lshl_add_u32 v16, v14, 3, v15"); A("v_lshlrev_b32 v16, 7, v16")
    A("v_and_b32 v17, 3, v0"); A("v_lshl_add_u32 v16, v17, 3, v16")
    A("v_and_b32 v14, 1, v14"); A("v_lshrrev_b32 v15, 1, v15"); A("v_lshl_add_u32 v14, v14, 1, v15")
    A(f"s_lshl_b32 s{sT0}, s{sHD}, 1"); A(f"v_xor_b32 v14, s{sT0}, v14")
    A("v_lshl_add_u32 v16, v14, 5, v16")
    A(f"v_add_u32 v{vWR}, {WB}, v16"); A(f"v_xor_b32 v{vWR+1}, 32, v{vWR}")
    A(f"v_add_u32 v{vWR+2}, {2*WS_}, v{vWR}"); A(f"v_add_u32 v{vWR+3}, {2*WS_}, v{vWR+1}")
    vONE = 220
    for j in range(4): A(f"v_mov_b32 v{vONE+j}, 0x3f803f80")
    A("v_and_b32 v14, 15, v0")
    for k in range(6):
        A(f"v_cmp_eq_u32 vcc, {k}, v14"); A(f"v_cndmask_b32 v{vCS+4*k}, 0, v{vONE}, vcc")
        for j in range(1, 4): A(f"v_mov_b32 v{vCS+4*k+j}, v{vCS+4*k}")
    for i, m in enumerate((0x22222222, 0x44444444, 0x88888888)):
        A(f"s_mov_b32 s{sMK+2*i}, {m}"); A(f"s_mov_b32 s{sMK+2*i+1}, {m}")
    for i in range(4): A(f"s_mov_b32 s{sSEL+i}, {0x07060500 | i}")
    A(f"s_lshl_b32 s{sT0}, s{sRB}, 7"); A(f"s_lshl_b32 s{sT1}, s{sHP}, 7"); A(f"s_add_u32 s{sT1}, s{sT1}, 2048")
    A(f"v_mov_b32 v14, s{sT0}"); A(f"v_mov_b32 v15, s{sT1}"); A("v_cmp_gt_u32 vcc, 16, v0"); A(f"v_cndmask_b32 v{vFA}, v15, v14, vcc")
    A("v_and_b32 v16, 15, v0"); A(f"v_lshl_add_u32 v{vFA}, v16, 2, v{vFA}")
    A(f"v_lshl_add_u32 v14, s{sHP}, 2, v14"); A(f"v_lshl_add_u32 v15, s{sRB}, 2, v15"); A("v_cmp_eq_u32 vcc, 0, v0"); A(f"v_cndmask_b32 v{vFM}, v15, v14, vcc")
    A(f"v_mov_b32 v{vFV}, 0")
    A(f"s_or_b32 s{sT0}, s2, s{sWAVE}"); A(f"s_cmp_lg_u32 s{sT0}, 0"); A(f"s_cbranch_scc1 L_{name}_nn")
    A("s_memtime s[96:97]"); A("s_waitcnt lgkmcnt(0)"); A("s_or_b32 s96, s96, 0x01010101"); A("v_mov_b32 v14, s96")
    A(f"s_mov_b32 s{sT0}, {OFF_NONCE}")
    A("s_mov_b64 exec, 1"); A(f"buffer_store_dword v14, v{vFV}, s[{sDBG}:{sDBG+3}], 0 offen sc1")
    A(f"buffer_store_dword v14, v{vFV}, s[{sWS}:{sWS+3}], s{sT0} offen sc1"); A("s_mov_b64 exec, -1")
    A(f"L_{name}_nn:")
    def reads(si, ks, b):
        stg = si % S
        L = []
        for tt in range(4):
            L.append(f"ds_read_b128 {vr(xf(b,tt),4)}, v{(vXR if tt < 2 else vXR2) + ks} offset:{stg*XS + (tt&1)*2048}")
        for k in range(6):
            m, dh = k >> 1, k & 1
            va = vWR + dh + (2 if stg == 2 else 0)
            for t in range(2):
                L.append(f"ds_read_b64_tr_b16 {vr(wf(b,k)+2*t,2)}, v{va} offset:{(stg & 1)*WS_ + m*8192 + (32*ks + 4*t)*128}")
        return L[4:6] + L[0:4] + L[6:]
    W([("D", 0, None)])
    A("s_barrier")
    X(reads(0, 0, 0))
    X(stamp(1))
    ex = {}
    OUT = []
    prex = {}
    wtags = {}
    def EXF(si, ks, groups): ex.setdefault((si, ks), []).extend(groups)
    g = []
    for tt in range(2):
        gr = 208 + 4 * tt
        g.append(f"v_cndmask_b32 v{gr}, v{gr}, v{gr+1}, s[{sMK}:{sMK+1}]"); g.append(f"v_cndmask_b32 v{gr}, v{gr}, v{gr+2}, s[{sMK+2}:{sMK+3}]")
        g.append(f"v_cndmask_b32 v{201+2*tt}, v{gr}, v{gr+3}, s[{sMK+4}:{sMK+5}]")
    g.append("v_mov_b32 v202, v204")
    g.append("v_and_b32 v14, 15, v0"); g.append("v_lshlrev_b32 v15, 4, v14")
    g.append([f"s_lshr_b32 s{sT1}, s{sTT0}, 1", f"s_add_u32 s{sT1}, s{sT1}, s{sHD}", f"s_lshl_b32 s{sT1}, s{sT1}, 12",
              f"s_lshl_b32 s{sT2}, s{sHP}, 8", f"s_add_u32 s{sT1}, s{sT1}, s{sT2}", f"s_add_u32 s{sT1}, s{sT1}, {OFF_XS}"])
    g.append(["s_mov_b32 exec_lo, 0x00f0000f", "s_mov_b32 exec_hi, 0xf0000f00",
              VM(("SS", None, 0), f"buffer_store_dwordx4 v[200:203], v15, s[{sWS}:{sWS+3}], s{sT1} offen sc1"), "s_mov_b64 exec, -1"])
    g.append("v_lshlrev_b32 v14, 10, v14"); g.append("v_and_b32 v15, 48, v0"); g.append("v_lshl_add_u32 v14, v15, 4, v14")
    g.append([f"s_lshl_b32 s{sT1}, s{sHP}, 1", f"s_add_u32 s{sT1}, s{sT1}, s{sHD}", f"s_mul_i32 s{sT1}, s{sT1}, 6144",
              f"s_lshl_b32 s{sT2}, s{sRB}, 4", f"s_add_u32 s{sT1}, s{sT1}, s{sT2}", f"s_add_u32 s{sT1}, s{sT1}, {OFF_QCS}"])
    g.append([f"s_mul_i32 s{sT2}, s{sM}, 3", f"s_lshl_b32 s{sT2}, 0x00070007, s{sT2}", f"s_mov_b32 exec_lo, s{sT2}", f"s_mov_b32 exec_hi, s{sT2}",
              VM(("SS", None, 1), f"buffer_store_dwordx4 v[216:219], v14, s[{sWS}:{sWS+3}], s{sT1} offen sc1"), "s_mov_b64 exec, -1"])
    EXF(1, 0, g)
    EXF(1, 1, ["v_lshrrev_b32 v14, 2, v0", "v_lshlrev_b32 v14, 6, v14", "v_and_b32 v15, 3, v0", "v_lshl_add_u32 v14, v15, 3, v14",
               [f"s_lshl_b32 s{sT1}, s{sWAVE}, 11", f"s_add_u32 s{sT1}, s{sT1}, {WPO}", f"v_add_u32 v14, s{sT1}, v14"]] +
              [f"ds_read_b64_tr_b16 {vr(vWP + ft*4 + 2*t, 2)}, v14 offset:{t*1024 + ft*32}" for ft in range(2) for t in range(2)])
    SPUB, SFL, SCHK = 3, 7, 8
    wtags[SPUB] = [("SS", None, None)]
    nload = f"buffer_load_dword v{vFL}, v{vFV}, s[{sDBG}:{sDBG+3}], 0 offen sc1"
    EXF(1, 1, [VM(("NO", None, 0), nload)])
    prex[(3, 0)] = [WaitVM([("NO", None, 0)]), f"v_readfirstlane_b32 s{sNON}, v{vFL}", f"s_cmp_eq_u32 s{sNON}, 0", f"s_cbranch_scc1 L_{name}_nsp", f"L_{name}_nok:"]
    OUT.extend([f"L_{name}_nsp:", f"s_mov_b32 s{sCNT}, 0", f"L_{name}_nsp2:", "s_sleep 2", nload, "s_waitcnt vmcnt(0)", f"v_readfirstlane_b32 s{sNON}, v{vFL}",
                f"s_add_u32 s{sCNT}, s{sCNT}, 1", f"s_cmp_ge_u32 s{sCNT}, {SPIN}", f"s_cbranch_scc1 L_{name}_nok",
                f"s_cmp_eq_u32 s{sNON}, 0", f"s_cbranch_scc1 L_{name}_nsp2", f"s_branch L_{name}_nok"])
    EXF(3, 0, [f"v_mov_b32 v{vFV}, s{sNON}", f"s_mov_b32 s{sKW}, {OFF_FL}"])
    EXF(SPUB, 1, [[f"s_cmp_eq_u32 s{sWAVE}, 0", f"s_cbranch_scc1 L_{name}_pf", f"L_{name}_pfr:"]])
    OUT.extend([f"L_{name}_pf:", "s_mov_b64 exec, 3", f"buffer_store_dword v{vFV}, v{vFM}, s[{sWS}:{sWS+3}], s{sKW} offen sc1", "s_mov_b64 exec, -1", f"s_branch L_{name}_pfr"])
    fload = f"buffer_load_dword v{vFL}, v{vFA}, s[{sWS}:{sWS+3}], s{sKW} offen sc1"
    EXF(SFL, 0, [VM(("FL", None, 0), fload)])
    prex[(SCHK, 0)] = [WaitVM([("FL", None, 0)]), f"v_cmp_ne_u32 vcc, v{vFL}, v{vFV}", f"s_cbranch_vccnz L_{name}_fsp", f"L_{name}_fok:"]
    OUT.extend([f"L_{name}_fsp:", f"s_mov_b32 s{sCNT}, 0", f"L_{name}_fsp2:", "s_sleep 1", fload, "s_waitcnt vmcnt(0)", f"v_cmp_ne_u32 vcc, v{vFL}, v{vFV}",
                f"s_add_u32 s{sCNT}, s{sCNT}, 1", f"s_cmp_ge_u32 s{sCNT}, {SPIN}", f"s_cbranch_scc1 L_{name}_fok",
                f"s_cbranch_vccnz L_{name}_fsp2", f"s_branch L_{name}_fok"])
    side_base = [f"s_lshr_b32 s{sT3}, s2, 3", f"s_and_b32 s{sT3}, s{sT3}, 15", f"s_lshl_b32 s{sT3}, s{sT3}, 2", f"s_add_u32 s{sT3}, s{sT3}, s{sWAVE}",
                 f"s_mul_i32 s{sT3}, s{sT3}, {16*7168}", f"s_and_b32 s{sT1}, s2, 7", f"s_mul_i32 s{sT1}, s{sT1}, 896", f"s_add_u32 s{sT3}, s{sT3}, s{sT1}"]
    t13 = [[f"s_and_b32 s{sT1}, s2, 63", f"s_lshl_b32 s{sT1}, s{sT1}, 2", f"s_add_u32 s{sT1}, s{sT1}, s{sWAVE}", f"s_mul_i32 s{sT1}, s{sT1}, 7168",
            f"s_bfe_u32 s{sT2}, s2, 0x10006", f"s_mul_i32 s{sT2}, s{sT2}, {512*7168}", f"s_add_u32 s{sT1}, s{sT1}, s{sT2}",
            "v_min_u32 v14, 55, v0", "v_lshlrev_b32 v14, 7, v14"],
           VM(("T", None, 0), f"buffer_load_dword a0, v14, s[{sW13}:{sW13+3}], s{sT1} offen")]
    if "t13all" in abl: t13 += [[f"s_add_u32 s{sT1}, s{sT1}, {256*7168}", VM(("T", None, 1), f"buffer_load_dword a0, v14, s[{sW13}:{sW13+3}], s{sT1} offen")]]
    touch = [
             [f"s_lshl_b32 s{sT1}, s2, 2", f"s_add_u32 s{sT1}, s{sT1}, s{sWAVE}", f"s_lshl_b32 s{sT1}, s{sT1}, 11",
              "v_and_b32 v14, 15, v0", "v_lshlrev_b32 v14, 7, v14"],
             VM(("T", None, 2), f"buffer_load_dword a0, v14, s[{sWO}:{sWO+3}], s{sT1} offen")]
    SIDE = "side" in abl
    if "t13" in abl or "t13all" in abl: touch = touch + t13
    EXF(3, 0, [side_base])
    g = [[f"s_lshr_b32 s{sT1}, s{sTT0}, 1", f"s_add_u32 s{sT1}, s{sT1}, s{sHD}", f"s_lshl_b32 s{sT1}, s{sT1}, 12", f"s_add_u32 s{sT1}, s{sT1}, {OFF_XS}",
          f"s_xor_b32 s{sT2}, s{sT1}, 4096"]]
    for p in range(2):
        for i in range(4):
            g.append(VM(("RS", None, p), f"buffer_load_dwordx4 {vr(vST + p*16 + i*4, 4)}, v{vL16}, s[{sWS}:{sWS+3}], s{sT1 if p == 0 else sT2} offen offset:{i*1024} sc1"))
    EXF(SCHK, 0, g)
    g = [[f"s_lshl_b32 s{sT1}, s{sHP}, 1", f"s_add_u32 s{sT1}, s{sT1}, s{sHD}", f"s_mul_i32 s{sT1}, s{sT1}, 6144", f"s_add_u32 s{sT1}, s{sT1}, {OFF_QCS}",
          f"s_add_u32 s{sT2}, s{sT1}, 4096"]]
    for k in range(6):
        g.append(VM(("QC", None, k), f"buffer_load_dwordx4 {vr(vCS + k*4, 4)}, v{vL16}, s[{sWS}:{sWS+3}], s{sT1 if k < 4 else sT2} offen offset:{(k&3)*1024} sc1"))
    EXF(SCHK, 0, g)
    wtags[9] = [("RS", None, 1), ("QC", None, 5)]
    def KP(tt): return vST + (tt >> 1) * 16 + 4 + 2 * (tt & 1)
    def CR(tt): return vST + (tt >> 1) * 16 + 8 + (tt & 1)
    def CC(p): return vST + p * 16 + 10
    red = []
    strs = []
    for p in range(2):
        b = vST + p * 16
        s = []
        for j in range(4): s.append(f"v_add_f32 v{b+j}, v{b+j}, v{b+4+j}")
        for j in range(4): s.append(f"v_add_f32 v{b+8+j}, v{b+8+j}, v{b+12+j}")
        for j in range(4): s.append(f"v_add_f32 v{b+j}, v{b+j}, v{b+8+j}")
        s += [sw16(b, b + 1), sw16(b + 2, b + 3), f"v_add_f32 v{b+1}, v{b}, v{b+1}", f"v_add_f32 v{b+3}, v{b+2}, v{b+3}",
              sw32(b + 1, b + 3), f"v_add_f32 v{b+1}, v{b+1}, v{b+3}", f"v_mov_b32 v{b+3}, v{b+1}", sw32(b + 1, b + 3),
              f"v_mov_b32 v{b}, v{b+1}", f"v_mov_b32 v{b+2}, v{b+3}", sw16(b, b + 1), sw16(b + 2, b + 3)]
        fin = []
        for t in range(2):
            tt = 2 * p + t
            sm, sq, nm, rs = b + 2 * t, b + 2 * t + 1, KP(tt), KP(tt) + 1
            fin.append([f"v_mul_f32 v{nm}, {fh(-1.0/1024)}, v{sm}", f"v_mul_f32 v{sq}, {fh(1.0/1024)}, v{sq}", f"v_fma_f32 v{sq}, -v{nm}, v{nm}, v{sq}",
                        f"v_max_f32 v{sq}, 0, v{sq}", f"v_add_f32 v{sq}, {fh(1e-5)}, v{sq}", f"v_rsq_f32 v{rs}, v{sq}", f"v_mul_f32 v{CR(tt)}, {fh(LOG2E)}, v{rs}"])
        s += zip_streams(*fin)
        s.append(f"v_cndmask_b32 v{CC(p)}, v{CR(2*p)}, v{CR(2*p+1)}, s[{sMK}:{sMK+1}]")
        strs.append(s)
    red += [[f"s_mov_b32 s{sMK}, 0", f"s_mov_b32 s{sMK+1}, -1"]] + zip_streams(*strs)
    for sh in (8, 4, 2, 1):
        for j in range(24): red.append(f"v_add_f32_dpp v{vCS+j}, v{vCS+j}, v{vCS+j} row_ror:{sh} row_mask:0xf bank_mask:0xf")
    vIE, vIV, vIR, vAP, vAM, vNON = 212, 213, 214, 228, 2, 15
    prep = ["v_and_b32 v14, 15, v0", [f"s_lshl_b32 s{sT1}, s{sM}, 6", f"v_add_u32 v14, s{sT1}, v14"], f"v_mul_u32_u24 v14, {RS}, v14",
            f"v_and_b32 v{vIV}, 48, v0", [f"s_lshl_b32 s{sT1}, s{sHD}, 7", f"v_add3_u32 v{vIE}, v14, v{vIV}, s{sT1}"],
            f"v_lshrrev_b32 v{vIR}, 2, v{vIV}", [f"s_lshl_b32 s{sT1}, s{sHD}, 5", f"s_add_u32 s{sT1}, s{sT1}, 512", f"v_add3_u32 v{vIR}, v14, v{vIR}, s{sT1}"],
            "v_and_b32 v14, 1, v0", "v_cmp_eq_u32 vcc, 0, v14", "v_mov_b32 v14, 0x3f803f80",
            f"v_cndmask_b32 v{vAP}, 0, v14, vcc", f"v_cndmask_b32 v{vAM}, v14, 0, vcc"]
    prep += [f"v_mov_b32 v{vAP+j}, v{vAP}" for j in range(1, 4)] + [f"v_mov_b32 v{vAM+j}, v{vAM}" for j in range(1, 4)]
    prep += [f"v_mov_b32 v{vNON}, s{sNON}"]
    red = red + prep
    phases = [(9, 1)] + [(si, ks) for si in range(10, 16) for ks in range(2)]
    wts = [16] * 8 + [20, 28, 28, 28, 40]
    tot = sum(wts); k0 = 0; accw = 0
    cum = [0]
    for x in red: cum.append(cum[-1] + icost(x))
    for ph, wt in zip(phases, wts):
        accw += wt
        k1 = k0
        while k1 < len(red) and cum[k1 + 1] <= cum[-1] * accw / tot + 1e-6: k1 += 1
        EXF(*ph, red[k0:k1]); k0 = k1
    assert k0 == len(red)
    aSD = 0
    sidef = {(13, 1): touch}
    for si in range(NT):
        for ks in range(2):
            b = ks
            mf = []
            for k in range(6):
                for tt in (range(4) if k % 2 == 0 else range(3, -1, -1)):
                    mf.append(f"{MFMA} {vr(acc(k,tt),4)}, {vr(wf(b,k),4)}, {vr(xf(b,tt),4)}, {'0' if (si == 0 and ks == 0) else vr(acc(k,tt),4)}")
            def C(r): return '0' if ks == 0 else vr(r, 4)
            if si == 0:
                for tt in range(2):
                    mf.append(f"{MFMA} {vr(200+4*tt,4)}, {vr(vONE,4)}, {vr(xf(b,tt),4)}, {C(200+4*tt)}")
                    mf.append(f"{MFMA} {vr(208+4*tt,4)}, {vr(xf(b,tt),4)}, {vr(xf(b,tt),4)}, {C(208+4*tt)}")
                for k in range(6):
                    mf.append(f"{MFMA} v[216:219], {vr(wf(b,k),4)}, {vr(vCS+4*k,4)}, {'0' if (ks == 0 and k == 0) else 'v[216:219]'}")
            if ks == 0: pre = ["s_waitcnt lgkmcnt(0)"]
            else:
                tags = ([("D", si + 1, None)] if si + 1 < NT else []) + wtags.get(si, [])
                if si == 0: tags.append(("P", None, 0))
                pre = [WaitVM(tags, " lgkmcnt(0)") if tags else "s_waitcnt lgkmcnt(0)", "s_barrier"]
            pre = pre + prex.get((si, ks), [])
            rd = reads(si, 1, 1) if ks == 0 else (reads(si + 1, 0, 0) if si + 1 < NT else [])
            dl = []
            if ks == 0:
                if si == 0: dl = dma(2)
                elif si + 2 < NT: dl = dma(si + 2)[7:]
            elif si + 3 < NT: dl = dma(si + 3)[:7]
            dl = dl + sidef.get((si, ks), [])
            if "mfma" in abl: mf = ["s_nop 0"] * len(mf)
            if "rd" in abl: rd = []
            if "bar" in abl: pre = [x for x in pre if x != "s_barrier"]
            e = ex.get((si, ks), [])
            body = pack_gaps(mf, rd, dl, e, ex_first=(6 if (si, ks) == (1, 0) else 0))
            if ks == 0 and si in lsmap: X(stamp(lsmap[si], True))
            X(pre); X(body)
    X(stamp(2))
    def pk(op, d, a, b_, c=None, sel=None, selhi=None, neg=None):
        t = f"{op} {vr(d,2)}, {vr(a,2)}, {vr(b_,2)}" + (f", {vr(c,2)}" if c is not None else "")
        if sel: t += f" op_sel:{sel} op_sel_hi:{selhi}"
        if neg: t += f" neg_lo:{neg} neg_hi:{neg}"
        return t
    def lnfix(m, tt):
        L = []
        for dh in range(2):
            a = acc(2*m + dh, tt); c = vCS + 4 * (2*m + dh)
            for j in (0, 2): L.append(pk("v_pk_fma_f32", a + j, c + j, KP(tt), a + j, "[0,0,0]", "[1,0,1]"))
        return L
    def pack(d, a0, a1):
        return [f"v_cvt_pk_bf16_f32 v{d}, v{a0}, v{a0+1}", f"v_cvt_pk_bf16_f32 v{d+1}, v{a0+2}, v{a0+3}",
                f"v_cvt_pk_bf16_f32 v{d+2}, v{a1}, v{a1+1}", f"v_cvt_pk_bf16_f32 v{d+3}, v{a1+2}, v{a1+3}"]
    PB = 16
    TB = 48
    MX = 64
    def pmf(m, tt):
        q = acc(2*m, tt)
        return lnfix(m, tt) + pack(q, q, acc(2*m + 1, tt)) + [f"{MFMA} {vr(PB + tt*8 + 4*ft, 4)}, {vr(vWP + 4*ft, 4)}, {vr(q, 4)}, 0" for ft in range(2)]
    def maxes(tt):
        s, mx, mn = PB + tt * 8, MX + 2 * tt, MX + 2 * tt + 1
        a = [f"v_max3_f32 v{mx}, v{s}, v{s+1}, v{s+2}", f"v_max3_f32 v{mx}, v{mx}, v{s+3}, v{s+4}", f"v_max3_f32 v{mx}, v{mx}, v{s+5}, v{s+6}", f"v_max_f32 v{mx}, v{mx}, v{s+7}"]
        b_ = [f"v_max3_f32 v{mn}, -v{s}, -v{s+1}, -v{s+2}", f"v_max3_f32 v{mn}, v{mn}, -v{s+3}, -v{s+4}", f"v_max3_f32 v{mn}, v{mn}, -v{s+5}, -v{s+6}", f"v_max_f32 v{mn}, v{mn}, -v{s+7}"]
        return zip_streams(a, b_)
    def xmax(p):
        a, b_ = MX + 4 * p, MX + 4 * p + 2
        return [sw16(a, a + 1), sw16(b_, b_ + 1), f"v_max_f32 v{a}, v{a}, v{a+1}", f"v_max_f32 v{b_}, v{b_}, v{b_+1}",
                sw32(a, b_), f"v_max_f32 v{a}, v{a}, v{b_}", f"v_mul_f32 v{a+1}, -v{a}, v{CC(p)}", f"v_mul_f32 v{b_+1}, -v{a}, v{CC(p)}",
                sw32(a + 1, b_ + 1), f"v_mov_b32 v{a}, v{a+1}", f"v_mov_b32 v{b_}, v{b_+1}", sw16(a, a + 1), sw16(b_, b_ + 1)]
    def exps(tt, dp, dn):
        s, t, mx = PB + tt * 8, TB + (tt & 1) * 8, MX + 2 * tt
        cp, cs_ = CR(tt) & ~1, CR(tt) & 1
        L = []
        for j in range(0, 8, 2): L.append(pk("v_pk_fma_f32", t + j, s + j, cp, mx, f"[0,{cs_},1]", f"[1,{cs_},1]", "[1,0,0]"))
        for j in range(0, 8, 2): L.append(pk("v_pk_fma_f32", s + j, s + j, cp, mx, f"[0,{cs_},0]", f"[1,{cs_},0]"))
        for j in range(8): L.append(f"v_exp_f32 v{s+j}, v{s+j}")
        for j in range(8): L.append(f"v_exp_f32 v{t+j}, v{t+j}")
        return L + pack(dp, s, s + 4) + pack(dn, t, t + 4)
    SM = 72
    for tt in range(4): X(pmf(1, tt))
    X(zip_streams(*[lnfix(2, tt) for tt in range(2)]))
    X(zip_streams(maxes(0), maxes(1))); X(zip_streams(maxes(2), maxes(3)))
    X(zip_streams(xmax(0), xmax(1), lnfix(2, 2) + lnfix(2, 3)))
    def vside(tt):
        sm = SM + 4 * tt; a0, a1 = acc(4, tt), acc(5, tt); t = TB + (tt & 1) * 8
        L = [f"v_rcp_f32 v{sm}, v{sm}", f"v_rcp_f32 v{sm+1}, v{sm+1}",
             pk("v_pk_mul_f32", sm + 2, sm, KP(tt), None, "[0,1]", "[1,1]"), f"v_cvt_pk_bf16_f32 v{sm}, v{sm}, v{sm+1}",
             f"ds_write_b32 v{vIR}, v{sm} offset:{tt*16*RS}"]
        for j, a in enumerate((a0, a0 + 2, a1, a1 + 2)): L.append(pk("v_pk_mul_f32", t + 2 * j, a, sm + 2, None, "[0,0]", "[1,0]"))
        for j, a in enumerate((a0, a0 + 2, a1, a1 + 2)): L.append(pk("v_pk_mul_f32", a, a, sm + 2, None, "[0,1]", "[1,1]"))
        L += pack(t, t, t + 4) + [f"ds_write_b128 v{vIE}, {vr(t,4)} offset:{tt*16*RS + 256}"]
        L += pack(a0, a0, a1) + [f"ds_write_b128 v{vIE}, {vr(a0,4)} offset:{tt*16*RS + 320}"]
        return L
    for tt in range(4):
        dp, dn = acc(2, tt), acc(3, tt)
        X(exps(tt, dp, dn))
        A(f"{MFMA} {vr(SM+4*tt,4)}, {vr(vAP,4)}, {vr(dp,4)}, 0"); A(f"{MFMA} {vr(SM+4*tt,4)}, {vr(vAM,4)}, {vr(dn,4)}, {vr(SM+4*tt,4)}")
        A(f"ds_write_b128 v{vIE}, {vr(dp,4)} offset:{tt*16*RS}"); A(f"ds_write_b128 v{vIE}, {vr(dn,4)} offset:{tt*16*RS + 64}")
        if tt >= 1: X(vside(tt - 1))
    A("v_lshrrev_b32 v6, 2, v0"); A(f"v_mul_u32_u24 v6, {RS}, v6"); A("v_and_b32 v7, 3, v0"); A("v_lshl_add_u32 v6, v7, 3, v6")
    A(f"s_lshl_b32 s{sT0}, s{sM}, 5"); A(f"v_add_u32 v7, s{sT0}, v6")
    A(f"s_lshl_b32 s{sT0}, s{sWAVE}, 6"); A(f"v_add_u32 v6, s{sT0}, v6")
    A(f"v_add_u32 v10, {64*RS}, v6"); A(f"v_add_u32 v11, {64*RS}, v7")
    X(vside(3))
    A("s_waitcnt lgkmcnt(0)"); A("s_barrier")
    X(stamp(3))
    KF = 16
    for ks in range(4):
        for x, (va, c) in enumerate(((6, 0), (6, 256), (6, 32), (6, 288), (7, 512))):
            xx = (0, 2, 1, 3, 4)[x]
            for t in range(2): A(f"ds_read_b64_tr_b16 {vr(KF + ks*20 + xx*4 + 2*t, 2)}, v{va + 4*(ks>>1)} offset:{(32*(ks&1) + 16*t)*RS + c}")
    KV = acc(2, 0)
    A(f"s_lshl_b32 s{sT0}, s{sHP}, 4"); A(f"s_lshl_b32 s{sT1}, s{sWAVE}, 2"); A(f"s_add_u32 s{sT0}, s{sT0}, s{sT1}"); A(f"s_lshl_b32 s{sT0}, s{sT0}, 4")
    A(f"s_add_u32 s{sT0}, s{sT0}, s{sRB}"); A(f"s_lshl_b32 s{sT0}, s{sT0}, 10"); A(f"s_add_u32 s{sT0}, s{sT0}, {OFF_KVP}")
    for k in range(1, 4): A(f"s_add_u32 s{sDO+k}, s{sT0}, {k*16384}")
    A(f"s_lshl_b32 s{sT2}, s{sHP}, 1"); A(f"s_add_u32 s{sT2}, s{sT2}, s{sM}"); A(f"s_lshl_b32 s{sT2}, s{sT2}, 4"); A(f"s_add_u32 s{sT2}, s{sT2}, s{sRB}")
    A(f"s_lshl_b32 s{sT2}, s{sT2}, 1"); A(f"s_add_u32 s{sT2}, s{sT2}, s{sHD}"); A(f"s_lshl_b32 s{sT2}, s{sT2}, 7"); A(f"s_add_u32 s{sT2}, s{sT2}, {OFF_ZP}")
    A(f"s_lshl_b32 s{sT1}, 0x00010001, s{sHD}")
    A("v_and_b32 v8, 48, v0")
    lq = lnfix(0, 0) + lnfix(0, 1) + lnfix(0, 2) + lnfix(0, 3)
    for ks in range(4):
        A(f"s_waitcnt lgkmcnt({min(15, (3-ks)*10)})")
        for ft in range(2):
            for dt in range(3):
                d = KV + (dt * 2 + ft) * 4
                A(f"{MFMA} {vr(d,4)}, {vr(KF + ks*20 + ft*4, 4)}, {vr(KF + ks*20 + 8 + dt*4, 4)}, {'0' if ks == 0 else vr(d,4)}")
    X(lq[:6])
    for k in (0, 2, 1, 3):
        for j in range(4): A(f"v_perm_b32 v{KV+4*k+j}, v{KV+4*k+j}, v{vNON}, s{sSEL + j}")
        A(f"buffer_store_dwordx4 {vr(KV+4*k,4)}, v{vL16}, s[{sWS}:{sWS+3}], s{sT0 if k == 0 else sDO+k} offen sc1")
    for j in range(16, 24): A(f"v_perm_b32 v{KV+j}, v{KV+j}, v{vNON}, s{sSEL + (j&3)}")
    A(f"s_mov_b32 exec_lo, s{sT1}"); A(f"s_mov_b32 exec_hi, s{sT1}")
    for ft in range(2): A(f"buffer_store_dwordx4 {vr(KV+16+4*ft,4)}, v8, s[{sWS}:{sWS+3}], s{sT2} offen offset:{ft*64} sc1")
    A("s_mov_b64 exec, -1")
    X(stamp(4))
    X(lq[6:])
    for tt in range(4):
        q = acc(0, tt)
        X(pack(q, q, acc(1, tt)))
        for ft in range(2): A(f"{MFMA} {vr(PB + tt*8 + 4*ft, 4)}, {vr(vWP + 4*ft, 4)}, {vr(q, 4)}, 0")
    A(f"s_mov_b32 s{sMK+2}, 0x0c0c0400"); A(f"s_mov_b32 s{sMK+3}, 0x04000c0c")
    A("v_lshrrev_b32 v6, 4, v0"); A("v_lshlrev_b32 v6, 10, v6"); A("v_and_b32 v7, 15, v0"); A("v_lshl_add_u32 v6, v7, 4, v6")
    A(f"s_lshl_b32 s{sT0}, s{sHP}, 4"); A(f"s_add_u32 s{sT0}, s{sT0}, s{sRB}"); A(f"s_lshl_b32 s{sT0}, s{sT0}, 14")
    A(f"s_lshl_b32 s{sT1}, s{sWAVE}, 8"); A(f"s_add_u32 s{sT0}, s{sT0}, s{sT1}"); A(f"s_add_u32 s{sT0}, s{sT0}, {OFF_KVP}")
    for j in range(1, 4): A(f"s_add_u32 s{sDO+j}, s{sT0}, {j*4096}")
    X(zip_streams(maxes(0), maxes(1))); X(zip_streams(maxes(2), maxes(3)))
    X(zip_streams(xmax(0), xmax(1)))
    EQ = acc(4, 0)
    H1, ZL = 232, 72
    loads1 = [f"buffer_load_dwordx4 {vr(H1+4*j,4)}, v6, s[{sWS}:{sWS+3}], s{sT0 if j == 0 else sDO+j} offen sc1" for j in range(4)]
    for tt in range(4):
        X(exps(tt, EQ + tt * 8, EQ + tt * 8 + 4))
        if tt == H1AT: X(loads1)
    X(stamp(5))
    def tagcheck(quads, t1, t2, accr):
        L = []
        for i, q in enumerate(quads):
            L += [f"v_perm_b32 v{t1}, v{q+1}, v{q}, s{sMK+2}", f"v_perm_b32 v{t2}, v{q+3}, v{q+2}, s{sMK+3}"]
            if i == 0: L += [f"v_or_b32 v{t1}, v{t1}, v{t2}", f"v_xor_b32 v{accr}, v{t1}, v{vNON}"]
            else: L += [f"v_or_b32 v{t1}, v{t1}, v{t2}", f"v_xor_b32 v{t1}, v{t1}, v{vNON}", f"v_or_b32 v{accr}, v{accr}, v{t1}"]
        L += [f"v_cmp_ne_u32 vcc, 0, v{accr}"]
        return L
    def polled(lbl, loads, quads, wait):
        A(f"s_mov_b32 s{sKW}, 0")
        X([wait])
        A(f"L_{name}_{lbl}:")
        X(tagcheck(quads, 12, 13, 14))
        A(f"s_cbranch_vccz L_{name}_{lbl}x")
        A(f"s_add_u32 s{sKW}, s{sKW}, 1"); A(f"s_cmp_ge_u32 s{sKW}, {SPIN}"); A(f"s_cbranch_scc1 L_{name}_{lbl}x")
        A("s_mov_b64 exec, vcc")
        if SLEEP: A(f"s_sleep {SLEEP}")
        X(loads)
        A("s_mov_b64 exec, -1")
        A("s_waitcnt vmcnt(0)")
        A(f"s_branch L_{name}_{lbl}")
        A(f"L_{name}_{lbl}x:")
    polled("h1", loads1, [H1 + 4 * j for j in range(4)], "s_waitcnt vmcnt(0)")
    for j in range(16): A(f"v_and_b32 v{H1+j}, 0xffffff00, v{H1+j}")
    for j in (0, 2): A(pk("v_pk_add_f32", H1 + j, H1 + j, H1 + 4 + j)); A(pk("v_pk_add_f32", H1 + 8 + j, H1 + 8 + j, H1 + 12 + j))
    for j in (0, 2): A(pk("v_pk_add_f32", H1 + j, H1 + j, H1 + 8 + j))
    X(zip_streams(*[xreduce(H1 + j, H1 + 4 + j, "v_add_f32") for j in range(4)]))
    for j in range(4): A(f"v_perm_b32 v{H1+j}, v{H1+j}, v{vNON}, s{sSEL+j}")
    A(f"s_lshl_b32 s{sT0}, s{sHP}, 4"); A(f"s_add_u32 s{sT0}, s{sT0}, s{sRB}"); A(f"s_lshl_b32 s{sT0}, s{sT0}, 10")
    A(f"s_lshl_b32 s{sT1}, s{sWAVE}, 8"); A(f"s_add_u32 s{sT0}, s{sT0}, s{sT1}"); A(f"s_add_u32 s{sT0}, s{sT0}, {OFF_KVR}")
    A("s_mov_b64 exec, 0xffff")
    A(f"buffer_store_dwordx4 {vr(H1,4)}, v{vL16}, s[{sWS}:{sWS+3}], s{sT0} offen sc1")
    A("s_mov_b64 exec, -1")
    X(stamp(6))
    A(f"s_lshl_b32 s{sT1}, s{sHP}, 1"); A(f"s_add_u32 s{sT1}, s{sT1}, s{sHD}"); A(f"s_lshl_b32 s{sT2}, s{sT1}, 12"); A(f"s_add_u32 s{sT2}, s{sT2}, {OFF_ZP}")
    loadsz = [f"buffer_load_dwordx4 {vr(ZL+4*j,4)}, v{vL16}, s[{sWS}:{sWS+3}], s{sT2} offen offset:{j*1024} sc1" for j in range(4)]
    for t in loadsz: V(("Z", None, 0), t)
    A("v_min_u32 v7, 55, v0"); A("v_lshlrev_b32 v7, 4, v7")
    SD = 96
    def sideload(j): return [VM(("W13", None, j), f"buffer_load_dwordx4 {vr(SD+4*j,4)}, v7, s[{sW13}:{sW13+3}], s{sT3} offen"), f"s_add_u32 s{sT3}, s{sT3}, 7168"]
    if SIDE:
        for j in range(16): X(sideload(j))
    A("v_and_b32 v6, 3, v0"); A("v_lshlrev_b32 v6, 4, v6")
    A("v_and_b32 v8, 4, v0"); A("v_lshl_add_u32 v6, v8, 5, v6")
    A("v_and_b32 v8, 8, v0"); A("v_lshl_add_u32 v6, v8, 8, v6")
    A("v_and_b32 v8, 48, v0"); A("v_lshl_add_u32 v6, v8, 5, v6")
    A(f"s_lshl_b32 s{sDO}, s{sT1}, 13"); A(f"s_add_u32 s{sDO}, s{sDO}, {OFF_KVR}"); A(f"s_add_u32 s{sDO+1}, s{sDO}, 4096")
    H2 = 200
    loads2 = [f"buffer_load_dwordx4 {vr(H2 + ((fh_*2+dt)*2+h)*4, 4)}, v6, s[{sWS}:{sWS+3}], s{sDO+fh_} offen offset:{dt*64 + h*256} sc1" for fh_ in range(2) for dt in range(2) for h in range(2)]
    if H2AT == 0:
        for t in loads2: V(("H2", None, 0), t)
    A(f"s_lshl_b32 s{sT0}, s{sWAVE}, 11"); A(f"s_add_u32 s{sT0}, s{sT0}, {WPO}")
    A(f"v_lshl_add_u32 v9, v0, 3, s{sT0}"); A(f"v_add_u32 v8, s{sT0}, v8")
    polled("hz", loadsz, [ZL + 4 * j for j in range(4)], WaitVM([("Z", None, 0)]))
    for j in range(16): A(f"v_and_b32 v{ZL+j}, 0xffffff00, v{ZL+j}")
    for j in (0, 2): A(pk("v_pk_add_f32", ZL + j, ZL + j, ZL + 4 + j)); A(pk("v_pk_add_f32", ZL + 8 + j, ZL + 8 + j, ZL + 12 + j))
    for j in (0, 2): A(pk("v_pk_add_f32", ZL + j, ZL + j, ZL + 8 + j))
    X(zip_streams(*[xreduce(ZL + j, ZL + 4 + j, "v_add_f32") for j in range(4)]))
    A(f"v_cvt_pk_bf16_f32 v{ZL}, v{ZL}, v{ZL+1}"); A(f"v_cvt_pk_bf16_f32 v{ZL+1}, v{ZL+2}, v{ZL+3}")
    A(f"ds_write_b64 v9, {vr(ZL,2)}")
    if H2AT == 1:
        for t in loads2: V(("H2", None, 0), t)
    ZQ = 88
    for fh_ in range(2): A(f"ds_read_b128 {vr(ZQ+4*fh_,4)}, v8 offset:{fh_*64}")
    A("v_and_b32 v9, 1, v0"); A("v_cmp_eq_u32 vcc, 0, v9")
    CA = 56
    def sidesum(j):
        L = [WaitVM([("W13", None, j)])]
        o = CA if j == 0 else 64 + 8 * (j & 1)
        for d in range(4): L += [unpack_lo(o + 2*d, SD + 4*j + d), unpack_hi(o + 1 + 2*d, SD + 4*j + d)]
        if j:
            for d in range(4): L.append(pk("v_pk_add_f32", CA + 2*d, CA + 2*d, o + 2*d))
        return L
    if SIDE: X(sidesum(0)); X(sidesum(1))
    A("s_waitcnt lgkmcnt(0)")
    for j in range(8): A(f"v_cndmask_b32 v{ZQ+j}, v{vAM}, v{ZQ+j}, vcc")
    DN = 16
    for tt in range(4):
        for fh_ in range(2): A(f"{MFMA} {vr(DN + tt*8 + 4*fh_, 4)}, {vr(ZQ + 4*fh_, 4)}, {vr(EQ + tt*8 + 4*fh_, 4)}, 0")
    AB = 48
    strs = []
    for tt in range(4):
        d = DN + tt * 8
        strs.append([f"v_rcp_f32 v{d+1}, v{d+1}", f"v_rcp_f32 v{d+5}, v{d+5}", f"v_mul_f32 v{d}, v{d}, v{d+1}",
                     f"v_fmac_f32 v{d}, v{d+4}, v{d+5}", f"v_add_f32 v{d}, {fh(1e-6)}, v{d}", f"v_rcp_f32 v{d}, v{d}",
                     f"v_mul_f32 v{AB+2*tt}, v{d+1}, v{d}", f"v_mul_f32 v{AB+2*tt+1}, v{d+5}, v{d}"])
    X(zip_streams(*strs))
    if SIDE:
        for j in range(2, 16): X(sidesum(j))
        A(f"s_lshl_b32 s{sT0}, s{sWAVE}, 11"); A(f"s_add_u32 s{sT0}, s{sT0}, {CSL}"); A("v_lshlrev_b32 v8, 5, v0"); A(f"v_add_u32 v8, s{sT0}, v8")
        A(f"ds_write_b128 v8, {vr(CA,4)}"); A(f"ds_write_b128 v8, {vr(CA+4,4)} offset:16")
    if H2AT == 2:
        for t in loads2: V(("H2", None, 0), t)
    A(f"s_lshl_b32 s{sT0}, s{sTT0}, 5"); A(f"s_lshl_b32 s{sT1}, s{sHP}, 1"); A(f"s_add_u32 s{sT0}, s{sT0}, s{sT1}"); A(f"s_add_u32 s{sT0}, s{sT0}, s{sHD}")
    A(f"s_lshl_b32 s{sT0}, s{sT0}, 10"); A(f"s_add_u32 s{sT0}, s{sT0}, {OFF_O}")
    A(f"s_lshl_b32 s{sT1}, s{sHD}, 16")
    for tt in range(4): A(f"s_xor_b32 s{sDO+2+tt}, s{sT1}, {tt*32768}"); A(f"s_add_u32 s{sDO+2+tt}, s{sDO+2+tt}, s{sT0}")
    X(lane16(7))
    polled("h2", loads2, [H2 + 4 * j for j in range(8)], "s_waitcnt vmcnt(0)")
    KQ = 16
    for j in range(16): A(f"v_cvt_pk_bf16_f32 v{KQ+j}, v{H2+2*j}, v{H2+2*j+1}")
    OD = ACC
    for tt in range(4):
        for fh_ in range(2):
            for dt in range(2):
                A(f"{MFMA} {vr(OD + tt*16 + fh_*8 + dt*4, 4)}, {vr(KQ + (fh_*2+dt)*4, 4)}, {vr(EQ + tt*8 + 4*fh_, 4)}, 0")
    for tt in range(4):
        d = OD + tt * 16
        for j in range(0, 8, 2): A(pk("v_pk_mul_f32", d + j, d + j, AB + 2*tt, None, "[0,0]", "[1,0]"))
        for j in range(0, 8, 2): A(pk("v_pk_fma_f32", d + j, d + 8 + j, AB + 2*tt, d + j, "[0,1,0]", "[1,1,1]"))
        X(pack(d + 8, d, d + 4))
        A(f"buffer_store_dwordx4 {vr(d+8,4)}, v7, s[{sWS}:{sWS+3}], s{sDO+2+tt} offen")
    if SIDE:
        A("s_waitcnt lgkmcnt(0)"); A("s_barrier")
        A(f"s_lshl_b32 s{sT0}, s{sWAVE}, 6"); A(f"v_add_u32 v8, s{sT0}, v0"); A("v_lshlrev_b32 v9, 2, v8"); A(f"v_add_u32 v9, {CSL}, v9")
        for c in range(2):
            for w in range(4): A(f"ds_read_b32 v{CA + c*4 + w}, v9 offset:{w*2048 + c*1024}")
        A(f"s_lshr_b32 s{sT0}, s2, 7"); A(f"s_mul_i32 s{sT0}, s{sT0}, 3584"); A(f"s_and_b32 s{sT1}, s2, 7"); A(f"s_mul_i32 s{sT1}, s{sT1}, 448"); A(f"s_add_u32 s{sT0}, s{sT0}, s{sT1}")
        A(f"s_lshl_b32 s{sT0}, s{sT0}, 6"); A(f"s_lshr_b32 s{sT1}, s2, 3"); A(f"s_and_b32 s{sT1}, s{sT1}, 15"); A(f"s_lshl_b32 s{sT1}, s{sT1}, 2"); A(f"s_add_u32 s{sT0}, s{sT0}, s{sT1}")
        A(f"s_add_u32 s{sT0}, s{sT0}, {OFF_CS}"); A(f"s_add_u32 s{sT1}, s{sT0}, {256*64}")
        A("v_lshlrev_b32 v9, 6, v8")
        A("s_waitcnt lgkmcnt(0)")
        for c in range(2):
            A(f"v_add_f32 v{CA+c*4}, v{CA+c*4}, v{CA+1+c*4}"); A(f"v_add_f32 v{CA+2+c*4}, v{CA+2+c*4}, v{CA+3+c*4}"); A(f"v_add_f32 v{CA+c*4}, v{CA+c*4}, v{CA+2+c*4}")
        A(f"buffer_store_dword v{CA}, v9, s[{sWS}:{sWS+3}], s{sT0} offen")
        A(f"s_cmp_ge_u32 s{sWAVE}, 3"); A(f"s_cbranch_scc1 L_{name}_skip")
        A(f"buffer_store_dword v{CA+4}, v9, s[{sWS}:{sWS+3}], s{sT1} offen")
        A(f"L_{name}_skip:")
    if gen.STAMPS:
        A("s_waitcnt vmcnt(0)"); X(stamp(7)); X(stamp_store(1, 8, sWS))
    A(f"L_{name}_end:"); A("s_endpgm")
    X(OUT)
    if "dma" in abl: P.skip.add("D")
    return finish(P, name, 256 + 8, 256, WPO + 8192)
SLEEP = 1
```

```python
from gen import *
import gen
from gen_k1f import sw16, sw32, SPIN, OFF_NONCE

def gen_k4n(name="k4_kernel", abl=()):
    P = Prog(); A = P.pre.append
    def X(l): P.pre.extend(flat(l))
    def V(tag, text): P.pre.append(VM(tag, text))
    NT = 16
    UPO, SS, CSO = 14336, 32768, 28672
    sW, sX, sWS, sW2 = 4, 8, 12, 52
    sXO = 16
    sCNT, sM0, sWAVE, sRB, sCB, sT0, sT1, sT2, sTT0, sO, sNON, sT3 = 20, 21, 22, 23, 24, 25, 26, 27, 28, 29, 30, 31
    sWB, sXB = 32, 34
    sKEY, sSEL, sMK = 56, 60, 64
    vXO, vDS, vDS2, vDMA = 1, 2, 3, 4
    aX, aW, aOH, aCA, aST, aCS, aD = 0, 64, 120, 148, 152, 184, 200
    OUT = []
    def acc(h, i, tt): return 32 + ((h * 7 + i) * 4 + tt) * 4
    def wreg(p, i, t=None):
        b = aW + (p & 1) * 28 + 4 * i
        return ar(b, 4) if t is None else ar(b + 2 * t, 2)
    def xreg(slot, tt): return ar(aX + slot * 16 + tt * 4, 4)
    X(kernel_header(name))
    A("s_cmp_ge_u32 s2, 256"); A(f"s_cbranch_scc1 L_{name}_end")
    A("s_load_dwordx4 s[36:39], s[0:1], 40")
    A("s_load_dwordx2 s[40:41], s[0:1], 80")
    A(f"s_load_dwordx2 s[{sW2}:{sW2+1}], s[0:1], 56")
    A("v_lshrrev_b32 v1, 6, v0"); A("v_and_b32 v0, 63, v0")
    A(f"v_readfirstlane_b32 s{sWAVE}, v1")
    X(wg_decode(sRB, sCB, sT0, sT1, sT2, 1, 4, 8))
    A(f"s_and_b32 s{sO}, s{sRB}, 4"); A(f"s_lshl_b32 s{sO}, s{sO}, 1")
    A(f"s_and_b32 s{sT0}, s{sWAVE}, 1"); A(f"s_mul_i32 s{sT0}, s{sT0}, {32*7168}")
    A(f"s_mul_i32 s{sT1}, s{sCB}, 224"); A(f"s_add_u32 s{sT0}, s{sT0}, s{sT1}")
    A(f"s_and_b32 s{sT1}, s{sCB}, 1"); A(f"s_lshl_b32 s{sT1}, s{sT1}, 1")
    for q in range(7):
        A(f"v_add_u32 v11, {64*q}, v0")
        A(f"v_mul_u32_u24 v12, 4682, v11"); A("v_lshrrev_b32 v12, 16, v12")
        A("v_mul_u32_u24 v13, 14, v12"); A("v_sub_u32 v13, v11, v13")
        A(f"v_add_u32 v13, s{sT1}, v13"); A("v_subrev_u32 v14, 14, v13"); A("v_min_u32 v13, v13, v14")
        A(f"v_mul_u32_u24 v12, 7168, v12"); A("v_lshlrev_b32 v13, 4, v13")
        A(f"v_add3_u32 v{vDMA+q}, v12, v13, s{sT0}")
        if q & 3: A(f"v_subrev_u32 v{vDMA+q}, {(q&3)*1024}, v{vDMA+q}")
    X(lane16(vXO, 11))
    for tt in range(1, 4): A(f"s_mov_b32 s{sXO+tt-1}, {tt*32768}")
    A(f"s_lshr_b32 s{sT0}, s{sWAVE}, 1"); A(f"s_mul_i32 s{sM0}, s{sT0}, {UPO}")
    A(f"s_and_b32 s{sT0}, s{sWAVE}, 1"); A(f"s_mul_i32 s{sT0}, s{sT0}, 7168"); A(f"s_add_u32 s{sM0}, s{sM0}, s{sT0}")
    A(f"s_lshl_b32 s{sTT0}, s{sRB}, 4"); A(f"s_lshl_b32 s{sT1}, s{sWAVE}, 2"); A(f"s_add_u32 s{sTT0}, s{sTT0}, s{sT1}")
    A(f"s_lshl_b32 s{sT3}, s{sTT0}, 15"); A(f"s_add_u32 s{sT3}, s{sT3}, {OFF_H}")
    A(f"s_mov_b32 s{sW+2}, {64*7168}"); A(f"s_mov_b32 s{sW+3}, 0x00020000")
    A(f"s_mov_b32 s{sX+2}, {C3D + 4*32768}"); A(f"s_mov_b32 s{sX+3}, 0x00020000")
    A(f"s_cmp_ge_u32 s{sWAVE}, 2")
    A("s_waitcnt lgkmcnt(0)")
    A(f"s_cselect_b32 s{sWB}, s38, s36"); A(f"s_cselect_b32 s{sWB+1}, s39, s37")
    A(f"s_add_u32 s{sXB}, s40, s{sT3}"); A(f"s_addc_u32 s{sXB+1}, s41, 0")
    X(gen.stamp(0))
    def setw(t): return [f"s_xor_b32 s{sT0}, s{sO}, {t}", f"s_mul_i32 s{sT0}, s{sT0}, {64*7168}", f"s_add_u32 s{sW}, s{sWB}, s{sT0}", f"s_addc_u32 s{sW+1}, s{sWB+1}, 0"]
    def setx(t): return [f"s_xor_b32 s{sT0}, s{sO}, {t}", f"s_lshl_b32 s{sT0}, s{sT0}, 11", f"s_add_u32 s{sX}, s{sXB}, s{sT0}", f"s_addc_u32 s{sX+1}, s{sXB+1}, 0"]
    def dma(t):
        L = [setw(t)]
        for q in range(7):
            grp = []
            if q in (0, 4): grp.append(f"s_add_u32 m0, s{sM0}, {(t & 3)*SS + q*1024}")
            grp.append(VM(("D", t, q), f"buffer_load_dwordx4 v{vDMA+q}, s[{sW}:{sW+3}], 0 offen offset:{(q&3)*1024} lds"))
            L.append(grp)
        return L
    def xload(t, ks):
        slot = (t & 1) * 2 + ks
        return [VM(("X", t, ks), f"buffer_load_dwordx4 {xreg(slot, tt)}, v{vXO}, s[{sX}:{sX+3}], {'0' if tt == 0 else 's%d' % (sXO+tt-1)} offen offset:{ks*1024}") for tt in range(4)]
    X(dma(0)); X(setx(0)); X(xload(0, 0)); X(xload(0, 1))
    X(dma(1)); X(setx(1)); X(xload(1, 0))
    X(srd(sWS, 40, 41, WS_BYTES))
    A(f"s_mov_b32 s{sW2+2}, {3584*2048}"); A(f"s_mov_b32 s{sW2+3}, 0x00020000")
    A(f"s_add_u32 s42, s40, {OFF_NONCE}"); A("s_addc_u32 s43, s41, 0"); A(f"s_load_dword s{sNON}, s[42:43], 0")
    def touch13(rowoff, n=56):
        return [[f"s_bitcmp1_b32 s2, 7", f"s_cselect_b32 s44, s38, s36", f"s_cselect_b32 s45, s39, s37", f"s_mov_b32 s46, {1024*7168}", "s_mov_b32 s47, 0x00020000"],
                [f"s_and_b32 s{sT1}, s2, 63", f"s_lshl_b32 s{sT1}, s{sT1}, 2", f"s_add_u32 s{sT1}, s{sT1}, s{sWAVE}", f"s_mul_i32 s{sT1}, s{sT1}, 7168",
                 f"s_bfe_u32 s{sT2}, s2, 0x10006", f"s_mul_i32 s{sT2}, s{sT2}, {512*7168}", f"s_add_u32 s{sT1}, s{sT1}, s{sT2}", f"s_add_u32 s{sT1}, s{sT1}, {rowoff*7168}"],
                ["v_min_u32 v11, 55, v0", "v_lshlrev_b32 v11, 7, v11", VM(("T", None, 0), f"buffer_load_dword a{aD}, v11, s[44:47], s{sT1} offen")]]
    if "t13p" in abl: X(touch13(256))
    A("v_lshrrev_b32 v11, 2, v0"); A("v_mul_u32_u24 v11, 224, v11")
    A("v_and_b32 v12, 3, v0"); A(f"v_lshl_add_u32 v{vDS}, v12, 3, v11"); A(f"v_add_u32 v{vDS2}, 0x10000, v{vDS}")
    A("v_and_b32 v11, 15, v0"); A("v_mov_b32 v12, 0x3f803f80")
    for i in range(7):
        A(f"v_cmp_eq_u32 vcc, {i}, v11"); A("v_cndmask_b32 v13, 0, v12, vcc")
        for j in range(4): A(f"v_accvgpr_write_b32 a{aOH+4*i+j}, v13")
    A(f"s_and_b32 s{sT0}, s{sRB}, 3")
    for p in range(4): A(f"s_cmp_eq_u32 s{sWAVE}, {p}"); A(f"s_cselect_b32 s{sKEY+p}, s{sT0}, 99")
    for i in range(4): A(f"s_mov_b32 s{sSEL+i}, {0x07060500 | i}")
    A(f"s_mov_b32 s{sMK}, 0x0c0c0400"); A(f"s_mov_b32 s{sMK+1}, 0x04000c0c")
    def trreads(t, p):
        ks, h = p >> 1, p & 1
        return [f"ds_read_b64_tr_b16 {wreg(p, i, tt)}, v{vDS2 if t & 2 else vDS} offset:{(t & 1)*SS + h*UPO + (32*ks + 16*tt)*224 + i*32}" for i in range(7) for tt in range(2)]
    P.pre.append(WaitVM([("D", 0, None)], " lgkmcnt(0)"))
    A("s_barrier")
    X(trreads(0, 0))
    X(gen.stamp(1))
    ex = {}; prex = {}
    def EXF(t, p, g): ex.setdefault((t, p), []).extend(g)
    vNON = 11
    g = [f"v_mov_b32 v{vNON}, s{sNON}"]
    g += [f"v_accvgpr_read_b32 v{12+j}, a{aCA+j}" for j in range(4)]
    g += [f"v_perm_b32 v{12+j}, v{12+j}, v{vNON}, s{sSEL+j}" for j in range(4)]
    g += ["v_and_b32 v16, 15, v0", "v_lshlrev_b32 v16, 6, v16", "v_and_b32 v17, 48, v0", "v_add_u32 v16, v16, v17"]
    g += [[f"s_lshl_b32 s{sT1}, s{sCB}, 3", f"s_add_u32 s{sT1}, s{sT1}, s{sRB}", f"s_lshl_b32 s{sT1}, s{sT1}, 2", f"s_add_u32 s{sT1}, s{sT1}, s{sWAVE}",
           f"s_lshl_b32 s{sT1}, s{sT1}, 9", f"s_add_u32 s{sT1}, s{sT1}, {OFF_CS}"]]
    g += [["s_mov_b32 exec_lo, 0x00ff00ff", "s_mov_b32 exec_hi, 0x00ff00ff",
           VM(("CP", None, 0), f"buffer_store_dwordx4 v[12:15], v16, s[{sWS}:{sWS+3}], s{sT1} offen sc1"), "s_mov_b64 exec, -1"]]
    EXF(8, 1, g)
    g = [[f"s_lshl_b32 s{sT1}, s{sTT0}, 11", f"s_add_u32 s{sT1}, s{sT1}, {OFF_ST}", f"s_add_u32 s{sT2}, s{sT1}, 4096", "v_lshlrev_b32 v12, 4, v0"]]
    for p in range(2):
        for i in range(4): g.append(VM(("S", None, 0), f"buffer_load_dwordx4 {ar(aST + p*16 + i*4, 4)}, v12, s[{sWS}:{sWS+3}], s{sT1 if p == 0 else sT2} offen offset:{i*1024}"))
    EXF(11, 0, g)
    vST = 20
    for p in range(2):
        b = 12
        g = [f"v_accvgpr_read_b32 v{b+j}, a{aST + p*16 + j}" for j in range(4)]
        for i in range(1, 4):
            g += [f"v_accvgpr_read_b32 v{b+4+j}, a{aST + p*16 + 4*i + j}" for j in range(4)]
            g += [f"v_add_f32 v{b+j}, v{b+j}, v{b+4+j}" for j in range(4)]
        g += [sw16(b, b + 1), sw16(b + 2, b + 3), f"v_add_f32 v{b+1}, v{b}, v{b+1}", f"v_add_f32 v{b+3}, v{b+2}, v{b+3}",
              sw32(b + 1, b + 3), f"v_add_f32 v{b+1}, v{b+1}, v{b+3}", f"v_mov_b32 v{b+3}, v{b+1}", sw32(b + 1, b + 3),
              f"v_mov_b32 v{b}, v{b+1}", f"v_mov_b32 v{b+2}, v{b+3}", sw16(b, b + 1), sw16(b + 2, b + 3)]
        fin = []
        for t in range(2):
            tt = 2 * p + t
            nm, c1, ve = vST + tt * 3, vST + tt * 3 + 1, vST + tt * 3 + 2
            fin.append([f"v_mul_f32 v{nm}, {fh(-1.0/1024)}, v{b+2*t}", f"v_mul_f32 v{ve}, {fh(1.0/1024)}, v{b+2*t+1}", f"v_fma_f32 v{ve}, -v{nm}, v{nm}, v{ve}",
                        f"v_max_f32 v{ve}, 0, v{ve}", f"v_add_f32 v{ve}, {fh(1e-5)}, v{ve}", f"v_rsq_f32 v{c1}, v{ve}", f"v_mul_f32 v{c1}, {fh(-LOG2E)}, v{c1}"])
        g += zip_streams(*fin)
        h2 = len(g) // 2
        EXF(13, 2 * p, g[:h2]); EXF(13, 2 * p + 1, g[h2:])
    prex[(13, 0)] = [WaitVM([("S", None, 0)])]
    CQ = 4
    cloads = [f"buffer_load_dwordx4 {vr(CQ+4*j,4)}, v{vDS}, s[{sWS}:{sWS+3}], s{sKEY+j} offen sc1" for j in range(4)]
    g = [["v_lshrrev_b32 v12, 4, v0", "v_lshlrev_b32 v12, 10, v12", "v_and_b32 v13, 15, v0", f"v_lshl_add_u32 v{vDS}, v13, 4, v12"],
         [f"s_lshl_b32 s{sT1}, s{sCB}, 14", f"s_lshl_b32 s{sT2}, s{sWAVE}, 8", f"s_add_u32 s{sT1}, s{sT1}, s{sT2}", f"s_add_u32 s{sKEY}, s{sT1}, {OFF_CS}"],
         [f"s_add_u32 s{sKEY+j}, s{sKEY}, {j*4096}" for j in range(1, 4)]]
    g += [VM(("CL", None, 0), t) for t in cloads]
    EXF(14, 1, g)
    if "t2" in abl:
        EXF(14, 2, [[f"s_lshl_b32 s{sT1}, s2, 2", f"s_add_u32 s{sT1}, s{sT1}, s{sWAVE}", f"s_mul_i32 s{sT1}, s{sT1}, {56*128}",
                     f"v_min_u32 v{vXO}, 55, v0", f"v_lshlrev_b32 v{vXO}, 7, v{vXO}"],
                    VM(("T", None, 1), f"buffer_load_dword a{aD}, v{vXO}, s[{sW2}:{sW2+3}], s{sT1} offen")] + lane16(vXO, None))
    for key in abl:
        if key.startswith("t13a"): EXF(int(key[4:]), 0, touch13(256))
    def tagcheck():
        L = []
        for j in range(4):
            q = CQ + 4 * j
            L += [f"v_perm_b32 v{vXO}, v{q+1}, v{q}, s{sMK}", f"v_perm_b32 v{vXO}, v{q+2}, v{vXO}, s{sMK+1}", f"v_perm_b32 v{vXO}, v{q+3}, v{vXO}, s{sMK+2}",
                  f"v_cmp_ne_u32 {'vcc' if j == 0 else 's[48:49]'}, s{sNON}, v{vXO}"]
            if j: L.append("s_or_b64 vcc, vcc, s[48:49]")
        return L
    chk = tagcheck()
    prex[(15, 1)] = [WaitVM([("CL", None, 0)])]
    g = [[f"s_mov_b32 s{sMK+1}, 0x0c040100", f"s_mov_b32 s{sMK+2}, 0x04020100"]] + chk + [[f"s_cbranch_vccnz L_{name}_cr", f"L_{name}_cok:"]]
    OUT.extend([f"L_{name}_cr:", f"s_mov_b32 s{sCNT}, 0", f"L_{name}_cr2:", "s_sleep 1"] + cloads + ["s_waitcnt vmcnt(0)"] + chk +
               [f"s_add_u32 s{sCNT}, s{sCNT}, 1", f"s_cmp_ge_u32 s{sCNT}, {SPIN}", f"s_cbranch_scc1 L_{name}_cok", f"s_cbranch_vccnz L_{name}_cr2", f"s_branch L_{name}_cok"])
    g += [f"v_and_b32 v{CQ+j}, 0xffffff00, v{CQ+j}" for j in range(16)]
    EXF(15, 1, g)
    g = [f"v_add_f32 v{CQ+j}, v{CQ+j}, v{CQ+4+j}" for j in range(4)] + [f"v_add_f32 v{CQ+8+j}, v{CQ+8+j}, v{CQ+12+j}" for j in range(4)]
    g += [f"v_add_f32 v{CQ+j}, v{CQ+j}, v{CQ+8+j}" for j in range(4)]
    g += [sw16(CQ, CQ + 1), sw16(CQ + 2, CQ + 3), f"v_add_f32 v{CQ+1}, v{CQ}, v{CQ+1}", f"v_add_f32 v{CQ+3}, v{CQ+2}, v{CQ+3}",
          sw32(CQ + 1, CQ + 3), f"v_add_f32 v{CQ+1}, v{CQ+1}, v{CQ+3}"]
    g += [f"v_and_b32 v{CQ+8}, 15, v0", f"v_lshrrev_b32 v{CQ+9}, 4, v0", f"v_lshlrev_b32 v{CQ+9}, 2, v{CQ+9}", f"v_lshl_add_u32 v{CQ+8}, v{CQ+8}, 4, v{CQ+9}",
          [f"s_lshl_b32 s{sT1}, s{sWAVE}, 8", f"v_add_u32 v{CQ+8}, s{sT1}, v{CQ+8}"], f"ds_write_b32 v{CQ+8}, v{CQ+1} offset:{CSO}"]
    EXF(15, 2, g)
    sOb = 44
    g = lane16(vXO, None) + ["v_and_b32 v2, 48, v0"]
    g += [[f"s_mul_i32 s{sT0}, s{sCB}, 7", f"s_and_b32 s{sT1}, s{sCB}, 1", f"s_add_u32 s{sT0}, s{sT0}, s{sT1}", f"s_lshr_b32 s{sT0}, s{sT0}, 1"],
          [f"s_mul_i32 s{sT2}, s{sTT0}, 112", f"s_add_u32 s{sT0}, s{sT0}, s{sT2}", f"s_lshl_b32 s{sT0}, s{sT0}, 10", f"s_add_u32 s{sT0}, s{sT0}, {OFF_HH}"],
          [f"s_add_u32 s{sOb+tt}, s{sT0}, {tt*112*1024}" for tt in range(4)],
          [f"s_mov_b32 s{sT2}, {(-1024 + 8) & 0xffffffff}", f"s_cmp_eq_u32 s{sT1}, 0", f"s_cselect_b32 s{sT2}, {3*1024}, s{sT2}"],
          [f"s_add_u32 s{sOb+4+tt}, s{sOb+tt}, s{sT2}" for tt in range(4)]]
    def csread(grp, buf):
        L = []
        for k, i in enumerate(grp):
            L.append(f"ds_read_b128 {vr(buf + 8*k, 4)}, v2 offset:{CSO + i*64}")
            L.append(f"ds_read_b128 {vr(buf + 8*k + 4, 4)}, v2 offset:{CSO + 512 + i*64}")
        return L
    groups = [(0, 1), (2, 3), (4, 5), (6,)]
    g += csread(groups[0], 4)
    EXF(15, 3, g)
    for t in range(NT):
        for p in range(4):
            ks, h = p >> 1, p & 1
            slot = (t & 1) * 2 + ks
            first = t == 0 and ks == 0
            mf = [f"{MFMA} {vr(acc(h,i,tt),4)}, {wreg(p,i)}, {xreg(slot,tt)}, {'0' if first else vr(acc(h,i,tt),4)}" for i in range(7) for tt in (range(4) if i % 2 == 0 else range(3, -1, -1))]
            if p == 3: pre = [WaitVM([("D", t + 1, None)], " lgkmcnt(0)") if t + 1 < NT else "s_waitcnt lgkmcnt(0)", "s_barrier"]
            elif h == 0: pre = [WaitVM([("X", t, ks)], " lgkmcnt(0)")]
            else: pre = ["s_waitcnt lgkmcnt(0)"]
            pre = pre + prex.get((t, p), [])
            rd = trreads(t, p + 1) if p < 3 else (trreads(t + 1, 0) if t + 1 < NT else [])
            dl = []
            if p == 0 and t + 1 < NT: dl = xload(t + 1, 1)
            elif p == 2 and t + 2 < NT: dl = [setx(t + 2)] + xload(t + 2, 0)
            elif p == 1 and t + 2 < NT: dl = dma(t + 2)[0:5]
            elif p == 3 and t + 2 < NT: dl = dma(t + 2)[5:8]
            if t < 8:
                lb = f"L_{name}_st{t}{p}"
                dl = dl + [[f"s_cmp_eq_u32 s{sKEY+p}, {t >> 1}", f"s_cbranch_scc1 {lb}", f"{lb}r:"]]
                OUT.append(f"{lb}:")
                for i in range(7):
                    OUT.append(f"{MFMA} {ar(aCA,4)}, {wreg(p,i)}, {ar(aOH+4*i,4)}, {'0' if (t & 1 == 0 and i == 0) else ar(aCA,4)}")
                OUT.append(f"s_branch {lb}r")
            body = pack_gaps(mf, rd, dl, ex.get((t, p), []))
            X(pre); X(body)
    X(gen.stamp(2))
    E = A; EX = X
    E("s_waitcnt lgkmcnt(0)")
    for gi, grp in enumerate(groups):
        cbuf = 4 if gi == 0 else acc(0, 0, 0) + 16 * ((gi - 1) & 1)
        for tt in range(4):
            nm, c1, ve = vST + tt * 3, vST + tt * 3 + 1, vST + tt * 3 + 2
            (pn, sn), (pc, sc), (pv, sv) = bc(nm), bc(c1), bc(ve)
            G = [acc(0, i, tt) for i in grp]; U = [acc(1, i, tt) for i in grp]
            for k in range(len(grp)):
                for j in (0, 2):
                    E(f"v_pk_fma_f32 {vr(G[k]+j,2)}, {vr(cbuf+8*k+j,2)}, {pn}, {vr(G[k]+j,2)} op_sel:[0,{sn},0] op_sel_hi:[1,{sn},1]")
                for j in (0, 2):
                    E(f"v_pk_fma_f32 {vr(U[k]+j,2)}, {vr(cbuf+8*k+4+j,2)}, {pn}, {vr(U[k]+j,2)} op_sel:[0,{sn},0] op_sel_hi:[1,{sn},1]")
            for k in range(len(grp)):
                for j in (0, 2): E(f"v_pk_mul_f32 {vr(U[k]+j,2)}, {vr(U[k]+j,2)}, {vr(G[k]+j,2)}")
            for k in range(len(grp)):
                for j in (0, 2): E(f"v_pk_mul_f32 {vr(G[k]+j,2)}, {vr(G[k]+j,2)}, {pc} op_sel:[0,{sc}] op_sel_hi:[1,{sc}]")
            for k in range(len(grp)):
                for j in range(4): E(f"v_exp_f32 v{G[k]+j}, v{G[k]+j}")
            for k in range(len(grp)):
                for j in (0, 2): E(f"v_pk_fma_f32 {vr(G[k]+j,2)}, {vr(G[k]+j,2)}, {pv}, {pv} op_sel:[0,{sv},{sv}] op_sel_hi:[1,{sv},{sv}]")
            for k in range(len(grp)):
                for j in range(4): E(f"v_rcp_f32 v{G[k]+j}, v{G[k]+j}")
            for k in range(len(grp)):
                for j in (0, 2): E(f"v_pk_mul_f32 {vr(G[k]+j,2)}, {vr(G[k]+j,2)}, {vr(U[k]+j,2)}")
            for k in range(len(grp)):
                for j in (0, 1): E(f"v_cvt_pk_bf16_f32 v{U[0]+2*k+j}, v{G[k]+2*j}, v{G[k]+2*j+1}")
            if len(grp) == 2:
                E(f"buffer_store_dwordx4 {vr(U[0],4)}, v{vXO}, s[{sWS}:{sWS+3}], s{sOb+tt} offen offset:{gi*1024}")
            else:
                E(f"buffer_store_dwordx2 {vr(U[0],2)}, v{vXO}, s[{sWS}:{sWS+3}], s{sOb+4+tt} offen")
            if tt == 3 and gi == 0:
                EX(csread(groups[1], acc(0, 0, 0))); EX(csread(groups[2], acc(0, 0, 0) + 16)); E("s_waitcnt lgkmcnt(4)")
            if tt == 3 and gi == 1:
                EX(csread(groups[3], acc(0, 0, 0))); E("s_waitcnt lgkmcnt(2)")
            if tt == 3 and gi == 2:
                E("s_waitcnt lgkmcnt(0)")
    if gen.STAMPS:
        EX(gen.stamp(3))
        E("s_waitcnt vmcnt(0)")
        EX(gen.stamp(4))
        EX(stamp_store(4, 5, sWS))
    E(f"L_{name}_end:"); E("s_endpgm")
    X(OUT)
    return finish(P, name, 256 + 204, 256, 4 * SS)
```

```python
import re
TRANS = ("v_exp_f32", "v_log_f32", "v_rcp_f32", "v_rsq_f32", "v_sqrt_f32", "v_sin_f32", "v_cos_f32")
def regs(op):
    op = op.strip()
    op = op.lstrip("-")
    if op.startswith("abs("): op = op[4:-1]
    op = op.strip("|")
    m = re.fullmatch(r"([vas])(\d+)", op)
    if m: return [(m.group(1), int(m.group(2)))]
    m = re.fullmatch(r"([vas])\[(\d+):(\d+)\]", op)
    if m: return [(m.group(1), i) for i in range(int(m.group(2)), int(m.group(3)) + 1)]
    if op == "vcc": return [("s", "vcc")]
    if op == "exec": return [("s", "exec")]
    if op == "m0": return [("s", "m0")]
    return []
class I:
    def __init__(self, text):
        self.text = text
        t = text.split(";")[0].strip()
        self.label = t.endswith(":") or t.startswith(".") or t == ""
        self.op = t.split()[0] if t and not self.label else ""
        rest = t[len(self.op):].strip() if self.op else ""
        ops = []; depth = 0; cur = ""
        for ch in rest:
            if ch == "[": depth += 1
            if ch == "]": depth -= 1
            if ch == "," and depth == 0: ops.append(cur); cur = ""
            else: cur += ch
        if cur.strip(): ops.append(cur)
        if ops:
            last = ops[-1].strip().split()
            self.mods = " ".join(last[1:]); ops[-1] = last[0] if last else ""
        else: self.mods = ""
        self.ops = [o.strip() for o in ops]
        o = self.op
        self.mfma = o.startswith("v_mfma")
        self.valu = o.startswith("v_") and not self.mfma
        self.trans = o.replace("_e32", "").replace("_e64", "") in TRANS
        self.dot = o.startswith("v_dot")
        self.dpp = "_dpp" in o or "row_" in self.mods or "quad_perm" in self.mods
        self.perml = o.startswith("v_permlane")
        self.vmem = o.startswith("buffer_") or o.startswith("global_")
        self.ds = o.startswith("ds_")
        self.salu = o.startswith("s_") and not o.startswith("s_load") and not o.startswith("s_mem")
        self.w = []; self.r = []
        R = [regs(x) for x in self.ops]
        if self.mfma:
            self.w = R[0]; self.ra = R[1] + R[2]; self.rc = R[3]; self.r = self.ra + self.rc
            self.passes = 4 if "16x16x32" in o else 8
        elif self.valu:
            if o.startswith("v_cmp"): self.w = R[0]; self.r = sum(R[1:], [])
            elif self.perml: self.w = R[0] + R[1]; self.r = R[0] + R[1]
            elif o.startswith("v_readfirstlane") or o.startswith("v_readlane"): self.w = R[0]; self.r = sum(R[1:], [])
            elif "_co_" in o: self.w = R[0] + R[1]; self.r = sum(R[2:], [])
            else:
                self.w = R[0]; self.r = sum(R[1:], [])
                if o.startswith("v_fmac") or o.startswith("v_dot2c") or self.dpp: self.r += R[0]
        elif self.vmem:
            if "lds" in self.mods.split() or "load_lds" in o:
                self.r = sum(R, []) + [("s", "m0")]; self.ldsdma = True
            elif "load" in o: self.w = R[0]; self.r = sum(R[1:], [])
            elif "atomic" in o:
                self.r = sum(R, [])
                if "sc0" in self.mods.split(): self.w = R[0]
            else: self.r = sum(R, [])
            self.store_data = []
            if "store" in o and ("x3" in o or "x4" in o):
                self.store_data = R[0] if o.startswith("buffer") else R[1]
        elif self.ds:
            if "read" in o or "bpermute" in o or "swizzle" in o: self.w = R[0]; self.r = sum(R[1:], [])
            else: self.r = sum(R, [])
        elif self.salu:
            if o.startswith("s_cmp") or o.startswith("s_cbranch") or o in ("s_barrier", "s_waitcnt", "s_nop", "s_endpgm", "s_branch", "s_sleep", "s_setprio"):
                self.r = sum(R, [])
            else:
                self.w = R[0] if R else []; self.r = sum(R[1:], [])
                if "saveexec" in o: self.w = self.w + [("s", "exec")]
    def states(self):
        if self.label: return 0
        if self.op == "s_nop": return int(self.ops[0], 0) + 1
        return 1

def need(p, c):
    n = 0
    pw = set(p.w)
    cr = set(c.r); cw = set(c.w)
    vw = {x for x in pw if x[0] in "va"}
    sw = {x for x in pw if x[0] == "s"}
    if p.valu:
        if c.mfma and vw & cr: n = max(n, 3 if p.dot else 2)
        if c.perml and vw & cr: n = max(n, 2)
        if c.dpp and c.valu and vw & set(regs(c.ops[1])): n = max(n, 2)
        if (c.op.startswith("v_readfirstlane") or c.op.startswith("v_readlane")) and vw & cr: n = max(n, 1)
        if p.trans and c.valu and not c.trans and vw & cr: n = max(n, 1)
        if p.trans and (c.vmem or c.ds) and vw & cr: n = max(n, 1)
        if p.dot and (c.valu or c.vmem or c.ds) and (vw & (cr | cw)):
            if not (c.op == p.op and not (vw & set(sum([regs(x) for x in c.ops[1:]], [])))): n = max(n, 3)
        if sw and c.valu and sw & cr:
            n = max(n, 2)
        if sw and c.vmem and sw & cr: n = max(n, 5)
        if ("s", "exec") in pw and c.mfma: n = max(n, 4)
    if p.mfma:
        big = 8 if p.passes == 4 else 12
        if c.mfma:
            if vw & set(c.ra): n = max(n, big)
            if vw & set(c.rc) and set(c.rc) != vw: n = max(n, big - 2)
            if vw & set(c.rc) and set(c.rc) == vw and c.passes != p.passes: n = max(n, big - 2)
            if vw & cw and not (vw & set(c.rc)): n = max(n, big)
        elif (c.valu or c.vmem or c.ds) and vw & (cr | cw): n = max(n, big)
        if c.valu and set(p.rc) & cw: n = max(n, 3 if p.passes == 4 else 7)
    if p.vmem and getattr(p, "store_data", None):
        if set(p.store_data) & cw: n = max(n, 2 if c.valu or c.mfma else 1)
    if p.salu and ("s", "m0") in pw and c.vmem and getattr(c, "ldsdma", False): n = max(n, 1)
    return n

def fix(lines, window=16):
    out = []
    for text in lines:
        for sub in text.split("\n"):
            c = I(sub)
            if not c.label:
                dist = 0; req = 0
                for p in reversed(out):
                    if dist >= window: break
                    k = need(p, c) - dist
                    req = max(req, k)
                    dist += p.states()
                while req > 0:
                    k = min(req, 16)
                    out.append(I(f"s_nop {k-1}")); req -= k
            out.append(c)
    return [i.text for i in out]

def check_loop(body_lines, window=16):
    B = [I(s) for t in body_lines for s in t.split("\n")]
    seq = B + B
    bad = []
    n = len(B)
    for ci in range(n, min(2 * n, n + window)):
        c = seq[ci]
        if c.label: continue
        dist = 0
        for pi in range(ci - 1, -1, -1):
            if dist >= window: break
            p = seq[pi]
            if need(p, c) - dist > 0: bad.append((p.text, c.text))
            dist += p.states()
    return bad
```

```python
import sys
import gen
from gen_k1f import gen_k1f
from gen_k4n import gen_k4n
DEF = ("pt", "c3", "t13", "t13p", "t2")
def kernels(abl=DEF):
    return [gen_k1f(abl=abl), gen.gen_n64("k3"), gen_k4n(abl=abl), gen.gen_n64("k5")]
if __name__ == "__main__":
    REF = "sequential_preLN__linear_kernel_hedgehog__glu_gated_swiglu__prompt.s"
    HEADER = open(REF + ".ref").read().split("; Override launch")[0]
    out = sys.argv[1] if len(sys.argv) > 1 else REF
    abl = tuple(sys.argv[2].split(",")) if len(sys.argv) > 2 else DEF
    open(out, "w").write(HEADER + gen.build(kernels(abl)))
```

```python
class VM:
    def __init__(self, tag, text): self.tag = tag; self.text = text
class WaitVM:
    def __init__(self, tags, extra=""): self.tags = tags; self.n = None; self.extra = extra

class Prog:
    def __init__(self):
        self.pre = []; self.body = []; self.post = []
        self.niter = 0; self.unr = 0; self.skip = set()
    def resolve(self):
        seq = []
        for it in self.pre: seq.append((it, 0))
        for j in range(self.niter):
            for it in self.body: seq.append((it, j * self.unr))
        for it in self.post: seq.append((it, self.niter * self.unr))
        issued = []
        for it, base in seq:
            if isinstance(it, VM):
                k, t, i = it.tag
                if k in self.skip: continue
                issued.append((k, None if t is None else t + base, i))
            elif isinstance(it, WaitVM):
                last = -1
                for (k, t, i) in it.tags:
                    ta = None if t is None else t + base
                    found = False
                    for pos in range(len(issued) - 1, -1, -1):
                        kk, tt, ii = issued[pos]
                        if kk == k and tt == ta and (i is None or ii == i):
                            last = max(last, pos); found = True
                            break
                    assert found or k in self.skip, f"wait for unissued op {(k, ta, i)}"
                n = len(issued) - 1 - last
                it.n = n if it.n is None else min(it.n, n)
    def text(self, items):
        out = []
        for it in items:
            if isinstance(it, VM):
                if it.tag[0] not in self.skip: out.append(it.text)
            elif isinstance(it, WaitVM):
                n = min(it.n, 63)
                out.append(f"s_waitcnt vmcnt({n}){it.extra}")
            else: out.append(it)
        return out

def interleave(spine, fillers, first=0, last=None):
    n = len(spine)
    if last is None: last = n - 1
    slots = last - first + 1
    out = []
    k = 0
    nf = len(fillers)
    for i, s in enumerate(spine):
        out.append(s)
        if first <= i <= last:
            tgt = (nf * (i - first + 1) + slots - 1) // slots
            while k < tgt:
                f = fillers[k]
                if isinstance(f, list): out.extend(f)
                else: out.append(f)
                k += 1
    assert k == nf
    return out

def merge_fillers(*lists):
    total = sum(len(l) for l in lists)
    res = []
    idx = [0] * len(lists)
    for step in range(total):
        best = None; bf = None
        for j, l in enumerate(lists):
            if idx[j] < len(l):
                fr = (idx[j] + 0.5) / len(l)
                if bf is None or fr < bf: bf = fr; best = j
        res.append(lists[best][idx[best]]); idx[best] += 1
    return res

def vr(b, n=1, k="v"):
    return f"{k}{b}" if n == 1 else f"{k}[{b}:{b+n-1}]"
def ar(b, n=1): return vr(b, n, "a")
def sr(b, n=1): return vr(b, n, "s")

def kernel_header(name):
    return [f".globl {name}", ".p2align 8", f".type {name},@function", f"{name}:"]

def kernel_desc(name, nvgpr, accum_offset, nsgpr=100):
    return [f'.amdhsa_kernel {name}',
            f"  .amdhsa_next_free_vgpr {nvgpr}",
            f"  .amdhsa_next_free_sgpr {nsgpr}",
            f"  .amdhsa_accum_offset {accum_offset}",
            "  .amdhsa_group_segment_fixed_size 0",
            "  .amdhsa_kernarg_size 88",
            "  .amdhsa_user_sgpr_count 2",
            "  .amdhsa_user_sgpr_kernarg_segment_ptr 1",
            "  .amdhsa_system_sgpr_workgroup_id_x 1",
            "  .amdhsa_float_denorm_mode_32 3",
            "  .amdhsa_float_denorm_mode_16_64 3",
            ".end_amdhsa_kernel"]


def icost(x):
    if isinstance(x, list): return sum(icost(y) for y in x)
    if isinstance(x, VM): return 1.0
    if isinstance(x, WaitVM): return 0.5
    t = x.strip()
    if t.endswith(":"): return 0
    if t.startswith("s_"): return 0.5
    if t.startswith(("v_exp", "v_rcp", "v_rsq", "v_permlane")): return 2.0
    return 1.0

def pack_gaps(spine, rd, dl, ex, cap=2.0, last=None, ex_first=0):
    n = len(spine)
    if last is None: last = n - 6
    gaps = [[] for _ in range(n)]; used = [0.0] * n
    base = merge_fillers(rd, dl)
    nf = len(base); k = 0
    for i in range(last + 1):
        tgt = (nf * (i + 1) + last) // (last + 1)
        while k < tgt:
            gaps[i].append(base[k]); used[i] += icost(base[k]); k += 1
    total_ex = sum(icost(x) for x in ex)
    free = []
    carry = 0.0
    for g in range(n):
        f = cap - used[g] - carry
        if f < 0: carry = -f; f = 0
        else: carry = 0
        free.append(f if g >= ex_first else 0.0)
    tf = sum(free)
    extra = max(0.0, total_ex - tf) / max(n - ex_first, 1)
    scale = min(1.0, total_ex / tf) if tf > 0 else 1.0
    k = 0; budget = 0.0
    for g in range(n):
        if g >= ex_first: budget += free[g] * scale + extra
        while k < len(ex) and (budget >= icost(ex[k]) - 1e-6 or g == n - 1):
            gaps[g].append(ex[k]); budget -= icost(ex[k]); k += 1
    out = []
    for g in range(n):
        out.append(spine[g]); out.extend(gaps[g])
    return out
```

```python
import sys, struct
from asmlib import *
import hazard

OFF_O, OFF_H, OFF_HH, OFF_ST, OFF_CS, OFF_PQ, OFF_KV, OFF_XN, OFF_DBG = (30<<20, 4<<20, 8<<20, 24<<20, (24<<20) + (512<<10), 25<<20, 34<<20, 40<<20, 64<<20)
WS_BYTES = 268435456
LOG2E = 1.4426950408889634
def f2u(x): return struct.unpack("<I", struct.pack("<f", x))[0]
def fh(x): return hex(f2u(x))
MFMA = "v_mfma_f32_16x16x32_bf16"

STAMPS = False
NSTAMPS = {}
PREFETCH = True

def srd(base, ptr_lo, ptr_hi, nrec):
    return [f"s_mov_b32 s{base}, s{ptr_lo}", f"s_mov_b32 s{base+1}, s{ptr_hi}",
            f"s_mov_b32 s{base+2}, {nrec}", f"s_mov_b32 s{base+3}, 0x00020000"]

def srd_add(base, sreg_or_imm):
    return [f"s_add_u32 s{base}, s{base}, {sreg_or_imm}", f"s_addc_u32 s{base+1}, s{base+1}, 0"]

def srd_advance(base, step):
    return [f"s_add_u32 s{base}, s{base}, {step}", f"s_addc_u32 s{base+1}, s{base+1}, 0",
            f"s_sub_u32 s{base+2}, s{base+2}, {step}", f"s_cselect_b32 s{base+2}, 0, s{base+2}"]

def stamp(idx):
    if not STAMPS: return []
    return ["s_memtime s[98:99]", "s_memrealtime s[96:97]", "s_waitcnt lgkmcnt(0)", f"s_mov_b32 s{80+idx}, s98", f"s_mov_b32 s{72+idx}, s96"]

def stamp_store(kid, nst, srd_ws):
    if not STAMPS: return []
    NSTAMPS[kid] = nst
    L = [f"s_lshl_b32 s98, s2, 6", f"s_add_u32 s98, s98, {OFF_DBG + kid*65536}",
         "v_mov_b32 v1, 0"]
    L += ["s_mov_b64 exec, 1"]
    for i in range(nst):
        L += [f"v_mov_b32 v2, s{80+i}", f"buffer_store_dword v2, v1, s[{srd_ws}:{srd_ws+3}], s98 offen offset:{4*i}"]
        L += [f"v_mov_b32 v3, s{72+i}", f"buffer_store_dword v3, v1, s[{srd_ws}:{srd_ws+3}], s98 offen offset:{32+4*i}"]
    return L

OFF_EX = 0
C3D = 96 << 20
def lane16(dst, tmp=None):
    return [f"v_lshlrev_b32 v{dst}, 4, v0",
            ["s_mov_b32 exec_lo, 0xff000000", "s_mov_b32 exec_hi, 0", f"v_add_u32 v{dst}, {C3D + 128}, v{dst}", "s_mov_b64 exec, -1"]]

CODEPF = True
def code_prefetch(name, endlabel, n, vt, dst, sp=92):
    if not CODEPF: return []
    return [f"s_getpc_b64 s[{sp}:{sp+1}]", f"L_{name}_pc:",
            f"s_and_b32 s{sp}, s{sp}, 0xffffff80",
            f"s_lshr_b32 s{sp+2}, s2, 3", f"s_lshl_b32 s{sp+2}, s{sp+2}, 2",
            f"v_lshrrev_b32 v{vt}, 6, v0", f"v_add_u32 v{vt}, s{sp+2}, v{vt}", f"v_mul_u32_u24 v{vt}, {n}, v{vt}",
            f"v_and_b32 v{vt+1}, 63, v0", f"v_min_u32 v{vt+1}, {n-1}, v{vt+1}", f"v_add_lshl_u32 v{vt}, v{vt}, v{vt+1}, 7",
            f"v_min_u32 v{vt}, {endlabel}-L_{name}_pc-128, v{vt}",
            f"global_load_dwordx2 {dst}, v{vt}, s[{sp}:{sp+1}] offset:60"]

def code_refetch(name, tag, endlabel, n, vt, dst, sp, sWAVE):
    if not CODEPF: return []
    return [[f"s_getpc_b64 s[{sp}:{sp+1}]", f"L_{name}_{tag}:", f"s_and_b32 s{sp}, s{sp}, 0xffffff80"],
            [f"s_lshr_b32 s{sp+2}, s2, 3", f"s_lshl_b32 s{sp+2}, s{sp+2}, 2", f"s_add_u32 s{sp+2}, s{sp+2}, s{sWAVE}", f"s_mul_i32 s{sp+2}, s{sp+2}, {n}"],
            f"v_min_u32 v{vt}, {n-1}, v0", f"v_add_lshl_u32 v{vt}, v{vt}, s{sp+2}, 7",
            f"v_min_u32 v{vt}, {endlabel}-L_{name}_{tag}-128, v{vt}",
            VM(("T", None, 7), f"global_load_dwordx2 {dst}, v{vt}, s[{sp}:{sp+1}] offset:60")]

def flat(l):
    o = []
    for e in l:
        if isinstance(e, list): o.extend(flat(e))
        else: o.append(e)
    return o

def bc(reg):
    return (f"v[{reg & ~1}:{(reg & ~1) + 1}]", reg & 1)

def xreduce(reg, tmp, op):
    return [f"v_mov_b32 v{tmp}, v{reg}", f"v_permlane16_swap_b32 v{tmp}, v{reg}", f"{op} v{reg}, v{reg}, v{tmp}",
            f"v_mov_b32 v{tmp}, v{reg}", f"v_permlane32_swap_b32 v{tmp}, v{reg}", f"{op} v{reg}, v{reg}, v{tmp}"]

def zip_streams(*streams):
    out = []
    n = max(len(x) for x in streams)
    for i in range(n):
        for x in streams:
            if i < len(x): out.append(x[i])
    return out

def finish(P, name, nv, accum, lds, block=256, grid=256):
    P.resolve()
    pre, body, post = P.text(P.pre), P.text(P.body), P.text(P.post)
    MARK1, MARK2 = "; --body--", "; --post--"
    allt = hazard.fix(pre + [MARK1] + body + [MARK2] + post)
    i1, i2 = allt.index(MARK1), allt.index(MARK2)
    bad = hazard.check_loop(allt[i1 + 1:i2])
    assert not bad, bad
    desc = kernel_desc(name, nv, accum)
    launch = f"; @launch kernel={name} grid=({grid},1,1) block=({block},1,1) lds={lds}"
    return launch, allt, desc

def wg_decode(sRB, sCB, sT0, sT1, sT2, rbits_x, rb_per, cb_per):
    import math
    lr = int(math.log2(rb_per)); lc = int(math.log2(cb_per))
    return [f"s_and_b32 s{sT0}, s2, 7", f"s_lshr_b32 s{sT1}, s2, 3",
            f"s_and_b32 s{sRB}, s{sT0}, {(1<<rbits_x)-1}", f"s_lshl_b32 s{sRB}, s{sRB}, {lr}",
            f"s_and_b32 s{sT2}, s{sT1}, {rb_per-1}", f"s_add_u32 s{sRB}, s{sRB}, s{sT2}",
            f"s_lshr_b32 s{sCB}, s{sT0}, {rbits_x}", f"s_lshl_b32 s{sCB}, s{sCB}, {lc}",
            f"s_lshr_b32 s{sT2}, s{sT1}, {lr}", f"s_add_u32 s{sCB}, s{sCB}, s{sT2}"]

def gen_k4(name="k4_kernel", abl=()):
    P = Prog()
    A = P.pre.append
    def X(l): P.pre.extend(flat(l))
    NT, UNR = 16, 2
    UPO = 14336
    SS = 32768
    CSO = 28672
    sW, sX, sWS = 4, 8, 12
    sXO = 16
    sCNT, sM0, sWAVE, sRB, sCB, sT0, sT1, sT2, sTT0 = 20, 21, 22, 23, 24, 25, 26, 27, 28
    vXO, vDS, vDMA = 1, 2, 4
    aX, aW, aST, aCS = 0, 64, 120, 152
    def acc(h, i, tt): return 32 + ((h * 7 + i) * 4 + tt) * 4
    def wreg(p, i, t=None):
        b = aW + (p & 1) * 28 + 4 * i
        return ar(b, 4) if t is None else ar(b + 2 * t, 2)
    def xreg(slot, tt): return ar(aX + slot * 16 + tt * 4, 4)

    X(kernel_header(name))
    A("s_cmp_ge_u32 s2, 256"); A(f"s_cbranch_scc1 L_{name}_end")
    X(stamp(0))
    A("s_load_dwordx4 s[36:39], s[0:1], 40")
    A("s_load_dwordx2 s[40:41], s[0:1], 80")
    A("v_mov_b32 v31, v0")
    A("v_lshrrev_b32 v1, 6, v0"); A("v_and_b32 v0, 63, v0")
    A(f"v_readfirstlane_b32 s{sWAVE}, v1")
    X(wg_decode(sRB, sCB, sT0, sT1, sT2, 1, 4, 8))
    A(f"s_and_b32 s{sT0}, s{sWAVE}, 1"); A(f"s_mul_i32 s{sT0}, s{sT0}, {32*7168}")
    A(f"s_mul_i32 s{sT1}, s{sCB}, 224"); A(f"s_add_u32 s{sT0}, s{sT0}, s{sT1}")
    A(f"s_and_b32 s{sT1}, s{sCB}, 1"); A(f"s_lshl_b32 s{sT1}, s{sT1}, 1")
    for q in range(7):
        A(f"v_add_u32 v11, {64*q}, v0")
        A(f"v_mul_u32_u24 v12, 4682, v11"); A("v_lshrrev_b32 v12, 16, v12")
        A("v_mul_u32_u24 v13, 14, v12"); A("v_sub_u32 v13, v11, v13")
        A(f"v_add_u32 v13, s{sT1}, v13"); A("v_subrev_u32 v14, 14, v13"); A("v_min_u32 v13, v13, v14")
        A(f"v_mul_u32_u24 v12, 7168, v12"); A("v_lshlrev_b32 v13, 4, v13")
        A(f"v_add3_u32 v{vDMA+q}, v12, v13, s{sT0}")
        if q & 3: A(f"v_subrev_u32 v{vDMA+q}, {(q&3)*1024}, v{vDMA+q}")
    A(f"v_lshlrev_b32 v{vXO}, 4, v0")
    for tt in range(1, 4): A(f"s_mov_b32 s{sXO+tt-1}, {tt*32768}")
    A(f"s_lshr_b32 s{sT0}, s{sWAVE}, 1"); A(f"s_mul_i32 s{sM0}, s{sT0}, {UPO}")
    A(f"s_and_b32 s{sT0}, s{sWAVE}, 1"); A(f"s_mul_i32 s{sT0}, s{sT0}, 7168"); A(f"s_add_u32 s{sM0}, s{sM0}, s{sT0}")
    A(f"s_lshl_b32 s{sTT0}, s{sRB}, 4"); A(f"s_lshl_b32 s{sT1}, s{sWAVE}, 2"); A(f"s_add_u32 s{sTT0}, s{sTT0}, s{sT1}")
    A(f"s_lshl_b32 s{sT0}, s{sTT0}, 15"); A(f"s_add_u32 s{sT0}, s{sT0}, {OFF_H}")
    A(f"s_cmp_ge_u32 s{sWAVE}, 2")
    A("s_waitcnt lgkmcnt(0)")
    A(f"s_cselect_b32 s{sW}, s38, s36"); A(f"s_cselect_b32 s{sW+1}, s39, s37")
    A(f"s_mov_b32 s{sW+2}, {1024*7168}"); A(f"s_mov_b32 s{sW+3}, 0x00020000")
    X(srd(sX, 40, 41, 4*32768)); X(srd_add(sX, f"s{sT0}"))
    X(srd(sWS, 40, 41, WS_BYTES))

    def dma(tile_rel, stage_off):
        L = []
        for q in range(7):
            grp = []
            if q in (0, 4):
                grp.append(f"s_add_u32 m0, s{sM0}, {stage_off + q*1024}")
            grp.append(VM(("D", tile_rel, q), f"buffer_load_dwordx4 v{vDMA+q}, s[{sW}:{sW+3}], 0 offen offset:{(q&3)*1024} lds"))
            L.append(grp)
        L.append(srd_advance(sW, 64 * 7168))
        return L
    def xload(tile_rel, ks, slot):
        return [VM(("X", tile_rel, ks), f"buffer_load_dwordx4 {xreg(slot, tt)}, v{vXO}, s[{sX}:{sX+3}], {'0' if tt == 0 else 's%d' % (sXO+tt-1)} offen offset:{ks*1024}") for tt in range(4)]
    xadv = [srd_add(sX, 2048)]

    X(dma(0, 0)); X(xload(0, 0, 0)); X(xload(0, 1, 1)); X(xadv)
    X(dma(1, SS)); X(xload(1, 0, 2))
    A("v_lshrrev_b32 v11, 4, v0"); A("v_lshlrev_b32 v11, 2, v11")
    A("v_and_b32 v12, 15, v0"); A("v_lshrrev_b32 v12, 2, v12"); A("v_add_u32 v11, v11, v12")
    A("v_mul_u32_u24 v11, 224, v11")
    A("v_and_b32 v12, 3, v0"); A(f"v_lshl_add_u32 v{vDS}, v12, 3, v11")
    A("v_and_b32 v11, 15, v0"); A("v_lshrrev_b32 v12, 4, v0")
    A("v_lshlrev_b32 v11, 7, v11"); A("v_lshl_add_u32 v11, v12, 5, v11")
    A(f"s_lshl_b32 s{sT0}, s{sTT0}, 11"); A(f"s_add_u32 s{sT0}, s{sT0}, {OFF_ST}")
    for tt in range(4):
        for i in range(2):
            P.pre.append(VM(("S", None, 0), f"buffer_load_dwordx4 {ar(aST + tt*8 + i*4, 4)}, v11, s[{sWS}:{sWS+3}], s{sT0} offen offset:{(tt&1)*2048 + i*16}"))
        if tt == 1: A(f"s_add_u32 s{sT0}, s{sT0}, 4096")
    A("v_cmp_le_u32 vcc, 112, v31"); A("v_subrev_u32 v11, 112, v31"); A("v_mov_b32 v13, 0"); A(f"v_mov_b32 v14, {3584*64}")
    A("v_cndmask_b32 v11, v31, v11, vcc"); A("v_cndmask_b32 v13, v13, v14, vcc")
    A(f"s_and_b32 s{sT1}, s{sCB}, 1"); A(f"s_lshl_b32 s{sT1}, s{sT1}, 4")
    A(f"v_add_u32 v11, s{sT1}, v11"); A("v_subrev_u32 v12, 112, v11"); A("v_min_u32 v11, v11, v12")
    A("v_lshl_add_u32 v11, v11, 6, v13")
    A(f"s_mul_i32 s{sT0}, s{sCB}, {112*64}"); A(f"s_add_u32 s{sT0}, s{sT0}, {OFF_CS}")
    for i in range(4):
        P.pre.append(VM(("C", None, 0), f"buffer_load_dwordx4 {ar(aCS+4*i, 4)}, v11, s[{sWS}:{sWS+3}], s{sT0} offen offset:{16*i}"))
    for r in range(32, 256): A(f"v_mov_b32 v{r}, 0")
    def trreads(p, stage_imm):
        ks, h = p >> 1, p & 1
        return [f"ds_read_b64_tr_b16 {wreg(p, i, t)}, v{vDS} offset:{stage_imm + h*UPO + (32*ks + 16*t)*224 + i*32}" for i in range(7) for t in range(2)]
    P.pre.append(WaitVM([("D", 0, None)]))
    A("s_barrier")
    X(trreads(0, 0))
    A(f"s_mov_b32 s{sCNT}, 0")
    A(f"s_xor_b32 s{sM0}, s{sM0}, 0x10000")
    X(stamp(1))
    A(f"L_{name}_loop:")
    B = P.body
    for u in range(UNR):
        for p in range(4):
            ks, h = p >> 1, p & 1
            slot = u * 2 + ks
            mf = [f"{MFMA} {vr(acc(h,i,tt),4)}, {wreg(p,i)}, {xreg(slot,tt)}, {vr(acc(h,i,tt),4)}" for i in range(7) for tt in (range(4) if i % 2 == 0 else range(3, -1, -1))]
            if p == 3: pre = [WaitVM([("D", u + 1, None)], " lgkmcnt(0)"), "s_barrier"]
            elif h == 0: pre = [WaitVM([("X", u, ks)], " lgkmcnt(0)")]
            else: pre = ["s_waitcnt lgkmcnt(0)"]
            if p < 3: rd = trreads(p + 1, u * SS)
            else:
                rd = trreads(0, ((u + 1) & 1) * SS)
                if u == 1: rd = [f"v_xor_b32 v{vDS}, 0x10000, v{vDS}"] + rd
            if p == 0:
                xl = xload(u + 1, 1, ((u + 1) & 1) * 2 + 1) + xadv
                if u == 0: xl += [[f"s_cmp_eq_u32 s{sCNT}, {NT//UNR - 1}", f"s_cselect_b32 s{sX+2}, 0, s{sX+2}"]]
            elif p == 2: xl = xload(u + 2, 0, u * 2)
            else: xl = []
            d = dma(u + 2, u * SS)
            if p == 1: dl = d[0:4]
            elif p == 3: dl = d[4:8]
            else: dl = []
            if "dma" in abl: dl = []
            if "x" in abl: xl = []
            if "tr" in abl: rd = []
            if "bar" in abl: pre = [x for x in pre if x != "s_barrier"]
            if "dma" in abl or "x" in abl: pre = [("s_waitcnt lgkmcnt(0)" if isinstance(x, WaitVM) else x) for x in pre]
            body = interleave(mf, merge_fillers(rd, xl + dl), 0, 22)
            B.extend(pre + flat(body))
    B.append(f"s_xor_b32 s{sM0}, s{sM0}, 0x10000")
    B.append(f"s_add_u32 s{sCNT}, s{sCNT}, 1"); B.append(f"s_cmp_lt_u32 s{sCNT}, {NT//UNR}")
    B.append(f"s_cbranch_scc1 L_{name}_loop")
    P.niter = NT // UNR; P.unr = UNR
    E = P.post.append
    def EX(l): P.post.extend(flat(l))
    EX(stamp(2))
    P.post.append(WaitVM([("S", None, 0), ("C", None, 0)]))
    for i in range(16): E(f"v_accvgpr_read_b32 v{4+i}, a{aCS+i}")
    for s in (8, 4, 2, 1):
        for i in range(s): E(f"v_add_f32 v{4+i}, v{4+i}, v{4+s+i}")
    E("v_lshlrev_b32 v3, 2, v31")
    E(f"ds_write_b32 v3, v4 offset:{CSO}")
    vST = 20
    for tt in range(4):
        for i in range(8): E(f"v_accvgpr_read_b32 v{4+i}, a{aST + tt*8 + i}")
        E("v_add_f32 v4, v4, v6"); E("v_add_f32 v5, v5, v7"); E("v_add_f32 v8, v8, v10"); E("v_add_f32 v9, v9, v11")
        E("v_add_f32 v4, v4, v8"); E("v_add_f32 v5, v5, v9")
        EX(zip_streams(xreduce(4, 6, "v_add_f32"), xreduce(5, 7, "v_add_f32")))
        nm, c1, ve = vST + tt * 3, vST + tt * 3 + 1, vST + tt * 3 + 2
        E(f"v_mul_f32 v{nm}, {fh(-1.0/1024)}, v4")
        E(f"v_mul_f32 v{ve}, {fh(1.0/1024)}, v5")
        E(f"v_fma_f32 v{ve}, -v{nm}, v{nm}, v{ve}")
        E(f"v_max_f32 v{ve}, 0, v{ve}")
        E(f"v_add_f32 v{ve}, {fh(1e-5)}, v{ve}")
        E(f"v_rsq_f32 v{c1}, v{ve}")
        E(f"v_mul_f32 v{c1}, {fh(-LOG2E)}, v{c1}")
    E("s_waitcnt lgkmcnt(0)"); E("s_barrier")
    EX(stamp(3))
    E("v_lshrrev_b32 v3, 4, v0"); E("v_lshlrev_b32 v3, 4, v3")
    E(f"s_mul_i32 s{sT0}, s{sCB}, 7"); E(f"s_and_b32 s{sT1}, s{sCB}, 1"); E(f"s_add_u32 s{sT0}, s{sT0}, s{sT1}"); E(f"s_lshr_b32 s{sT0}, s{sT0}, 1")
    E(f"s_mul_i32 s{sT2}, s{sTT0}, 112"); E(f"s_add_u32 s{sT0}, s{sT0}, s{sT2}")
    E(f"s_lshl_b32 s{sT0}, s{sT0}, 10"); E(f"s_add_u32 s{sT0}, s{sT0}, {OFF_HH}")
    sO = 44
    for tt in range(4): E(f"s_add_u32 s{sO+tt}, s{sT0}, {tt*112*1024}")
    E(f"s_mov_b32 s{sT2}, {(-1024 + 8) & 0xffffffff}"); E(f"s_cmp_eq_u32 s{sT1}, 0"); E(f"s_cselect_b32 s{sT2}, {3*1024}, s{sT2}")
    for tt in range(4): E(f"s_add_u32 s{sO+4+tt}, s{sO+tt}, s{sT2}")
    def csread(grp, buf):
        L = []
        for k, i in enumerate(grp):
            L.append(f"ds_read_b128 {vr(buf + 8*k, 4)}, v3 offset:{CSO + i*64}")
            L.append(f"ds_read_b128 {vr(buf + 8*k + 4, 4)}, v3 offset:{CSO + 448 + i*64}")
        return L
    groups = [(0, 1), (2, 3), (4, 5), (6,)]
    EX(csread(groups[0], 4))
    E("s_waitcnt lgkmcnt(0)")
    for gi, grp in enumerate(groups):
        cbuf = 4 if gi == 0 else acc(0, 0, 0) + 16 * ((gi - 1) & 1)
        for tt in range(4):
            nm, c1, ve = vST + tt * 3, vST + tt * 3 + 1, vST + tt * 3 + 2
            (pn, sn), (pc, sc), (pv, sv) = bc(nm), bc(c1), bc(ve)
            G = [acc(0, i, tt) for i in grp]; U = [acc(1, i, tt) for i in grp]
            for k in range(len(grp)):
                for j in (0, 2):
                    E(f"v_pk_fma_f32 {vr(G[k]+j,2)}, {vr(cbuf+8*k+j,2)}, {pn}, {vr(G[k]+j,2)} op_sel:[0,{sn},0] op_sel_hi:[1,{sn},1]")
                for j in (0, 2):
                    E(f"v_pk_fma_f32 {vr(U[k]+j,2)}, {vr(cbuf+8*k+4+j,2)}, {pn}, {vr(U[k]+j,2)} op_sel:[0,{sn},0] op_sel_hi:[1,{sn},1]")
            for k in range(len(grp)):
                for j in (0, 2): E(f"v_pk_mul_f32 {vr(U[k]+j,2)}, {vr(U[k]+j,2)}, {vr(G[k]+j,2)}")
            for k in range(len(grp)):
                for j in (0, 2): E(f"v_pk_mul_f32 {vr(G[k]+j,2)}, {vr(G[k]+j,2)}, {pc} op_sel:[0,{sc}] op_sel_hi:[1,{sc}]")
            for k in range(len(grp)):
                for j in range(4): E(f"v_exp_f32 v{G[k]+j}, v{G[k]+j}")
            for k in range(len(grp)):
                for j in (0, 2): E(f"v_pk_fma_f32 {vr(G[k]+j,2)}, {vr(G[k]+j,2)}, {pv}, {pv} op_sel:[0,{sv},{sv}] op_sel_hi:[1,{sv},{sv}]")
            for k in range(len(grp)):
                for j in range(4): E(f"v_rcp_f32 v{G[k]+j}, v{G[k]+j}")
            for k in range(len(grp)):
                for j in (0, 2): E(f"v_pk_mul_f32 {vr(G[k]+j,2)}, {vr(G[k]+j,2)}, {vr(U[k]+j,2)}")
            for k in range(len(grp)):
                for j in (0, 1): E(f"v_cvt_pk_bf16_f32 v{U[0]+2*k+j}, v{G[k]+2*j}, v{G[k]+2*j+1}")
            if len(grp) == 2:
                E(f"buffer_store_dwordx4 {vr(U[0],4)}, v{vXO}, s[{sWS}:{sWS+3}], s{sO+tt} offen offset:{gi*1024}")
            else:
                E(f"buffer_store_dwordx2 {vr(U[0],2)}, v{vXO}, s[{sWS}:{sWS+3}], s{sO+4+tt} offen")
            if tt == 3 and gi == 0:
                EX(csread(groups[1], acc(0, 0, 0))); EX(csread(groups[2], acc(0, 0, 0) + 16)); E("s_waitcnt lgkmcnt(4)")
            if tt == 3 and gi == 1:
                EX(csread(groups[3], acc(0, 0, 0))); E("s_waitcnt lgkmcnt(2)")
            if tt == 3 and gi == 2:
                E("s_waitcnt lgkmcnt(0)")
    if STAMPS:
        EX(stamp(4))
        E("s_waitcnt vmcnt(0)")
        EX(stamp(5))
        EX(stamp_store(4, 6, sWS))
    E(f"L_{name}_end:"); E("s_endpgm")
    return finish(P, name, 256 + 168, 256, 4 * SS)


def unpack_lo(dst, src): return f"v_lshlrev_b32 v{dst}, 16, v{src}"
def unpack_hi(dst, src): return f"v_and_b32 v{dst}, 0xffff0000, v{src}"

def rowmajor_voff(dst, t1, t2, row_stride_log2):
    return [f"v_and_b32 v{t1}, 15, v0", f"v_lshlrev_b32 v{t1}, {row_stride_log2}, v{t1}",
            f"v_and_b32 v{t2}, 16, v0", f"v_lshl_add_u32 v{t1}, v{t2}, 1, v{t1}",
            f"v_and_b32 v{t2}, 32, v0", f"v_lshrrev_b32 v{t2}, 1, v{t2}", f"v_add_u32 v{dst}, v{t1}, v{t2}"]

def tr_addr_128(vDS, t1, t2, t3):
    L = [f"v_lshrrev_b32 v{t1}, 2, v0",
         f"v_lshrrev_b32 v{t2}, 1, v{t1}", f"v_and_b32 v{t2}, 3, v{t2}",
         f"v_lshlrev_b32 v{t1}, 7, v{t1}",
         f"v_and_b32 v{t3}, 3, v0", f"v_lshl_add_u32 v{t1}, v{t3}, 3, v{t1}"]
    for i in range(4):
        L += [f"v_xor_b32 v{t3}, {i}, v{t2}", f"v_lshl_add_u32 v{vDS+i}, v{t3}, 5, v{t1}"]
    return L

def dma_voff_128(dst, t1, t2, row_stride):
    return [f"v_lshrrev_b32 v{t1}, 3, v0", f"v_and_b32 v{t2}, 6, v{t1}",
            f"v_mul_u32_u24 v{t1}, {row_stride}, v{t1}",
            f"v_xor_b32 v{t2}, v{t2}, v0", f"v_and_b32 v{t2}, 7, v{t2}",
            f"v_lshl_add_u32 v{dst}, v{t2}, 4, v{t1}"]

def gen_n64(kind, abl=(), WN=1, ra=0, rb_=0):
    ST = ' sc1' if 'wt3' in abl else ''
    name = f"{kind}_kernel"
    k3 = kind == "k3"
    KS = 32 if k3 else 112
    NT, UNR = KS // 4, 4
    if WN is None: WN = 8 if k3 else 7
    XOFF = OFF_O if k3 else OFF_HH
    P = Prog(); A = P.pre.append
    def X(l): P.pre.extend(flat(l))
    SS = 16384
    sW, sX, sWS, sAUX = 4, 8, 12, 16
    sXO, sDO, sCNT, sM0, sWAVE, sRB, sCB, sT0, sT1, sT2, sTT0 = 20, 21, 24, 25, 26, 27, 28, 29, 30, 31, 32
    sJ, sC, sWB, sTI = 33, 34, 35, 42
    sXB, sWBASE = 44, 36
    vXO, vDMA, vDS, vRM, vRES = 1, 2, 4, 8, 16
    aX, aW = 0, 128
    def acc(i, tt): return 32 + (i * 2 + tt) * 4
    def wreg(p, k2, i, t=None):
        b = aW + (p & 1) * 32 + (k2 * 4 + i) * 4
        return ar(b, 4) if t is None else ar(b + 2 * t, 2)
    def xreg(u, ks, tt): return ar(aX + ((u * 4 + ks) * 2 + tt) * 4, 4)
    X(kernel_header(name))
    A("s_cmp_ge_u32 s2, 256"); A(f"s_cbranch_scc1 L_{name}_end")
    X(stamp(0))
    A(f"s_load_dwordx2 s[36:37], s[0:1], {24 if k3 else 56}")
    A(f"s_load_dwordx2 s[38:39], s[0:1], {0 if k3 else 64}")
    A("s_load_dwordx2 s[40:41], s[0:1], 80")
    X(code_prefetch(name, f"L_{name}_fin", 1, 10, "v[14:15]"))
    A("v_lshrrev_b32 v1, 6, v0"); A("v_and_b32 v0, 63, v0")
    A(f"v_readfirstlane_b32 s{sWAVE}, v1")
    X(wg_decode(sRB, sCB, sT0, sT1, sT2, 2, 4, 8))
    X(dma_voff_128(vDMA, 10, 11, 2048))
    A(f"s_lshl_b32 s{sT0}, s{sWAVE}, 16"); A(f"s_lshl_b32 s{sT1}, s{sCB}, 7"); A(f"s_add_u32 s{sT0}, s{sT0}, s{sT1}")
    A(f"v_add_u32 v{vDMA}, s{sT0}, v{vDMA}")
    X(lane16(vXO))
    A(f"s_mov_b32 s{sXO}, {KS*1024}")
    for q in range(1, 4): A(f"s_mov_b32 s{sDO+q-1}, {q*15360}")
    A(f"s_lshl_b32 s{sM0}, s{sWAVE}, 12")
    A(f"s_lshl_b32 s{sTT0}, s{sRB}, 3"); A(f"s_lshl_b32 s{sT1}, s{sWAVE}, 1"); A(f"s_add_u32 s{sTT0}, s{sTT0}, s{sT1}")
    A(f"s_and_b32 s{sT0}, s{sCB}, 7"); A(f"s_mul_i32 s{sT0}, s{sT0}, {ra}"); A(f"s_and_b32 s{sT1}, s{sRB}, 3"); A(f"s_mul_i32 s{sT1}, s{sT1}, {rb_}")
    A(f"s_add_u32 s{sJ}, s{sT0}, s{sT1}")
    mx = ra * 7 + rb_ * 3
    k = 1
    while WN * k * 2 <= mx: k *= 2
    while k >= 1:
        A(f"s_sub_u32 s{sT0}, s{sJ}, {WN*k}"); A(f"s_cselect_b32 s{sJ}, s{sJ}, s{sT0}"); k //= 2
    A(f"s_mov_b32 s{sC}, 0"); A(f"s_mov_b32 s{sWB}, 0")
    A(f"s_mul_i32 s{sT0}, s{sTT0}, {KS*1024}"); A(f"s_add_u32 s{sT0}, s{sT0}, {XOFF}")
    A("s_waitcnt lgkmcnt(0)")
    A(f"s_add_u32 s{sXB}, s40, s{sT0}"); A(f"s_addc_u32 s{sXB+1}, s41, 0")
    X(srd(sW, 36, 37, 128 * 2048))
    X(srd(sX, sXB, sXB + 1, C3D + KS * 1024 + 4096))
    X(srd(sWS, 40, 41, WS_BYTES)); X(srd(sAUX, 38, 39, 2048 * 2048))
    settile = [[f"s_add_u32 s{sTI}, s{sWB}, s{sJ}",
                f"s_lshl_b32 s{sT0}, s{sTI}, 12", f"s_add_u32 s{sX}, s{sXB}, s{sT0}", f"s_addc_u32 s{sX+1}, s{sXB+1}, 0"],
               [f"s_lshl_b32 s{sT0}, s{sTI}, 18", f"s_add_u32 s{sW}, s{sWBASE}, s{sT0}", f"s_addc_u32 s{sW+1}, s{sWBASE+1}, 0"],
               [f"s_add_u32 s{sJ}, s{sJ}, 1", f"s_cmp_eq_u32 s{sJ}, {WN}", f"s_cselect_b32 s{sJ}, 0, s{sJ}"],
               [f"s_add_u32 s{sC}, s{sC}, 1", f"s_cmp_eq_u32 s{sC}, {WN}", f"s_cselect_b32 s{sC}, 0, s{sC}", f"s_cselect_b32 s{sT0}, {WN}, 0", f"s_add_u32 s{sWB}, s{sWB}, s{sT0}"]]
    def dma(tile_rel, stage):
        L = []
        for q in range(4):
            grp = [f"s_add_u32 m0, s{sM0}, {stage*SS}"] if q == 0 else []
            grp.append(VM(("D", tile_rel, q), f"buffer_load_dwordx4 v{vDMA}, s[{sW}:{sW+3}], {'0' if q == 0 else 's%d' % (sDO+q-1)} offen offset:{q*1024} lds"))
            L.append(grp)
        return L
    def xload(tile_rel, p, u):
        return [VM(("X", tile_rel, p), f"buffer_load_dwordx4 {xreg(u, ks, tt)}, v{vXO}, s[{sX}:{sX+3}], {'0' if tt == 0 else 's%d' % sXO} offen offset:{ks*1024}")
                for ks in (2 * p, 2 * p + 1) for tt in range(2)]
    for t in range(4):
        X(settile)
        X(dma(t, t)); X(xload(t, 0, t))
        if t < 3: X(xload(t, 1, t))
        if t == 0:
            X(tr_addr_128(vDS, 10, 11, 12))
            for r in range(32, 64): A(f"v_mov_b32 v{r}, 0")
            X(rowmajor_voff(vRM, 10, 11, 11))
    if k3:
        A(f"s_lshl_b32 s{sT0}, s{sTT0}, 15"); A(f"s_lshl_b32 s{sT1}, s{sCB}, 7"); A(f"s_add_u32 s{sT0}, s{sT0}, s{sT1}")
        A(f"s_add_u32 s{sT1}, s{sT0}, 32768")
        for tt in range(2):
            for m in range(2):
                P.pre.append(VM(("R", None, 0), f"buffer_load_dwordx4 {vr(vRES + (tt*2+m)*4, 4)}, v{vRM}, s[{sAUX}:{sAUX+3}], s{sT0 if tt == 0 else sT1} offen offset:{m*64}"))
    else:
        A(f"s_lshl_b32 s{sT0}, s{sTT0}, 15"); A(f"s_lshl_b32 s{sT1}, s{sCB}, 11"); A(f"s_add_u32 s{sT0}, s{sT0}, s{sT1}")
        A(f"s_add_u32 s{sT0}, s{sT0}, {OFF_H}"); A(f"s_add_u32 s{sT1}, s{sT0}, 32768")
        for tt in range(2):
            for m in range(2):
                P.pre.append(VM(("R", None, 0), f"buffer_load_dwordx4 {vr(vRES + (tt*2+m)*4, 4)}, v{vXO}, s[{sWS}:{sWS+3}], s{sT0 if tt == 0 else sT1} offen offset:{m*1024}"))
    def trreads(p, stage):
        return [f"ds_read_b64_tr_b16 {wreg(p, k2, i, t)}, v{vDS+i} offset:{stage*SS + (32*(2*p+k2) + 16*t)*128}" for k2 in range(2) for i in range(4) for t in range(2)]
    P.pre.append(WaitVM([("D", 0, None)]))
    A("s_barrier")
    X(trreads(0, 0))
    A(f"s_mov_b32 s{sCNT}, 0")
    X(stamp(1))
    def tile(u, tail):
        L = []
        for p in range(2):
            mf = [f"{MFMA} {vr(acc(i,tt),4)}, {wreg(p,k2,i)}, {xreg(u,2*p+k2,tt)}, {vr(acc(i,tt),4)}" for k2 in range(2) for i in range(4) for tt in range(2)]
            last = tail and u == 3
            if p == 1:
                if last: pre = [WaitVM([("X", u, 1)], " lgkmcnt(0)")]
                else: pre = [WaitVM([("D", u + 1, None), ("X", u, 1)], " lgkmcnt(0)"), "s_barrier"]
            else: pre = [WaitVM([("X", u, 0)], " lgkmcnt(0)")]
            rd = trreads(1, u) if p == 0 else ([] if last else trreads(0, (u + 1) & 3))
            if p == 0:
                xl = xload(u + 3, 1, (u + 3) & 3) if (not tail or u == 0) else []
                if not tail: xl = xl + settile
            else: xl = [] if tail else dma(u + 4, u) + xload(u + 4, 0, u)
            if "mfma" in abl: mf = ["s_nop 0"] * len(mf)
            if "tr" in abl: rd = []
            if "bar" in abl: pre = [x for x in pre if x != "s_barrier"]
            body = interleave(mf, merge_fillers(rd, xl), 0, 13)
            L.extend(pre + flat(body))
        return L
    A(f"L_{name}_loop:")
    B = P.body
    for u in range(UNR): B.extend(tile(u, False))
    if NT // UNR - 1 > 1:
        B.append(f"s_add_u32 s{sCNT}, s{sCNT}, 1"); B.append(f"s_cmp_lt_u32 s{sCNT}, {NT//UNR - 1}")
        B.append(f"s_cbranch_scc1 L_{name}_loop")
    P.niter = NT // UNR - 1; P.unr = UNR
    for u in range(UNR): P.post.extend(tile(u, True))
    E = P.post.append
    def EX(l): P.post.extend(flat(l))
    EX(stamp(2))
    P.post.append(WaitVM([("R", None, 0)]))
    if k3:
        E(f"s_lshl_b32 s{sT0}, s{sTT0}, 15"); E(f"s_lshl_b32 s{sT1}, s{sCB}, 11"); E(f"s_add_u32 s{sT0}, s{sT0}, s{sT1}")
        E(f"s_add_u32 s{sT0}, s{sT0}, {OFF_H}"); E(f"s_add_u32 s{sT1}, s{sT0}, 32768")
        E(f"s_mov_b32 s{sT2}, 0x3f803f80")
        for q in range(4):
            r = vRES + 4 * q
            E(f"v_permlane16_swap_b32 v{r}, v{r+2}"); E(f"v_permlane16_swap_b32 v{r+1}, v{r+3}")
    else:
        E(f"s_lshl_b32 s{sT0}, s{sTT0}, 15"); E(f"s_lshl_b32 s{sT1}, s{sCB}, 7"); E(f"s_add_u32 s{sT0}, s{sT0}, s{sT1}")
        E(f"s_add_u32 s{sT1}, s{sT0}, 32768")
    for tt in range(2):
        if k3: E(f"v_mov_b32 v{12+2*tt}, 0"); E(f"v_mov_b32 v{13+2*tt}, 0")
        for m in range(2):
            r = vRES + (tt * 2 + m) * 4
            for d in range(4):
                a = acc(2 * m + (d >> 1), tt) + 2 * (d & 1)
                E(unpack_lo(10, r + d)); E(unpack_hi(11, r + d))
                E(f"v_add_f32 v{a}, v{a}, v10"); E(f"v_add_f32 v{a+1}, v{a+1}, v11")
                E(f"v_cvt_pk_bf16_f32 v{r+d}, v{a}, v{a+1}")
            if k3:
                E(f"buffer_store_dwordx4 {vr(r,4)}, v{vXO}, s[{sWS}:{sWS+3}], s{sT0 if tt == 0 else sT1} offen offset:{m*1024}{ST}")
                for d in range(4):
                    E(f"v_dot2c_f32_bf16 v{12+2*tt}, s{sT2}, v{r+d}"); E(f"v_dot2c_f32_bf16 v{13+2*tt}, v{r+d}, v{r+d}")
            else:
                E(f"v_permlane16_swap_b32 v{r}, v{r+2}"); E(f"v_permlane16_swap_b32 v{r+1}, v{r+3}")
                E(f"buffer_store_dwordx4 {vr(r,4)}, v{vRM}, s[{sAUX}:{sAUX+3}], s{sT0 if tt == 0 else sT1} offen offset:{m*64}")
    if k3:
        EX(zip_streams(*[xreduce(12 + j, 32 + j, "v_add_f32") for j in range(4)]))
        E(f"s_lshl_b32 s{sT0}, s{sTT0}, 11"); E(f"s_lshl_b32 s{sT1}, s{sCB}, 8"); E(f"s_add_u32 s{sT0}, s{sT0}, s{sT1}")
        E(f"s_add_u32 s{sT0}, s{sT0}, {OFF_ST}")
        E("s_mov_b64 exec, 0xffff")
        E(f"buffer_store_dwordx4 v[12:15], v{vXO}, s[{sWS}:{sWS+3}], s{sT0} offen")
        E("s_mov_b64 exec, -1")
    if STAMPS:
        EX(stamp(3)); E("s_waitcnt vmcnt(0)"); EX(stamp(4)); EX(stamp_store(3 if k3 else 5, 5, sWS))
    E(f"L_{name}_end:"); E("s_endpgm"); E(f"L_{name}_fin:")
    if "nox" in abl: P.skip.add("X")
    if "nod" in abl: P.skip.add("D")
    return finish(P, name, 64 + 192, 64, 4 * SS)

def gen_k0(name="k0_kernel"):
    P = Prog(); A = P.pre.append
    def X(l): P.pre.extend(flat(l))
    sXS, sWS, sWAVE, sT0, sT1, sONE = 4, 8, 12, 13, 14, 15
    X(kernel_header(name))
    A("s_cmp_ge_u32 s2, 128"); A(f"s_cbranch_scc1 L_{name}_end")
    A("s_load_dwordx2 s[36:37], s[0:1], 0"); A("s_load_dwordx2 s[40:41], s[0:1], 80")
    A("v_lshrrev_b32 v1, 6, v0"); A("v_and_b32 v0, 63, v0")
    A(f"v_readfirstlane_b32 s{sWAVE}, v1")
    X(rowmajor_voff(2, 10, 11, 11))
    A(f"s_lshl_b32 s{sT0}, s2, 15"); A(f"s_lshl_b32 s{sT1}, s{sWAVE}, 9"); A(f"s_add_u32 s{sT0}, s{sT0}, s{sT1}")
    A(f"s_mov_b32 s{sONE}, 0x3f803f80")
    A("s_waitcnt lgkmcnt(0)")
    X(srd(sXS, 36, 37, 2048 * 2048)); X(srd(sWS, 40, 41, WS_BYTES))
    for j in range(8): A(f"buffer_load_dwordx4 {vr(16+4*j,4)}, v2, s[{sXS}:{sXS+3}], s{sT0} offen offset:{j*64}")
    A("v_mov_b32 v4, 0"); A("v_mov_b32 v5, 0")
    A("s_waitcnt vmcnt(0)")
    for r in range(16, 48): A(f"v_dot2c_f32_bf16 v4, s{sONE}, v{r}"); A(f"v_dot2c_f32_bf16 v5, v{r}, v{r}")
    X(zip_streams(xreduce(4, 6, "v_add_f32"), xreduce(5, 7, "v_add_f32")))
    A("v_and_b32 v8, 15, v0"); A("v_lshlrev_b32 v8, 3, v8"); A(f"s_lshl_b32 s{sT1}, s{sWAVE}, 7"); A(f"v_add_u32 v9, s{sT1}, v8")
    A("ds_write_b64 v9, v[4:5]"); A("s_waitcnt lgkmcnt(0)"); A("s_barrier")
    for w in range(4): A(f"ds_read_b64 {vr(48+2*w,2)}, v8 offset:{w*128}")
    A("s_waitcnt lgkmcnt(0)")
    A("v_add_f32 v4, v48, v50"); A("v_add_f32 v5, v49, v51"); A("v_add_f32 v6, v52, v54"); A("v_add_f32 v7, v53, v55")
    A("v_add_f32 v4, v4, v6"); A("v_add_f32 v5, v5, v7")
    A(f"v_mul_f32 v4, {fh(-1.0/1024)}, v4"); A(f"v_mul_f32 v5, {fh(1.0/1024)}, v5")
    A("v_fma_f32 v5, -v4, v4, v5"); A("v_max_f32 v5, 0, v5"); A(f"v_add_f32 v5, {fh(1e-5)}, v5"); A("v_rsq_f32 v5, v5")
    A("v_mul_f32 v4, v4, v5")
    A(f"s_lshl_b32 s{sT0}, s2, 15"); A(f"s_lshl_b32 s{sT1}, s{sWAVE}, 13"); A(f"s_add_u32 s{sT0}, s{sT0}, s{sT1}"); A(f"s_add_u32 s{sT0}, s{sT0}, {OFF_XN}")
    A(f"s_add_u32 s{sT1}, s{sT0}, 4096")
    A("v_lshlrev_b32 v3, 4, v0")
    for j in range(8):
        r = 16 + 4 * j
        for d in range(4):
            A(unpack_lo(10, r + d)); A(unpack_hi(11, r + d))
            A("v_fma_f32 v10, v10, v5, v4"); A("v_fma_f32 v11, v11, v5, v4")
            A(f"v_cvt_pk_bf16_f32 v{r+d}, v10, v11")
        A(f"v_permlane16_swap_b32 v{r}, v{r+2}"); A(f"v_permlane16_swap_b32 v{r+1}, v{r+3}")
        A(f"buffer_store_dwordx4 {vr(r,4)}, v3, s[{sWS}:{sWS+3}], s{sT0 if j < 4 else sT1} offen offset:{(j&3)*1024}")
    A(f"L_{name}_end:"); A("s_endpgm")
    return finish(P, name, 64, 64, 1024, grid=128)


def softmax_pm(src, tp, tn, t0, qp, qn):
    mx, mn, a, b, sp, sn = t0, t0 + 1, t0 + 2, t0 + 3, t0 + 4, t0 + 5
    L = []
    s1 = [f"v_max3_f32 v{mx}, v{src}, v{src+1}, v{src+2}", f"v_max3_f32 v{mx}, v{mx}, v{src+3}, v{src+4}",
          f"v_max3_f32 v{mx}, v{mx}, v{src+5}, v{src+6}", f"v_max_f32 v{mx}, v{mx}, v{src+7}"] + xreduce(mx, a, "v_max_f32")
    s2 = [f"v_min3_f32 v{mn}, v{src}, v{src+1}, v{src+2}", f"v_min3_f32 v{mn}, v{mn}, v{src+3}, v{src+4}",
          f"v_min3_f32 v{mn}, v{mn}, v{src+5}, v{src+6}", f"v_min_f32 v{mn}, v{mn}, v{src+7}"] + xreduce(mn, b, "v_min_f32")
    L += zip_streams(s1, s2)
    L += [f"v_mul_f32 v{mx}, {fh(-LOG2E)}, v{mx}", f"v_mul_f32 v{mn}, {fh(LOG2E)}, v{mn}"]
    for j in range(8): L.append(f"v_fma_f32 v{tp+j}, v{src+j}, s{SLOG2E}, v{mx}")
    for j in range(8): L.append(f"v_fma_f32 v{tn+j}, -v{src+j}, s{SLOG2E}, v{mn}")
    for j in range(8): L.append(f"v_exp_f32 v{tp+j}, v{tp+j}")
    for j in range(8): L.append(f"v_exp_f32 v{tn+j}, v{tn+j}")
    def summ(t, d, tmp):
        return [f"v_add_f32 v{d}, v{t}, v{t+1}"] + [f"v_add_f32 v{d}, v{d}, v{t+j}" for j in range(2, 8)] + xreduce(d, tmp, "v_add_f32") + [f"v_rcp_f32 v{d}, v{d}"]
    L += zip_streams(summ(tp, sp, a), summ(tn, sn, b))
    for j in range(8): L.append(f"v_mul_f32 v{tp+j}, v{tp+j}, v{sp}")
    for j in range(8): L.append(f"v_mul_f32 v{tn+j}, v{tn+j}, v{sn}")
    for j in range(4): L.append(f"v_cvt_pk_bf16_f32 v{qp+j}, v{tp+2*j}, v{tp+2*j+1}")
    for j in range(4): L.append(f"v_cvt_pk_bf16_f32 v{qn+j}, v{tn+2*j}, v{tn+2*j+1}")
    return L
SLOG2E = 60

OFF_Z = OFF_KV + (4 << 20)
def gen_k1(name="k1_kernel"):
    P = Prog(); A = P.pre.append
    def X(l): P.pre.extend(flat(l))
    NT, UNR, SS = 16, 2, 32768
    WPO = 3 * SS + 24576
    RS = 416
    sW, sX, sWS, sWP = 4, 8, 12, 16
    sXO, sDO, sCNT, sM0, sWAVE, sRB, sHP, sT0, sT1, sT2, sTT0 = 20, 21, 27, 28, 29, 30, 31, 32, 33, 34, 35
    vXO, vDMA, vDS = 1, 2, 4
    aX, aW = 0, 32
    def acc(nt, tt): return 64 + (nt * 2 + tt) * 4
    def wreg(p, k, t=None):
        b = aW + (p & 1) * 24 + 4 * k
        return ar(b, 4) if t is None else ar(b + 2 * t, 2)
    def xreg(slot, tt): return ar(aX + slot * 8 + tt * 4, 4)
    X(kernel_header(name))
    A("s_cmp_ge_u32 s2, 256"); A(f"s_cbranch_scc1 L_{name}_end")
    X(stamp(0))
    A("s_load_dwordx4 s[36:39], s[0:1], 8")
    A("s_load_dwordx2 s[40:41], s[0:1], 80")
    A("v_lshrrev_b32 v1, 6, v0"); A("v_and_b32 v0, 63, v0")
    A(f"v_readfirstlane_b32 s{sWAVE}, v1")
    X(wg_decode(sRB, sHP, sT0, sT1, sT2, 1, 8, 4))
    X(dma_voff_128(vDMA, 10, 11, 6144))
    A(f"s_lshl_b32 s{sT1}, s{sHP}, 7"); A(f"v_add_u32 v{vDMA}, s{sT1}, v{vDMA}")
    A(f"v_lshlrev_b32 v{vXO}, 4, v0")
    A(f"s_mov_b32 s{sXO}, 32768")
    A(f"s_mov_b32 s{SLOG2E}, {fh(LOG2E)}")
    A(f"s_mul_i32 s{sT0}, s{sWAVE}, 6")
    for q in range(6):
        A(f"s_add_u32 s{sT1}, s{sT0}, {q}")
        A(f"s_and_b32 s{sT2}, s{sT1}, 7"); A(f"s_mul_i32 s{sT2}, s{sT2}, {8*6144}")
        A(f"s_lshr_b32 s{sT1}, s{sT1}, 3"); A(f"s_lshl_b32 s{sT1}, s{sT1}, 11")
        A(f"s_add_u32 s{sDO+q}, s{sT1}, s{sT2}")
        if q & 3: A(f"s_sub_u32 s{sDO+q}, s{sDO+q}, {(q&3)*1024}")
    A(f"s_mul_i32 s{sM0}, s{sWAVE}, 6144")
    A(f"s_lshl_b32 s{sTT0}, s{sRB}, 3"); A(f"s_lshl_b32 s{sT1}, s{sWAVE}, 1"); A(f"s_add_u32 s{sTT0}, s{sTT0}, s{sT1}")
    A(f"s_lshl_b32 s{sT0}, s{sTT0}, 15"); A(f"s_add_u32 s{sT0}, s{sT0}, {OFF_XN}")
    A("s_waitcnt lgkmcnt(0)")
    X(srd(sW, 36, 37, 1024 * 6144)); X(srd(sWP, 38, 39, 65536))
    X(srd(sX, 40, 41, 65536)); X(srd_add(sX, f"s{sT0}"))
    X(srd(sWS, 40, 41, WS_BYTES))
    def dma(tile_rel, stage_off):
        L = []
        for q in range(6):
            grp = [f"s_add_u32 m0, s{sM0}, {stage_off + q*1024}"] if q in (0, 4) else []
            grp.append(VM(("D", tile_rel, q), f"buffer_load_dwordx4 v{vDMA}, s[{sW}:{sW+3}], s{sDO+q} offen offset:{(q&3)*1024} lds"))
            L.append(grp)
        L.append(srd_advance(sW, 64 * 6144))
        return L
    def xload(tile_rel, ks, slot):
        return [VM(("X", tile_rel, ks), f"buffer_load_dwordx4 {xreg(slot, tt)}, v{vXO}, s[{sX}:{sX+3}], {'0' if tt == 0 else 's%d' % sXO} offen offset:{ks*1024}") for tt in range(2)]
    xadv = [srd_add(sX, 2048)]
    X(dma(0, 0)); X(xload(0, 0, 0)); X(xload(0, 1, 1)); X(xadv)
    X(dma(1, SS)); X(xload(1, 0, 2))
    A(f"s_lshl_b32 s{sT0}, s{sHP}, 12"); A(f"s_lshl_b32 s{sT1}, s{sWAVE}, 10"); A(f"s_add_u32 s{sT0}, s{sT0}, s{sT1}")
    A(f"s_add_u32 m0, s{sT1}, {WPO}")
    P.pre.append(VM(("P", None, 0), f"buffer_load_dwordx4 v{vXO}, s[{sWP}:{sWP+3}], s{sT0} offen lds"))
    X(tr_addr_128(vDS, 10, 11, 12))
    for r in range(64, 160): A(f"v_mov_b32 v{r}, 0")
    def trreads(p, stage_imm):
        ks, h = p >> 1, p & 1
        L = []
        for k in range(6):
            nt = h * 6 + k; m, i = nt >> 2, nt & 3
            for t in range(2):
                L.append(f"ds_read_b64_tr_b16 {wreg(p, k, t)}, v{vDS+i} offset:{stage_imm + m*8192 + (32*ks + 16*t)*128}")
        return L
    P.pre.append(WaitVM([("D", 0, None)]))
    A("s_barrier")
    X(trreads(0, 0))
    A(f"s_mov_b32 s{sCNT}, 0")
    A(f"s_xor_b32 s{sM0}, s{sM0}, 0x10000")
    X(stamp(1))
    A(f"L_{name}_loop:")
    B = P.body
    for u in range(UNR):
        for p in range(4):
            ks, h = p >> 1, p & 1
            slot = u * 2 + ks
            mf = [f"{MFMA} {vr(acc(h*6+k,tt),4)}, {wreg(p,k)}, {xreg(slot,tt)}, {vr(acc(h*6+k,tt),4)}" for k in range(6) for tt in ((0, 1) if k % 2 == 0 else (1, 0))]
            if p == 3: pre = [WaitVM([("D", u + 1, None)], " lgkmcnt(0)"), "s_barrier"]
            elif h == 0: pre = [WaitVM([("X", u, ks)], " lgkmcnt(0)")]
            else: pre = ["s_waitcnt lgkmcnt(0)"]
            if p < 3: rd = trreads(p + 1, u * SS)
            else:
                rd = trreads(0, ((u + 1) & 1) * SS)
                if u == 1: rd = [[f"v_xor_b32 v{vDS+i}, 0x10000, v{vDS+i}" for i in range(4)]] + rd
            if p == 0:
                xl = xload(u + 1, 1, ((u + 1) & 1) * 2 + 1) + xadv
                if u == 0: xl += [[f"s_cmp_eq_u32 s{sCNT}, {NT//UNR - 1}", f"s_cselect_b32 s{sX+2}, 0, s{sX+2}"]]
            elif p == 2: xl = xload(u + 2, 0, u * 2)
            else: xl = []
            d = dma(u + 2, u * SS)
            dl = {0: d[0:1], 1: d[1:4], 2: d[4:5], 3: d[5:7]}[p]
            body = interleave(mf, merge_fillers(rd, xl + dl), 0, 9)
            B.extend(pre + flat(body))
    B.append(f"s_xor_b32 s{sM0}, s{sM0}, 0x10000")
    B.append(f"s_add_u32 s{sCNT}, s{sCNT}, 1"); B.append(f"s_cmp_lt_u32 s{sCNT}, {NT//UNR}")
    B.append(f"s_cbranch_scc1 L_{name}_loop")
    P.niter = NT // UNR; P.unr = UNR
    E = P.post.append
    def EX(l): P.post.extend(flat(l))
    EX(stamp(2))
    E("s_waitcnt vmcnt(0) lgkmcnt(0)"); E("s_barrier")
    if PREFETCH:
        E("s_load_dwordx2 s[44:45], s[0:1], 24"); E("s_load_dwordx2 s[48:49], s[0:1], 56")
        E(f"s_lshl_b32 s{sT0}, s2, 2"); E(f"s_add_u32 s{sT0}, s{sT0}, s{sWAVE}")
        E(f"s_mul_i32 s{sT1}, s{sT0}, {56*128}"); E(f"s_lshl_b32 s{sT0}, s{sT0}, 11")
        E("v_min_u32 v13, 55, v0"); E("v_lshlrev_b32 v13, 7, v13")
        E("v_and_b32 v14, 15, v0"); E("v_lshlrev_b32 v14, 7, v14")
        E("s_waitcnt lgkmcnt(0)")
        E("s_mov_b32 s46, 2097152"); E("s_mov_b32 s47, 0x00020000"); E("s_mov_b32 s50, 7340032"); E("s_mov_b32 s51, 0x00020000")
        E(f"buffer_load_dword v254, v14, s[44:47], s{sT0} offen"); E(f"buffer_load_dword v255, v13, s[48:51], s{sT1} offen")
    E("v_lshrrev_b32 v10, 2, v0"); E("v_lshlrev_b32 v10, 6, v10"); E("v_and_b32 v11, 3, v0"); E("v_lshl_add_u32 v10, v11, 3, v10")
    E(f"v_add_u32 v10, {WPO}, v10")
    for hd in range(2):
        for ft in range(2):
            for t in range(2):
                E(f"ds_read_b64_tr_b16 {ar((hd*2+ft)*4 + 2*t, 2)}, v10 offset:{hd*2048 + t*1024 + ft*32}")
    E("v_and_b32 v11, 15, v0"); E(f"s_lshl_b32 s{sT0}, s{sWAVE}, 5"); E(f"v_add_u32 v11, s{sT0}, v11"); E(f"v_mul_u32_u24 v11, {RS}, v11")
    E("v_lshrrev_b32 v12, 4, v0"); E("v_lshl_add_u32 v3, v12, 3, v11")
    def quad(m, hd, tt): return acc(m * 4 + hd * 2, tt)
    for m in (1, 2, 0):
        for hd in range(2):
            for tt in range(2):
                a0, a1 = acc(m*4 + hd*2, tt), acc(m*4 + hd*2 + 1, tt)
                E(f"v_cvt_pk_bf16_f32 v{a0}, v{a0}, v{a0+1}"); E(f"v_cvt_pk_bf16_f32 v{a0+1}, v{a0+2}, v{a0+3}")
                E(f"v_cvt_pk_bf16_f32 v{a0+2}, v{a1}, v{a1+1}"); E(f"v_cvt_pk_bf16_f32 v{a0+3}, v{a1+2}, v{a1+3}")
                if m == 2:
                    E(f"ds_write_b64 v3, {vr(a0,2)} offset:{tt*16*RS + 256 + hd*64}")
                    E(f"ds_write_b64 v3, {vr(a0+2,2)} offset:{tt*16*RS + 256 + hd*64 + 32}")
    E("s_waitcnt lgkmcnt(8)")
    def pbuf(m, hd, tt): return 160 + ((m * 2 + hd) * 2 + tt) * 8
    for m in (1, 0):
        for hd in range(2):
            for tt in range(2):
                for ft in range(2):
                    E(f"{MFMA} {vr(pbuf(m,hd,tt) + 4*ft, 4)}, {ar((hd*2+ft)*4, 4)}, {vr(quad(m,hd,tt), 4)}, 0")
    TP, TN, T0, QP, QN = 16, 24, 32, 40, 44
    for hd in range(2):
        for tt in range(2):
            EX(softmax_pm(pbuf(1, hd, tt), TP, TN, T0, QP, QN))
            for k, r in enumerate((QP, QP + 2, QN, QN + 2)):
                E(f"ds_write_b64 v3, {vr(r,2)} offset:{tt*16*RS + hd*128 + k*32}")
    E("s_waitcnt lgkmcnt(0)"); E("s_barrier")
    E("v_lshrrev_b32 v10, 2, v0"); E(f"v_mul_u32_u24 v10, {RS}, v10"); E("v_and_b32 v11, 3, v0"); E("v_lshl_add_u32 v10, v11, 3, v10")
    E(f"s_lshl_b32 s{sT0}, s{sWAVE}, 6"); E(f"v_add_u32 v11, s{sT0}, v10")
    E(f"s_lshr_b32 s{sT0}, s{sWAVE}, 1"); E(f"s_lshl_b32 s{sT0}, s{sT0}, 6"); E(f"s_add_u32 s{sT0}, s{sT0}, 256"); E(f"v_add_u32 v12, s{sT0}, v10")
    for j in range(4): E(f"v_mov_b32 v{48+j}, 0x3f803f80")
    aF = 16
    for ks in range(4):
        for x, (va, c) in enumerate(((11, 0), (11, 32), (12, 0), (12, 32))):
            for t in range(2):
                E(f"ds_read_b64_tr_b16 {ar(aF + ks*16 + x*4 + 2*t, 2)}, v{va} offset:{(32*ks + 16*t)*RS + c}")
        if ks == 1: pass
    KV = 224
    for ks in range(4):
        E(f"s_waitcnt lgkmcnt({min(15, (3-ks)*8)})")
        for ft in range(2):
            for dt in range(2):
                d = KV + (dt * 2 + ft) * 4
                E(f"{MFMA} {vr(d,4)}, {ar(aF + ks*16 + ft*4, 4)}, {ar(aF + ks*16 + 8 + dt*4, 4)}, {'0' if ks == 0 else vr(d,4)}")
            d = KV + 16 + ft * 4
            E(f"{MFMA} {vr(d,4)}, {ar(aF + ks*16 + ft*4, 4)}, v[48:51], {'0' if ks == 0 else vr(d,4)}")
    E(f"s_lshl_b32 s{sT0}, s{sRB}, 6"); E(f"s_lshl_b32 s{sT1}, s{sHP}, 2"); E(f"s_add_u32 s{sT0}, s{sT0}, s{sT1}"); E(f"s_add_u32 s{sT0}, s{sT0}, s{sWAVE}")
    E(f"s_lshl_b32 s{sT1}, s{sT0}, 7"); E(f"s_add_u32 s{sT1}, s{sT1}, {OFF_Z}")
    E(f"s_lshl_b32 s{sT0}, s{sT0}, 12"); E(f"s_add_u32 s{sT0}, s{sT0}, {OFF_KV}")
    for k in range(4): E(f"buffer_store_dwordx4 {vr(KV+4*k,4)}, v{vXO}, s[{sWS}:{sWS+3}], s{sT0} offen offset:{k*1024}")
    E("v_and_b32 v10, 48, v0")
    E("s_mov_b32 exec_lo, 0x00010001"); E("s_mov_b32 exec_hi, 0x00010001")
    for ft in range(2): E(f"buffer_store_dwordx4 {vr(KV+16+4*ft,4)}, v10, s[{sWS}:{sWS+3}], s{sT1} offen offset:{ft*64}")
    E("s_mov_b64 exec, -1")
    E(f"s_lshl_b32 s{sT0}, s{sHP}, 8"); E(f"s_add_u32 s{sT0}, s{sT0}, s{sTT0}"); E(f"s_lshl_b32 s{sT0}, s{sT0}, 11"); E(f"s_add_u32 s{sT0}, s{sT0}, {OFF_PQ}")
    E(f"s_add_u32 s{sT1}, s{sT0}, {128*2048}")
    for hd in range(2):
        for tt in range(2):
            qp = 64 + (hd * 2 + tt) * 8
            EX(softmax_pm(pbuf(0, hd, tt), TP, TN, T0, qp, qp + 4))
            for k in range(2):
                E(f"buffer_store_dwordx4 {vr(qp+4*k,4)}, v{vXO}, s[{sWS}:{sWS+3}], s{sT0 if hd == 0 else sT1} offen offset:{tt*2048 + k*1024}")
    if STAMPS:
        EX(stamp(3)); E("s_waitcnt vmcnt(0)"); EX(stamp(4)); EX(stamp_store(1, 5, sWS))
    E(f"L_{name}_end:"); E("s_endpgm")
    return finish(P, name, 256 + 80, 256, 4 * SS)

def gen_k2(name="k2_kernel"):
    P = Prog(); A = P.pre.append
    def X(l): P.pre.extend(flat(l))
    sWS, sW, sWAVE, sH, sR, sT0, sT1, sT2 = 4, 8, 12, 13, 14, 15, 16, 17
    X(kernel_header(name))
    A("s_cmp_ge_u32 s2, 256"); A(f"s_cbranch_scc1 L_{name}_end")
    X(stamp(0))
    A("s_load_dwordx4 s[36:39], s[0:1], 40"); A("s_load_dwordx2 s[40:41], s[0:1], 80")
    A("v_lshrrev_b32 v1, 6, v0"); A("v_and_b32 v0, 63, v0")
    A(f"v_readfirstlane_b32 s{sWAVE}, v1")
    A(f"s_and_b32 s{sH}, s2, 7"); A(f"s_lshl_b32 s{sH}, s{sH}, 2"); A(f"s_lshr_b32 s{sT0}, s2, 3"); A(f"s_and_b32 s{sT0}, s{sT0}, 3"); A(f"s_add_u32 s{sH}, s{sH}, s{sT0}")
    A(f"s_lshr_b32 s{sR}, s2, 5")
    A("v_lshlrev_b32 v1, 4, v0")
    A("s_bitcmp1_b32 s2, 7")
    A("s_waitcnt lgkmcnt(0)")
    A(f"s_cselect_b32 s{sW}, s38, s36"); A(f"s_cselect_b32 s{sW+1}, s39, s37")
    A(f"s_mov_b32 s{sW+2}, {1024*7168}"); A(f"s_mov_b32 s{sW+3}, 0x00020000")
    X(srd(sWS, 40, 41, WS_BYTES))
    A(f"s_lshl_b32 s{sT0}, s{sH}, 13"); A(f"s_lshl_b32 s{sT1}, s{sWAVE}, 11"); A(f"s_add_u32 s{sT0}, s{sT0}, s{sT1}"); A(f"s_add_u32 s{sT0}, s{sT0}, {OFF_KV}")
    KVL = 64
    for rb in range(16):
        for ft in range(2):
            P.pre.append(VM(("KV", None, rb), f"buffer_load_dwordx4 {vr(KVL + rb*8 + ft*4, 4)}, v1, s[{sWS}:{sWS+3}], s{sT0} offen offset:{ft*1024}"))
        if rb < 15: A(f"s_add_u32 s{sT0}, s{sT0}, {32*8192}")
    A("v_and_b32 v2, 15, v0"); A("v_lshlrev_b32 v2, 13, v2"); A("v_and_b32 v3, 48, v0"); A("v_add_u32 v2, v2, v3")
    A(f"s_lshl_b32 s{sT0}, s{sH}, 8"); A(f"s_lshl_b32 s{sT1}, s{sWAVE}, 6"); A(f"s_add_u32 s{sT0}, s{sT0}, s{sT1}"); A(f"s_add_u32 s{sT0}, s{sT0}, {OFF_Z}")
    P.pre.append(VM(("Z", None, 0), f"buffer_load_dwordx4 v[4:7], v2, s[{sWS}:{sWS+3}], s{sT0} offen"))
    A(f"s_lshl_b32 s{sT2}, s{sR}, 4"); A(f"s_lshl_b32 s{sT1}, s{sWAVE}, 2"); A(f"s_add_u32 s{sT2}, s{sT2}, s{sT1}")
    A(f"s_lshl_b32 s{sT0}, s{sH}, 7"); A(f"s_add_u32 s{sT0}, s{sT0}, s{sT2}"); A(f"s_lshl_b32 s{sT0}, s{sT0}, 11"); A(f"s_add_u32 s{sT0}, s{sT0}, {OFF_PQ}")
    A(f"s_add_u32 s{sT1}, s{sT0}, 4096")
    for i in range(4):
        for k in range(2):
            P.pre.append(VM(("Q", None, i), f"buffer_load_dwordx4 {ar((i*2+k)*4, 4)}, v1, s[{sWS}:{sWS+3}], s{sT0 if i < 2 else sT1} offen offset:{(i&1)*2048 + k*1024}"))
    A("v_min_u32 v8, 55, v0"); A("v_lshlrev_b32 v8, 4, v8")
    A(f"s_lshr_b32 s{sT0}, s2, 3"); A(f"s_and_b32 s{sT0}, s{sT0}, 15"); A(f"s_lshl_b32 s{sT0}, s{sT0}, 2"); A(f"s_add_u32 s{sT0}, s{sT0}, s{sWAVE}")
    A(f"s_mul_i32 s{sT0}, s{sT0}, {16*7168}"); A(f"s_and_b32 s{sT1}, s2, 7"); A(f"s_mul_i32 s{sT1}, s{sT1}, 896"); A(f"s_add_u32 s{sT0}, s{sT0}, s{sT1}")
    CL = 192
    for j in range(16):
        P.pre.append(VM(("W", None, j), f"buffer_load_dwordx4 {vr(CL + 4*j, 4)}, v8, s[{sW}:{sW+3}], s{sT0} offen"))
        if j < 15: A(f"s_add_u32 s{sT0}, s{sT0}, 7168")
    for rb in range(1, 16):
        P.pre.append(WaitVM([("KV", None, rb)]))
        for j in range(8): A(f"v_add_f32 v{KVL+j}, v{KVL+j}, v{KVL + rb*8 + j}")
    for j in range(4): A(f"v_cvt_pk_bf16_f32 v{KVL+8+j}, v{KVL+2*j}, v{KVL+2*j+1}")
    A(f"s_lshl_b32 s{sT0}, s{sWAVE}, 10"); A(f"v_add_u32 v2, s{sT0}, v1")
    A(f"ds_write_b128 v2, {vr(KVL+8,4)}")
    P.pre.append(WaitVM([("Z", None, 0)]))
    for sh in (8, 4, 2, 1):
        for j in range(4): A(f"v_add_f32_dpp v{4+j}, v{4+j}, v{4+j} row_ror:{sh} row_mask:0xf bank_mask:0xf")
    A("v_cvt_pk_bf16_f32 v4, v4, v5"); A("v_cvt_pk_bf16_f32 v5, v6, v7")
    A(f"s_lshr_b32 s{sT0}, s{sWAVE}, 1"); A(f"s_lshl_b32 s{sT0}, s{sT0}, 10"); A(f"s_and_b32 s{sT1}, s{sWAVE}, 1"); A(f"s_lshl_b32 s{sT1}, s{sT1}, 3")
    A(f"s_add_u32 s{sT0}, s{sT0}, s{sT1}"); A(f"v_add_u32 v2, s{sT0}, v1")
    A("ds_write_b64 v2, v[4:5] offset:4096")
    A("s_waitcnt lgkmcnt(0)"); A("s_barrier")
    for k in range(6): A(f"ds_read_b128 {ar(32+4*k,4)}, v1 offset:{k*1024}")
    A("s_waitcnt lgkmcnt(0)")
    A(f"s_lshl_b32 s{sT0}, s{sT2}, 5"); A(f"s_add_u32 s{sT0}, s{sT0}, s{sH}"); A(f"s_lshl_b32 s{sT0}, s{sT0}, 10"); A(f"s_add_u32 s{sT0}, s{sT0}, {OFF_O}")
    for i in range(4):
        P.pre.append(WaitVM([("Q", None, i)]))
        d = 64 + i * 12
        for fh_ in range(2):
            for dt in range(2):
                A(f"{MFMA} {vr(d+4*dt,4)}, {ar(32 + (fh_*2+dt)*4, 4)}, {ar((i*2+fh_)*4, 4)}, {'0' if fh_ == 0 else vr(d+4*dt,4)}")
            A(f"{MFMA} {vr(d+8,4)}, {ar(48 + fh_*4, 4)}, {ar((i*2+fh_)*4, 4)}, {'0' if fh_ == 0 else vr(d+8,4)}")
    for i in range(4):
        d = 64 + i * 12
        A(f"v_add_f32 v{d+8}, {fh(1e-6)}, v{d+8}"); A(f"v_rcp_f32 v{d+8}, v{d+8}")
        for j in range(8): A(f"v_mul_f32 v{d+j}, v{d+j}, v{d+8}")
        for j in range(4): A(f"v_cvt_pk_bf16_f32 v{d+8+j}, v{d+2*j}, v{d+2*j+1}")
        A(f"buffer_store_dwordx4 {vr(d+8,4)}, v1, s[{sWS}:{sWS+3}], s{sT0} offen")
        if i < 3: A(f"s_add_u32 s{sT0}, s{sT0}, 32768")
    X(stamp(1))
    for j in range(8): A(f"v_mov_b32 v{16+j}, 0")
    for j in range(16):
        P.pre.append(WaitVM([("W", None, j)]))
        for d in range(4):
            A(unpack_lo(10, CL + 4*j + d)); A(unpack_hi(11, CL + 4*j + d))
            A(f"v_add_f32 v{16+2*d}, v{16+2*d}, v10"); A(f"v_add_f32 v{17+2*d}, v{17+2*d}, v11")
    A(f"s_lshl_b32 s{sT0}, s{sWAVE}, 11"); A("v_lshlrev_b32 v2, 5, v0"); A(f"v_add_u32 v2, s{sT0}, v2")
    A("ds_write_b128 v2, v[16:19] offset:8192"); A("ds_write_b128 v2, v[20:23] offset:8208")
    A("s_waitcnt lgkmcnt(0)"); A("s_barrier")
    A(f"s_lshl_b32 s{sT0}, s{sWAVE}, 6"); A(f"v_add_u32 v2, s{sT0}, v0"); A("v_lshlrev_b32 v3, 2, v2")
    for c in range(2):
        for w in range(4): A(f"ds_read_b32 v{16 + c*4 + w}, v3 offset:{8192 + w*2048 + c*1024}")
    A("s_waitcnt lgkmcnt(0)")
    for c in range(2):
        A(f"v_add_f32 v{16+c*4}, v{16+c*4}, v{17+c*4}"); A(f"v_add_f32 v{18+c*4}, v{18+c*4}, v{19+c*4}"); A(f"v_add_f32 v{16+c*4}, v{16+c*4}, v{18+c*4}")
    A(f"s_lshr_b32 s{sT0}, s2, 7"); A(f"s_mul_i32 s{sT0}, s{sT0}, 3584"); A(f"s_and_b32 s{sT1}, s2, 7"); A(f"s_mul_i32 s{sT1}, s{sT1}, 448"); A(f"s_add_u32 s{sT0}, s{sT0}, s{sT1}")
    A(f"s_lshl_b32 s{sT0}, s{sT0}, 6"); A(f"s_lshr_b32 s{sT1}, s2, 3"); A(f"s_and_b32 s{sT1}, s{sT1}, 15"); A(f"s_lshl_b32 s{sT1}, s{sT1}, 2"); A(f"s_add_u32 s{sT0}, s{sT0}, s{sT1}")
    A(f"s_add_u32 s{sT0}, s{sT0}, {OFF_CS}"); A(f"s_add_u32 s{sT1}, s{sT0}, {256*64}")
    A("v_lshlrev_b32 v3, 6, v2")
    A(f"buffer_store_dword v16, v3, s[{sWS}:{sWS+3}], s{sT0} offen")
    A(f"s_cmp_ge_u32 s{sWAVE}, 3"); A(f"s_cbranch_scc1 L_{name}_skip")
    A(f"buffer_store_dword v20, v3, s[{sWS}:{sWS+3}], s{sT1} offen")
    A(f"L_{name}_skip:")
    if STAMPS:
        X(stamp(2)); A("s_waitcnt vmcnt(0)"); X(stamp(3)); X(stamp_store(2, 4, sWS))
    A(f"L_{name}_end:"); A("s_endpgm")
    return finish(P, name, 256 + 56, 256, 16384)

def all_kernels():
    return [gen_k0(), gen_k1(), gen_k2(), gen_n64("k3"), gen_k4(), gen_n64("k5")]

HEADER = open("sequential_preLN__linear_kernel_hedgehog__glu_gated_swiglu__prompt.s.ref").read().split("; Override launch")[0] if __name__ == "__main__" else ""

def build(kernels):
    launches = [k[0] for k in kernels]
    out = launches + ['.amdgcn_target "amdgcn-amd-amdhsa--gfx950"', ".text"]
    for k in kernels: out += k[1]
    out += ["L_text_fin:", '.section .rodata,"a"']
    for k in kernels: out += [".p2align 6"] + k[2]
    return "\n".join(out) + "\n"

if __name__ == "__main__":
    out = sys.argv[1] if len(sys.argv) > 1 else "sequential_preLN__linear_kernel_hedgehog__glu_gated_swiglu__prompt.s"
    open(out, "w").write(HEADER + build(all_kernels()))
```

```python
from gen import *
import gen

OFF_XS  = (38 << 20) + (256 << 10)
OFF_QCS = (38 << 20) + (512 << 10)
OFF_KVP = 34 << 20
OFF_KVR = 38 << 20
OFF_ZP  = (38 << 20) + (704 << 10)
OFF_FL  = (38 << 20) + (832 << 10)
OFF_NONCE = (38 << 20) + (840 << 10)
SPIN = 20000

def sw16(a, b): return f"v_permlane16_swap_b32 v{a}, v{b}"
def sw32(a, b): return f"v_permlane32_swap_b32 v{a}, v{b}"

def gen_k1f(name="k1_kernel", abl=()):
    P = Prog(); A = P.pre.append
    def X(l): P.pre.extend(flat(l))
    def V(tag, text): P.pre.append(VM(tag, text))
    def W(tags, extra=""): P.pre.append(WaitVM(tags, extra))
    NT, S = 16, 3
    H1AT = 3 if 'h13' in abl else (1 if 'h11' in abl else 2)
    H2AT = 0 if 'h20' in abl else (2 if 'h22' in abl else 1)
    LOOPST = "ls" in abl
    lsmap = {1: 2, 4: 3, 8: 4, 12: 5, 14: 6}
    def stamp(i, loop=False):
        if LOOPST:
            if loop or i in (0, 1): return gen.stamp(i)
            if i == 2: return gen.stamp(7)
            return []
        return [] if loop else gen.stamp(i)
    XS, WB, WS_ = 16384, 49152, 24576
    WPO = WB + 3 * WS_
    RS = 608
    CSL = 81920
    sXs, sW, sWS, sDBG, sWP, sW13, sWO = 4, 8, 12, 16, 20, 24, 28
    sWAVE, sM, sHD, sRB, sHP, sR, sT0, sT1, sT2, sTT0, sNON, sT3, sCNT = 32, 33, 34, 35, 36, 37, 38, 39, 61, 62, 63, 64, 65
    sXO, sM0X, sM0W, sKX, sKW, sSEL, sDO = 66, 70, 71, 69, 60, 44, 88
    sO = 94
    sMK = 48
    PTR = 40
    vL16, vXD, vWD, vXR, vWR, vXR2 = 1, 2, 4, 6, 8, 12
    FR, ACC, vWP, vST, vCS = 16, 96, 192, 200, 232
    vFM, vFA, vFV, vFL = 224, 225, 226, 227
    def xf(b, tt): return FR + b * 40 + tt * 4
    def wf(b, k): return FR + b * 40 + 16 + k * 4
    def acc(k, tt): return ACC + (k * 4 + tt) * 4
    X(kernel_header(name))
    if "top" in abl and gen.STAMPS: A("s_memtime s[76:77]"); A("s_memrealtime s[78:79]")
    A("s_cmp_ge_u32 s2, 256"); A(f"s_cbranch_scc1 L_{name}_end")
    A(f"s_load_dwordx16 s[{PTR}:{PTR+15}], s[0:1], 0")
    A("s_load_dwordx4 s[56:59], s[0:1], 72")
    X(code_prefetch(name, "L_text_fin", 8, 10, "a[0:1]", 84))
    A("v_lshrrev_b32 v1, 6, v0"); A("v_and_b32 v0, 63, v0")
    A(f"v_readfirstlane_b32 s{sWAVE}, v1")
    X(wg_decode(sRB, sHP, sT0, sT1, sT2, 1, 8, 4))
    A(f"s_lshr_b32 s{sM}, s{sWAVE}, 1"); A(f"s_and_b32 s{sHD}, s{sWAVE}, 1")
    A(f"s_and_b32 s{sT0}, s{sHP}, 3"); A(f"s_lshl_b32 s{sT0}, s{sT0}, 2"); A(f"s_lshr_b32 s{sT1}, s{sHP}, 2"); A(f"s_add_u32 s{sR}, s{sT0}, s{sT1}")
    A(f"s_and_b32 s{sT0}, s{sRB}, 7"); A(f"s_lshl_b32 s{sT0}, s{sT0}, 1"); A(f"s_lshr_b32 s{sT1}, s{sRB}, 3"); A(f"s_add_u32 s{sR}, s{sR}, s{sT0}"); A(f"s_add_u32 s{sR}, s{sR}, s{sT1}")
    if "off" in abl:
        A(f"s_and_b32 s{sO}, s{sHP}, 12"); A(f"s_and_b32 s{sT0}, s{sRB}, 8"); A(f"s_lshr_b32 s{sT0}, s{sT0}, 2"); A(f"s_add_u32 s{sO}, s{sO}, s{sT0}")
    else: A(f"s_mov_b32 s{sO}, 0")
    A(f"s_sub_u32 s{sR}, s{sR}, s{sO}"); A(f"s_and_b32 s{sR}, s{sR}, 15")
    A(f"v_lshlrev_b32 v{vL16}, 4, v0")
    A("v_lshrrev_b32 v12, 3, v0"); A("v_lshrrev_b32 v13, 4, v0"); A("v_xor_b32 v13, v13, v0"); A("v_and_b32 v13, 7, v13")
    A("v_lshlrev_b32 v14, 11, v12")
    A(f"s_lshl_b32 s{sT0}, s{sRB}, 18"); A(f"s_lshl_b32 s{sT1}, s{sWAVE}, 16"); A(f"s_add_u32 s{sT0}, s{sT0}, s{sT1}")
    A(f"v_add_u32 v14, s{sT0}, v14")
    A(f"v_lshl_add_u32 v{vXD}, v13, 4, v14"); A("v_xor_b32 v13, 4, v13"); A(f"v_lshl_add_u32 v{vXD+1}, v13, 4, v14")
    A("v_and_b32 v13, 2, v12"); A("v_xor_b32 v13, v13, v0"); A("v_and_b32 v13, 7, v13")
    A("v_mul_u32_u24 v14, 6144, v12"); A(f"s_lshl_b32 s{sT0}, s{sHP}, 7"); A(f"v_add_u32 v14, s{sT0}, v14")
    A(f"v_lshl_add_u32 v{vWD}, v13, 4, v14"); A("v_xor_b32 v13, 4, v13"); A(f"v_lshl_add_u32 v{vWD+1}, v13, 4, v14")
    for q in range(1, 4): A(f"s_mov_b32 s{sXO+q-1}, {q*15360}")
    A(f"s_lshl_b32 s{sM0X}, s{sWAVE}, 12")
    A(f"s_mul_i32 s{sM0W}, s{sWAVE}, 6144"); A(f"s_add_u32 s{sM0W}, s{sM0W}, {WB}")
    A(f"s_mul_i32 s{sT0}, s{sWAVE}, 6")
    for q in range(6):
        A(f"s_add_u32 s{sT1}, s{sT0}, {q}")
        A(f"s_and_b32 s{sT2}, s{sT1}, 7"); A(f"s_mul_i32 s{sT2}, s{sT2}, {8*6144}")
        A(f"s_lshr_b32 s{sT1}, s{sT1}, 3"); A(f"s_lshl_b32 s{sT1}, s{sT1}, 11")
        A(f"s_add_u32 s{sDO+q}, s{sT1}, s{sT2}")
        if q & 3: A(f"s_sub_u32 s{sDO+q}, s{sDO+q}, {(q&3)*1024}")
    A(f"s_mov_b32 s{sXs+2}, {2048*2048 - 15*128}"); A(f"s_mov_b32 s{sXs+3}, 0x00020000")
    A(f"s_mov_b32 s{sW+2}, {64*6144}"); A(f"s_mov_b32 s{sW+3}, 0x00020000")
    A("s_waitcnt lgkmcnt(0)")
    if "top" in abl and gen.STAMPS: A("s_mov_b32 s80, s76"); A("s_mov_b32 s72, s78"); X(stamp(1))
    else: X(stamp(0))
    def settile(si):
        if si == 0: pre = [f"s_add_u32 s{sKX}, s{sR}, s{sO}", f"s_and_b32 s{sKX}, s{sKX}, 15"]
        else: pre = [f"s_cmp_le_u32 s{sR}, {si-1}", f"s_addc_u32 s{sKX}, s{sO}, {si-1}", f"s_and_b32 s{sKX}, s{sKX}, 15"]
        return [pre + [f"s_lshl_b32 s{sT0}, s{sKX}, 7", f"s_add_u32 s{sXs}, s{PTR}, s{sT0}", f"s_addc_u32 s{sXs+1}, s{PTR+1}, 0"],
                [f"s_mul_i32 s{sT0}, s{sKX}, {64*6144}", f"s_add_u32 s{sW}, s{PTR+2}, s{sT0}", f"s_addc_u32 s{sW+1}, s{PTR+3}, 0"]]
    def dma(si):
        stg = si % S
        L = settile(si)
        for q in range(4):
            grp = [f"s_add_u32 m0, s{sM0X}, {stg*XS}"] if q == 0 else []
            grp.append(VM(("D", si, q), f"buffer_load_dwordx4 v{vXD+(q&1)}, s[{sXs}:{sXs+3}], {'0' if q == 0 else 's%d' % (sXO+q-1)} offen offset:{q*1024} lds"))
            L.append(grp)
        for q in range(6):
            grp = [f"s_add_u32 m0, s{sM0W}, {stg*WS_ + q*1024}"] if q in (0, 4) else []
            grp.append(VM(("D", si, 4 + q), f"buffer_load_dwordx4 v{vWD+(q&1)}, s[{sW}:{sW+3}], s{sDO+q} offen offset:{(q&3)*1024} lds"))
            L.append(grp)
        return L
    X(dma(0)); X(dma(1))
    A("s_bitcmp1_b32 s2, 7")
    A(f"s_cselect_b32 s{sW13}, s{PTR+12}, s{PTR+10}"); A(f"s_cselect_b32 s{sW13+1}, s{PTR+13}, s{PTR+11}")
    A(f"s_mov_b32 s{sW13+2}, {1024*7168}"); A(f"s_mov_b32 s{sW13+3}, 0x00020000")
    X(srd(sWP, PTR + 4, PTR + 5, 65536)); X(srd(sWO, PTR + 6, PTR + 7, 2097152))
    X(srd(sDBG, 56, 57, 256)); X(srd(sWS, 58, 59, WS_BYTES))
    if "c3" in abl:
        A(f"s_and_b32 s{sT0}, s{sHP}, 7"); A(f"s_cmp_ge_u32 s{sT0}, 3"); A(f"s_cbranch_scc1 L_{name}_c3")
        A(f"s_cmp_lg_u32 s{sWAVE}, 0"); A(f"s_cbranch_scc1 L_{name}_c3")
        A(f"s_lshr_b32 s{sT1}, s{sHP}, 2"); A(f"s_lshr_b32 s{sT2}, s{sRB}, 3"); A(f"s_add_u32 s{sT1}, s{sT1}, s{sT2}")
        A(f"s_and_b32 s{sT2}, s{sRB}, 7"); A(f"s_lshl_b32 s{sT2}, s{sT2}, 1"); A(f"s_add_u32 s{sT1}, s{sT1}, s{sT2}"); A(f"s_add_u32 s{sT1}, s{sT1}, 13"); A(f"s_and_b32 s{sT1}, s{sT1}, 15")
        A(f"s_mul_i32 s{sT1}, s{sT1}, {64*6144}"); A(f"s_add_u32 s{sW}, s{PTR+2}, s{sT1}"); A(f"s_addc_u32 s{sW+1}, s{PTR+3}, 0")
        A(f"s_lshl_b32 s{sT0}, s{sT0}, 11"); A(f"s_or_b32 s{sT1}, s{sHP}, 3"); A(f"s_lshl_b32 s{sT1}, s{sT1}, 7"); A(f"s_add_u32 s{sT0}, s{sT0}, s{sT1}")
        A("v_mul_u32_u24 v14, 6144, v0")
        A(f"buffer_load_dwordx2 a[0:1], v14, s[{sW}:{sW+3}], s{sT0} offen offset:60")
        A(f"L_{name}_c3:")
    A(f"s_lshl_b32 s{sT0}, s{sHP}, 1"); A(f"s_add_u32 s{sT0}, s{sT0}, s{sHD}"); A(f"s_lshl_b32 s{sT0}, s{sT0}, 11")
    A(f"s_lshl_b32 s{sT1}, s{sWAVE}, 11"); A(f"s_add_u32 m0, s{sT1}, {WPO}")
    for q in range(2): V(("P", None, 0), f"buffer_load_dwordx4 v{vL16}, s[{sWP}:{sWP+3}], s{sT0} offen offset:{q*1024} lds")
    if "pt" in abl or "ptall" in abl:
        n, base = (8, OFF_KVR) if "ptall" in abl else (3, OFF_QCS)
        A(f"s_lshl_b32 s{sT0}, s2, 2"); A(f"s_add_u32 s{sT0}, s{sT0}, s{sWAVE}"); A(f"s_mul_i32 s{sT0}, s{sT0}, {n*128}"); A(f"s_add_u32 s{sT0}, s{sT0}, {base}")
        A(f"v_min_u32 v14, {n-1}, v0"); A("v_lshlrev_b32 v14, 7, v14")
        V(("T", None, 9), f"buffer_load_dwordx2 a[0:1], v14, s[{sWS}:{sWS+3}], s{sT0} offen offset:60 sc1")
    if "pf1" in abl:
        A(f"s_lshl_b32 s{sT0}, s2, 2"); A(f"s_add_u32 s{sT0}, s{sT0}, s{sWAVE}"); A(f"s_lshl_b32 s{sT0}, s{sT0}, 12"); A(f"s_add_u32 s{sT0}, s{sT0}, {OFF_EX}")
        X(lane16(14))
        for j in range(4): A(f"v_mov_b32 v{96+j}, -1")
        for k in range(4): V(("PF", None, k), f"buffer_store_dwordx4 v[96:99], v14, s[{sWS}:{sWS+3}], s{sT0} offen offset:{k*1024}")
    A(f"s_lshl_b32 s{sTT0}, s{sRB}, 3"); A(f"s_lshl_b32 s{sT1}, s{sM}, 2"); A(f"s_add_u32 s{sTT0}, s{sTT0}, s{sT1}")
    A("v_and_b32 v14, 15, v0"); A("v_lshrrev_b32 v15, 1, v14"); A("v_lshrrev_b32 v16, 4, v0"); A("v_xor_b32 v15, v15, v16")
    A("v_lshlrev_b32 v14, 7, v14"); A(f"s_lshl_b32 s{sT0}, s{sM}, 13"); A(f"s_lshl_b32 s{sT1}, s{sHD}, 12"); A(f"s_add_u32 s{sT0}, s{sT0}, s{sT1}")
    A(f"v_add_u32 v14, s{sT0}, v14")
    A(f"v_lshl_add_u32 v{vXR}, v15, 4, v14"); A(f"v_xor_b32 v{vXR+1}, 64, v{vXR}")
    A(f"v_xor_b32 v{vXR2}, 4096, v{vXR}"); A(f"v_xor_b32 v{vXR2+1}, 4096, v{vXR+1}")
    A("v_lshrrev_b32 v14, 4, v0"); A("v_bfe_u32 v15, v0, 2, 2")
    A("v_lshl_add_u32 v16, v14, 3, v15"); A("v_lshlrev_b32 v16, 7, v16")
    A("v_and_b32 v17, 3, v0"); A("v_lshl_add_u32 v16, v17, 3, v16")
    A("v_and_b32 v14, 1, v14"); A("v_lshrrev_b32 v15, 1, v15"); A("v_lshl_add_u32 v14, v14, 1, v15")
    A(f"s_lshl_b32 s{sT0}, s{sHD}, 1"); A(f"v_xor_b32 v14, s{sT0}, v14")
    A("v_lshl_add_u32 v16, v14, 5, v16")
    A(f"v_add_u32 v{vWR}, {WB}, v16"); A(f"v_xor_b32 v{vWR+1}, 32, v{vWR}")
    A(f"v_add_u32 v{vWR+2}, {2*WS_}, v{vWR}"); A(f"v_add_u32 v{vWR+3}, {2*WS_}, v{vWR+1}")
    vONE = 220
    for j in range(4): A(f"v_mov_b32 v{vONE+j}, 0x3f803f80")
    A("v_and_b32 v14, 15, v0")
    for k in range(6):
        A(f"v_cmp_eq_u32 vcc, {k}, v14"); A(f"v_cndmask_b32 v{vCS+4*k}, 0, v{vONE}, vcc")
        for j in range(1, 4): A(f"v_mov_b32 v{vCS+4*k+j}, v{vCS+4*k}")
    for i, m in enumerate((0x22222222, 0x44444444, 0x88888888)):
        A(f"s_mov_b32 s{sMK+2*i}, {m}"); A(f"s_mov_b32 s{sMK+2*i+1}, {m}")
    for i in range(4): A(f"s_mov_b32 s{sSEL+i}, {0x07060500 | i}")
    A(f"s_lshl_b32 s{sT0}, s{sRB}, 7"); A(f"s_lshl_b32 s{sT1}, s{sHP}, 7"); A(f"s_add_u32 s{sT1}, s{sT1}, 2048")
    A(f"v_mov_b32 v14, s{sT0}"); A(f"v_mov_b32 v15, s{sT1}"); A("v_cmp_gt_u32 vcc, 16, v0"); A(f"v_cndmask_b32 v{vFA}, v15, v14, vcc")
    A("v_and_b32 v16, 15, v0"); A(f"v_lshl_add_u32 v{vFA}, v16, 2, v{vFA}")
    A(f"v_lshl_add_u32 v14, s{sHP}, 2, v14"); A(f"v_lshl_add_u32 v15, s{sRB}, 2, v15"); A("v_cmp_eq_u32 vcc, 0, v0"); A(f"v_cndmask_b32 v{vFM}, v15, v14, vcc")
    A(f"v_mov_b32 v{vFV}, 0")
    A(f"s_or_b32 s{sT0}, s2, s{sWAVE}"); A(f"s_cmp_lg_u32 s{sT0}, 0"); A(f"s_cbranch_scc1 L_{name}_nn")
    A("s_memtime s[96:97]"); A("s_waitcnt lgkmcnt(0)"); A("s_or_b32 s96, s96, 0x01010101"); A("v_mov_b32 v14, s96")
    A(f"s_mov_b32 s{sT0}, {OFF_NONCE}")
    A("s_mov_b64 exec, 1"); A(f"buffer_store_dword v14, v{vFV}, s[{sDBG}:{sDBG+3}], 0 offen sc1")
    A(f"buffer_store_dword v14, v{vFV}, s[{sWS}:{sWS+3}], s{sT0} offen sc1"); A("s_mov_b64 exec, -1")
    A(f"L_{name}_nn:")
    def reads(si, ks, b):
        stg = si % S
        L = []
        for tt in range(4):
            L.append(f"ds_read_b128 {vr(xf(b,tt),4)}, v{(vXR if tt < 2 else vXR2) + ks} offset:{stg*XS + (tt&1)*2048}")
        for k in range(6):
            m, dh = k >> 1, k & 1
            va = vWR + dh + (2 if stg == 2 else 0)
            for t in range(2):
                L.append(f"ds_read_b64_tr_b16 {vr(wf(b,k)+2*t,2)}, v{va} offset:{(stg & 1)*WS_ + m*8192 + (32*ks + 4*t)*128}")
        return L[4:6] + L[0:4] + L[6:]
    W([("D", 0, None)])
    A("s_barrier")
    X(reads(0, 0, 0))
    if "top" not in abl: X(stamp(1))
    ex = {}
    OUT = []
    prex = {}
    wtags = {}
    def EXF(si, ks, groups): ex.setdefault((si, ks), []).extend(groups)
    g = []
    for tt in range(2):
        gr = 208 + 4 * tt
        g.append(f"v_cndmask_b32 v{gr}, v{gr}, v{gr+1}, s[{sMK}:{sMK+1}]"); g.append(f"v_cndmask_b32 v{gr}, v{gr}, v{gr+2}, s[{sMK+2}:{sMK+3}]")
        g.append(f"v_cndmask_b32 v{201+2*tt}, v{gr}, v{gr+3}, s[{sMK+4}:{sMK+5}]")
    g.append("v_mov_b32 v202, v204")
    g.append("v_and_b32 v14, 15, v0"); g.append("v_lshlrev_b32 v15, 4, v14")
    g.append([f"s_lshr_b32 s{sT1}, s{sTT0}, 1", f"s_add_u32 s{sT1}, s{sT1}, s{sHD}", f"s_lshl_b32 s{sT1}, s{sT1}, 12",
              f"s_lshl_b32 s{sT2}, s{sHP}, 8", f"s_add_u32 s{sT1}, s{sT1}, s{sT2}", f"s_add_u32 s{sT1}, s{sT1}, {OFF_XS}"])
    g.append(["s_mov_b32 exec_lo, 0x00f0000f", "s_mov_b32 exec_hi, 0xf0000f00",
              VM(("SS", None, 0), f"buffer_store_dwordx4 v[200:203], v15, s[{sWS}:{sWS+3}], s{sT1} offen sc1"), "s_mov_b64 exec, -1"])
    g.append("v_lshlrev_b32 v14, 10, v14"); g.append("v_and_b32 v15, 48, v0"); g.append("v_lshl_add_u32 v14, v15, 4, v14")
    g.append([f"s_lshl_b32 s{sT1}, s{sHP}, 1", f"s_add_u32 s{sT1}, s{sT1}, s{sHD}", f"s_mul_i32 s{sT1}, s{sT1}, 6144",
              f"s_lshl_b32 s{sT2}, s{sRB}, 4", f"s_add_u32 s{sT1}, s{sT1}, s{sT2}", f"s_add_u32 s{sT1}, s{sT1}, {OFF_QCS}"])
    g.append([f"s_mul_i32 s{sT2}, s{sM}, 3", f"s_lshl_b32 s{sT2}, 0x00070007, s{sT2}", f"s_mov_b32 exec_lo, s{sT2}", f"s_mov_b32 exec_hi, s{sT2}",
              VM(("SS", None, 1), f"buffer_store_dwordx4 v[216:219], v14, s[{sWS}:{sWS+3}], s{sT1} offen sc1"), "s_mov_b64 exec, -1"])
    EXF(1, 0, g)
    EXF(1, 1, ["v_lshrrev_b32 v14, 2, v0", "v_lshlrev_b32 v14, 6, v14", "v_and_b32 v15, 3, v0", "v_lshl_add_u32 v14, v15, 3, v14",
               [f"s_lshl_b32 s{sT1}, s{sWAVE}, 11", f"s_add_u32 s{sT1}, s{sT1}, {WPO}", f"v_add_u32 v14, s{sT1}, v14"]] +
              [f"ds_read_b64_tr_b16 {vr(vWP + ft*4 + 2*t, 2)}, v14 offset:{t*1024 + ft*32}" for ft in range(2) for t in range(2)])
    SPUB, SFL, SCHK = 3, 7, 8
    wtags[SPUB] = [("SS", None, None)]
    nload = f"buffer_load_dword v{vFL}, v{vFV}, s[{sDBG}:{sDBG+3}], 0 offen sc1"
    EXF(1, 1, [VM(("NO", None, 0), nload)])
    prex[(3, 0)] = [WaitVM([("NO", None, 0)]), f"v_readfirstlane_b32 s{sNON}, v{vFL}", f"s_cmp_eq_u32 s{sNON}, 0", f"s_cbranch_scc1 L_{name}_nsp", f"L_{name}_nok:"]
    OUT.extend([f"L_{name}_nsp:", f"s_mov_b32 s{sCNT}, 0", f"L_{name}_nsp2:", "s_sleep 2", nload, "s_waitcnt vmcnt(0)", f"v_readfirstlane_b32 s{sNON}, v{vFL}",
                f"s_add_u32 s{sCNT}, s{sCNT}, 1", f"s_cmp_ge_u32 s{sCNT}, {SPIN}", f"s_cbranch_scc1 L_{name}_nok",
                f"s_cmp_eq_u32 s{sNON}, 0", f"s_cbranch_scc1 L_{name}_nsp2", f"s_branch L_{name}_nok"])
    EXF(3, 0, [f"v_mov_b32 v{vFV}, s{sNON}", f"s_mov_b32 s{sKW}, {OFF_FL}"])
    EXF(SPUB, 1, [[f"s_cmp_eq_u32 s{sWAVE}, 0", f"s_cbranch_scc1 L_{name}_pf", f"L_{name}_pfr:"]])
    OUT.extend([f"L_{name}_pf:", "s_mov_b64 exec, 3", f"buffer_store_dword v{vFV}, v{vFM}, s[{sWS}:{sWS+3}], s{sKW} offen sc1", "s_mov_b64 exec, -1", f"s_branch L_{name}_pfr"])
    fload = f"buffer_load_dword v{vFL}, v{vFA}, s[{sWS}:{sWS+3}], s{sKW} offen sc1"
    EXF(SFL, 0, [VM(("FL", None, 0), fload)])
    prex[(SCHK, 0)] = [WaitVM([("FL", None, 0)]), f"v_cmp_ne_u32 vcc, v{vFL}, v{vFV}", f"s_cbranch_vccnz L_{name}_fsp", f"L_{name}_fok:"]
    OUT.extend([f"L_{name}_fsp:", f"s_mov_b32 s{sCNT}, 0", f"L_{name}_fsp2:", "s_sleep 1", fload, "s_waitcnt vmcnt(0)", f"v_cmp_ne_u32 vcc, v{vFL}, v{vFV}",
                f"s_add_u32 s{sCNT}, s{sCNT}, 1", f"s_cmp_ge_u32 s{sCNT}, {SPIN}", f"s_cbranch_scc1 L_{name}_fok",
                f"s_cbranch_vccnz L_{name}_fsp2", f"s_branch L_{name}_fok"])
    side_base = [f"s_lshr_b32 s{sT3}, s2, 3", f"s_and_b32 s{sT3}, s{sT3}, 15", f"s_lshl_b32 s{sT3}, s{sT3}, 2", f"s_add_u32 s{sT3}, s{sT3}, s{sWAVE}",
                 f"s_mul_i32 s{sT3}, s{sT3}, {16*7168}", f"s_and_b32 s{sT1}, s2, 7", f"s_mul_i32 s{sT1}, s{sT1}, 896", f"s_add_u32 s{sT3}, s{sT3}, s{sT1}"]
    n13 = 42 if ("tf" in abl or "tg" in abl) else 56
    t13 = [[f"s_and_b32 s{sT1}, s2, 63", f"s_lshl_b32 s{sT1}, s{sT1}, 2", f"s_add_u32 s{sT1}, s{sT1}, s{sWAVE}", f"s_mul_i32 s{sT1}, s{sT1}, {n13*128}",
            f"s_bfe_u32 s{sT2}, s2, 0x10006", f"s_mul_i32 s{sT2}, s{sT2}, {512*7168}", f"s_add_u32 s{sT1}, s{sT1}, s{sT2}",
            f"v_min_u32 v14, {n13-1}, v0", "v_lshlrev_b32 v14, 7, v14"],
           VM(("T", None, 0), f"buffer_load_dwordx2 a[0:1], v14, s[{sW13}:{sW13+3}], s{sT1} offen offset:60")]
    if "t13all" in abl: t13 += [[f"s_add_u32 s{sT1}, s{sT1}, {256*7168}", VM(("T", None, 1), f"buffer_load_dwordx2 a[0:1], v14, s[{sW13}:{sW13+3}], s{sT1} offen offset:60")]]
    for key, n in (("te3", 14), ("te2", 28)):
        if key in abl:
            t13 += [[f"s_and_b32 s{sT1}, s2, 63", f"s_lshl_b32 s{sT1}, s{sT1}, 2", f"s_add_u32 s{sT1}, s{sT1}, s{sWAVE}", f"s_mul_i32 s{sT1}, s{sT1}, {n*128}",
                     f"s_add_u32 s{sT1}, s{sT1}, s{sT2}", f"s_add_u32 s{sT1}, s{sT1}, {256*7168}", f"v_min_u32 v14, {(n-1)*128}, v14"],
                    VM(("T", None, 1), f"buffer_load_dwordx2 a[0:1], v14, s[{sW13}:{sW13+3}], s{sT1} offen offset:60")]
    touch = [
             [f"s_lshl_b32 s{sT1}, s2, 2", f"s_add_u32 s{sT1}, s{sT1}, s{sWAVE}", f"s_lshl_b32 s{sT1}, s{sT1}, 11",
              "v_and_b32 v14, 15, v0", "v_lshlrev_b32 v14, 7, v14"],
             VM(("T", None, 2), f"buffer_load_dwordx2 a[0:1], v14, s[{sWO}:{sWO+3}], s{sT1} offen offset:60")]
    SIDE = "side" in abl
    if "t13" in abl or "t13all" in abl: touch = touch + t13
    EXF(3, 0, [side_base])
    if 'rf' in abl: EXF(7, 1, code_refetch(name, 'rf', f'L_{name}_fin', 2, 14, 'a[0:1]', 56, sWAVE))
    g = [[f"s_lshr_b32 s{sT1}, s{sTT0}, 1", f"s_add_u32 s{sT1}, s{sT1}, s{sHD}", f"s_lshl_b32 s{sT1}, s{sT1}, 12", f"s_add_u32 s{sT1}, s{sT1}, {OFF_XS}",
          f"s_xor_b32 s{sT2}, s{sT1}, 4096"]]
    for p in range(2):
        for i in range(4):
            g.append(VM(("RS", None, p), f"buffer_load_dwordx4 {vr(vST + p*16 + i*4, 4)}, v{vL16}, s[{sWS}:{sWS+3}], s{sT1 if p == 0 else sT2} offen offset:{i*1024} sc1"))
    EXF(SCHK, 0, g)
    g = [[f"s_lshl_b32 s{sT1}, s{sHP}, 1", f"s_add_u32 s{sT1}, s{sT1}, s{sHD}", f"s_mul_i32 s{sT1}, s{sT1}, 6144", f"s_add_u32 s{sT1}, s{sT1}, {OFF_QCS}",
          f"s_add_u32 s{sT2}, s{sT1}, 4096"]]
    for k in range(6):
        g.append(VM(("QC", None, k), f"buffer_load_dwordx4 {vr(vCS + k*4, 4)}, v{vL16}, s[{sWS}:{sWS+3}], s{sT1 if k < 4 else sT2} offen offset:{(k&3)*1024} sc1"))
    EXF(SCHK, 0, g)
    wtags[9] = [("RS", None, 1), ("QC", None, 5)]
    def KP(tt): return vST + (tt >> 1) * 16 + 4 + 2 * (tt & 1)
    def CR(tt): return vST + (tt >> 1) * 16 + 8 + (tt & 1)
    def CC(p): return vST + p * 16 + 10
    red = []
    strs = []
    for p in range(2):
        b = vST + p * 16
        s = []
        for j in range(4): s.append(f"v_add_f32 v{b+j}, v{b+j}, v{b+4+j}")
        for j in range(4): s.append(f"v_add_f32 v{b+8+j}, v{b+8+j}, v{b+12+j}")
        for j in range(4): s.append(f"v_add_f32 v{b+j}, v{b+j}, v{b+8+j}")
        s += [sw16(b, b + 1), sw16(b + 2, b + 3), f"v_add_f32 v{b+1}, v{b}, v{b+1}", f"v_add_f32 v{b+3}, v{b+2}, v{b+3}",
              sw32(b + 1, b + 3), f"v_add_f32 v{b+1}, v{b+1}, v{b+3}", f"v_mov_b32 v{b+3}, v{b+1}", sw32(b + 1, b + 3),
              f"v_mov_b32 v{b}, v{b+1}", f"v_mov_b32 v{b+2}, v{b+3}", sw16(b, b + 1), sw16(b + 2, b + 3)]
        fin = []
        for t in range(2):
            tt = 2 * p + t
            sm, sq, nm, rs = b + 2 * t, b + 2 * t + 1, KP(tt), KP(tt) + 1
            fin.append([f"v_mul_f32 v{nm}, {fh(-1.0/1024)}, v{sm}", f"v_mul_f32 v{sq}, {fh(1.0/1024)}, v{sq}", f"v_fma_f32 v{sq}, -v{nm}, v{nm}, v{sq}",
                        f"v_max_f32 v{sq}, 0, v{sq}", f"v_add_f32 v{sq}, {fh(1e-5)}, v{sq}", f"v_rsq_f32 v{rs}, v{sq}", f"v_mul_f32 v{CR(tt)}, {fh(LOG2E)}, v{rs}"])
        s += zip_streams(*fin)
        s.append(f"v_cndmask_b32 v{CC(p)}, v{CR(2*p)}, v{CR(2*p+1)}, s[{sMK}:{sMK+1}]")
        strs.append(s)
    red += [[f"s_mov_b32 s{sMK}, 0", f"s_mov_b32 s{sMK+1}, -1"]] + zip_streams(*strs)
    for sh in (8, 4, 2, 1):
        for j in range(24): red.append(f"v_add_f32_dpp v{vCS+j}, v{vCS+j}, v{vCS+j} row_ror:{sh} row_mask:0xf bank_mask:0xf")
    vIE, vIV, vIR, vAP, vAM, vNON = 212, 213, 214, 228, 2, 15
    prep = ["v_and_b32 v14, 15, v0", [f"s_lshl_b32 s{sT1}, s{sM}, 6", f"v_add_u32 v14, s{sT1}, v14"], f"v_mul_u32_u24 v14, {RS}, v14",
            f"v_and_b32 v{vIV}, 48, v0", [f"s_lshl_b32 s{sT1}, s{sHD}, 7", f"v_add3_u32 v{vIE}, v14, v{vIV}, s{sT1}"],
            f"v_lshrrev_b32 v{vIR}, 2, v{vIV}", [f"s_lshl_b32 s{sT1}, s{sHD}, 5", f"s_add_u32 s{sT1}, s{sT1}, 512", f"v_add3_u32 v{vIR}, v14, v{vIR}, s{sT1}"],
            "v_and_b32 v14, 1, v0", "v_cmp_eq_u32 vcc, 0, v14", "v_mov_b32 v14, 0x3f803f80",
            f"v_cndmask_b32 v{vAP}, 0, v14, vcc", f"v_cndmask_b32 v{vAM}, v14, 0, vcc"]
    prep += [f"v_mov_b32 v{vAP+j}, v{vAP}" for j in range(1, 4)] + [f"v_mov_b32 v{vAM+j}, v{vAM}" for j in range(1, 4)]
    prep += [f"v_mov_b32 v{vNON}, s{sNON}"]
    red = red + prep
    phases = [(9, 1)] + [(si, ks) for si in range(10, 16) for ks in range(2)]
    wts = [16] * 8 + [20, 28, 28, 28, 40]
    tot = sum(wts); k0 = 0; accw = 0
    cum = [0]
    for x in red: cum.append(cum[-1] + icost(x))
    for ph, wt in zip(phases, wts):
        accw += wt
        k1 = k0
        while k1 < len(red) and cum[k1 + 1] <= cum[-1] * accw / tot + 1e-6: k1 += 1
        EXF(*ph, red[k0:k1]); k0 = k1
    assert k0 == len(red)
    aSD = 0
    sidef = {(13, 1): touch}
    for si in range(NT):
        for ks in range(2):
            b = ks
            mf = []
            for k in range(6):
                for tt in (range(4) if k % 2 == 0 else range(3, -1, -1)):
                    mf.append(f"{MFMA} {vr(acc(k,tt),4)}, {vr(wf(b,k),4)}, {vr(xf(b,tt),4)}, {'0' if (si == 0 and ks == 0) else vr(acc(k,tt),4)}")
            def C(r): return '0' if ks == 0 else vr(r, 4)
            if si == 0:
                for tt in range(2):
                    mf.append(f"{MFMA} {vr(200+4*tt,4)}, {vr(vONE,4)}, {vr(xf(b,tt),4)}, {C(200+4*tt)}")
                    mf.append(f"{MFMA} {vr(208+4*tt,4)}, {vr(xf(b,tt),4)}, {vr(xf(b,tt),4)}, {C(208+4*tt)}")
                for k in range(6):
                    mf.append(f"{MFMA} v[216:219], {vr(wf(b,k),4)}, {vr(vCS+4*k,4)}, {'0' if (ks == 0 and k == 0) else 'v[216:219]'}")
            if ks == 0: pre = ["s_waitcnt lgkmcnt(0)"]
            else:
                tags = ([("D", si + 1, None)] if si + 1 < NT else []) + wtags.get(si, [])
                if si == 0: tags.append(("P", None, 0))
                pre = [WaitVM(tags, " lgkmcnt(0)") if tags else "s_waitcnt lgkmcnt(0)", "s_barrier"]
            pre = pre + prex.get((si, ks), [])
            rd = reads(si, 1, 1) if ks == 0 else (reads(si + 1, 0, 0) if si + 1 < NT else [])
            dl = []
            if ks == 0:
                if si == 0: dl = dma(2)
                elif si + 2 < NT: dl = dma(si + 2)[7:]
            elif si + 3 < NT: dl = dma(si + 3)[:7]
            dl = dl + sidef.get((si, ks), [])
            if "mfma" in abl: mf = ["s_nop 0"] * len(mf)
            if "rd" in abl: rd = []
            if "bar" in abl: pre = [x for x in pre if x != "s_barrier"]
            e = ex.get((si, ks), [])
            body = pack_gaps(mf, rd, dl, e, last=19, ex_first=(6 if (si, ks) == (1, 0) else 0))
            if ks == 0 and si in lsmap: X(stamp(lsmap[si], True))
            X(pre); X(body)
    X(stamp(2))
    def pk(op, d, a, b_, c=None, sel=None, selhi=None, neg=None):
        t = f"{op} {vr(d,2)}, {vr(a,2)}, {vr(b_,2)}" + (f", {vr(c,2)}" if c is not None else "")
        if sel: t += f" op_sel:{sel} op_sel_hi:{selhi}"
        if neg: t += f" neg_lo:{neg} neg_hi:{neg}"
        return t
    def lnfix(m, tt):
        L = []
        for dh in range(2):
            a = acc(2*m + dh, tt); c = vCS + 4 * (2*m + dh)
            for j in (0, 2): L.append(pk("v_pk_fma_f32", a + j, c + j, KP(tt), a + j, "[0,0,0]", "[1,0,1]"))
        return L
    def pack(d, a0, a1):
        return [f"v_cvt_pk_bf16_f32 v{d}, v{a0}, v{a0+1}", f"v_cvt_pk_bf16_f32 v{d+1}, v{a0+2}, v{a0+3}",
                f"v_cvt_pk_bf16_f32 v{d+2}, v{a1}, v{a1+1}", f"v_cvt_pk_bf16_f32 v{d+3}, v{a1+2}, v{a1+3}"]
    PB = 16
    TB = 48
    MX = 64
    def pmf(m, tt):
        q = acc(2*m, tt)
        return lnfix(m, tt) + pack(q, q, acc(2*m + 1, tt)) + [f"{MFMA} {vr(PB + tt*8 + 4*ft, 4)}, {vr(vWP + 4*ft, 4)}, {vr(q, 4)}, 0" for ft in range(2)]
    def maxes(tt):
        s, mx, mn = PB + tt * 8, MX + 2 * tt, MX + 2 * tt + 1
        a = [f"v_max3_f32 v{mx}, v{s}, v{s+1}, v{s+2}", f"v_max3_f32 v{mx}, v{mx}, v{s+3}, v{s+4}", f"v_max3_f32 v{mx}, v{mx}, v{s+5}, v{s+6}", f"v_max_f32 v{mx}, v{mx}, v{s+7}"]
        b_ = [f"v_max3_f32 v{mn}, -v{s}, -v{s+1}, -v{s+2}", f"v_max3_f32 v{mn}, v{mn}, -v{s+3}, -v{s+4}", f"v_max3_f32 v{mn}, v{mn}, -v{s+5}, -v{s+6}", f"v_max_f32 v{mn}, v{mn}, -v{s+7}"]
        return zip_streams(a, b_)
    def xmax(p):
        a, b_ = MX + 4 * p, MX + 4 * p + 2
        return [sw16(a, a + 1), sw16(b_, b_ + 1), f"v_max_f32 v{a}, v{a}, v{a+1}", f"v_max_f32 v{b_}, v{b_}, v{b_+1}",
                sw32(a, b_), f"v_max_f32 v{a}, v{a}, v{b_}", f"v_mul_f32 v{a+1}, -v{a}, v{CC(p)}", f"v_mul_f32 v{b_+1}, -v{a}, v{CC(p)}",
                sw32(a + 1, b_ + 1), f"v_mov_b32 v{a}, v{a+1}", f"v_mov_b32 v{b_}, v{b_+1}", sw16(a, a + 1), sw16(b_, b_ + 1)]
    def exps(tt, dp, dn):
        s, t, mx = PB + tt * 8, TB + (tt & 1) * 8, MX + 2 * tt
        cp, cs_ = CR(tt) & ~1, CR(tt) & 1
        L = []
        for j in range(0, 8, 2): L.append(pk("v_pk_fma_f32", t + j, s + j, cp, mx, f"[0,{cs_},1]", f"[1,{cs_},1]", "[1,0,0]"))
        for j in range(0, 8, 2): L.append(pk("v_pk_fma_f32", s + j, s + j, cp, mx, f"[0,{cs_},0]", f"[1,{cs_},0]"))
        for j in range(8): L.append(f"v_exp_f32 v{s+j}, v{s+j}")
        for j in range(8): L.append(f"v_exp_f32 v{t+j}, v{t+j}")
        return L + pack(dp, s, s + 4) + pack(dn, t, t + 4)
    SM = 72
    for tt in range(4): X(pmf(1, tt))
    X(zip_streams(*[lnfix(2, tt) for tt in range(2)]))
    X(zip_streams(maxes(0), maxes(1))); X(zip_streams(maxes(2), maxes(3)))
    X(zip_streams(xmax(0), xmax(1), lnfix(2, 2) + lnfix(2, 3)))
    def vside(tt):
        sm = SM + 4 * tt; a0, a1 = acc(4, tt), acc(5, tt); t = TB + (tt & 1) * 8
        L = [f"v_rcp_f32 v{sm}, v{sm}", f"v_rcp_f32 v{sm+1}, v{sm+1}",
             pk("v_pk_mul_f32", sm + 2, sm, KP(tt), None, "[0,1]", "[1,1]"), f"v_cvt_pk_bf16_f32 v{sm}, v{sm}, v{sm+1}",
             f"ds_write_b32 v{vIR}, v{sm} offset:{tt*16*RS}"]
        for j, a in enumerate((a0, a0 + 2, a1, a1 + 2)): L.append(pk("v_pk_mul_f32", t + 2 * j, a, sm + 2, None, "[0,0]", "[1,0]"))
        for j, a in enumerate((a0, a0 + 2, a1, a1 + 2)): L.append(pk("v_pk_mul_f32", a, a, sm + 2, None, "[0,1]", "[1,1]"))
        L += pack(t, t, t + 4) + [f"ds_write_b128 v{vIE}, {vr(t,4)} offset:{tt*16*RS + 256}"]
        L += pack(a0, a0, a1) + [f"ds_write_b128 v{vIE}, {vr(a0,4)} offset:{tt*16*RS + 320}"]
        return L
    for tt in range(4):
        dp, dn = acc(2, tt), acc(3, tt)
        X(exps(tt, dp, dn))
        A(f"{MFMA} {vr(SM+4*tt,4)}, {vr(vAP,4)}, {vr(dp,4)}, 0"); A(f"{MFMA} {vr(SM+4*tt,4)}, {vr(vAM,4)}, {vr(dn,4)}, {vr(SM+4*tt,4)}")
        A(f"ds_write_b128 v{vIE}, {vr(dp,4)} offset:{tt*16*RS}"); A(f"ds_write_b128 v{vIE}, {vr(dn,4)} offset:{tt*16*RS + 64}")
        if tt >= 1: X(vside(tt - 1))
    A("v_lshrrev_b32 v6, 2, v0"); A(f"v_mul_u32_u24 v6, {RS}, v6"); A("v_and_b32 v7, 3, v0"); A("v_lshl_add_u32 v6, v7, 3, v6")
    A(f"s_lshl_b32 s{sT0}, s{sM}, 5"); A(f"v_add_u32 v7, s{sT0}, v6")
    A(f"s_lshl_b32 s{sT0}, s{sWAVE}, 6"); A(f"v_add_u32 v6, s{sT0}, v6")
    A(f"v_add_u32 v10, {64*RS}, v6"); A(f"v_add_u32 v11, {64*RS}, v7")
    X(vside(3))
    A("s_waitcnt lgkmcnt(0)"); A("s_barrier")
    X(stamp(3))
    KF = 16
    for ks in range(4):
        for x, (va, c) in enumerate(((6, 0), (6, 256), (6, 32), (6, 288), (7, 512))):
            xx = (0, 2, 1, 3, 4)[x]
            for t in range(2): A(f"ds_read_b64_tr_b16 {vr(KF + ks*20 + xx*4 + 2*t, 2)}, v{va + 4*(ks>>1)} offset:{(32*(ks&1) + 16*t)*RS + c}")
    KV = acc(2, 0)
    A(f"s_lshl_b32 s{sT0}, s{sHP}, 4"); A(f"s_lshl_b32 s{sT1}, s{sWAVE}, 2"); A(f"s_add_u32 s{sT0}, s{sT0}, s{sT1}"); A(f"s_lshl_b32 s{sT0}, s{sT0}, 4")
    A(f"s_add_u32 s{sT0}, s{sT0}, s{sRB}"); A(f"s_lshl_b32 s{sT0}, s{sT0}, 10"); A(f"s_add_u32 s{sT0}, s{sT0}, {OFF_KVP}")
    for k in range(1, 4): A(f"s_add_u32 s{sDO+k}, s{sT0}, {k*16384}")
    A(f"s_lshl_b32 s{sT2}, s{sHP}, 1"); A(f"s_add_u32 s{sT2}, s{sT2}, s{sM}"); A(f"s_lshl_b32 s{sT2}, s{sT2}, 4"); A(f"s_add_u32 s{sT2}, s{sT2}, s{sRB}")
    A(f"s_lshl_b32 s{sT2}, s{sT2}, 1"); A(f"s_add_u32 s{sT2}, s{sT2}, s{sHD}"); A(f"s_lshl_b32 s{sT2}, s{sT2}, 7"); A(f"s_add_u32 s{sT2}, s{sT2}, {OFF_ZP}")
    A(f"s_lshl_b32 s{sT1}, 0x00010001, s{sHD}")
    A("v_and_b32 v8, 48, v0")
    lq = lnfix(0, 0) + lnfix(0, 1) + lnfix(0, 2) + lnfix(0, 3)
    for ks in range(4):
        A(f"s_waitcnt lgkmcnt({min(15, (3-ks)*10)})")
        for ft in range(2):
            for dt in range(3):
                d = KV + (dt * 2 + ft) * 4
                A(f"{MFMA} {vr(d,4)}, {vr(KF + ks*20 + ft*4, 4)}, {vr(KF + ks*20 + 8 + dt*4, 4)}, {'0' if ks == 0 else vr(d,4)}")
    X(lq[:6])
    for k in (0, 2, 1, 3):
        for j in range(4): A(f"v_perm_b32 v{KV+4*k+j}, v{KV+4*k+j}, v{vNON}, s{sSEL + j}")
        A(f"buffer_store_dwordx4 {vr(KV+4*k,4)}, v{vL16}, s[{sWS}:{sWS+3}], s{sT0 if k == 0 else sDO+k} offen sc1")
    for j in range(16, 24): A(f"v_perm_b32 v{KV+j}, v{KV+j}, v{vNON}, s{sSEL + (j&3)}")
    A(f"s_mov_b32 exec_lo, s{sT1}"); A(f"s_mov_b32 exec_hi, s{sT1}")
    for ft in range(2): A(f"buffer_store_dwordx4 {vr(KV+16+4*ft,4)}, v8, s[{sWS}:{sWS+3}], s{sT2} offen offset:{ft*64} sc1")
    A("s_mov_b64 exec, -1")
    X(stamp(4))
    X(lq[6:])
    for tt in range(4):
        q = acc(0, tt)
        X(pack(q, q, acc(1, tt)))
        for ft in range(2): A(f"{MFMA} {vr(PB + tt*8 + 4*ft, 4)}, {vr(vWP + 4*ft, 4)}, {vr(q, 4)}, 0")
    A(f"s_mov_b32 s{sMK+2}, 0x0c0c0400"); A(f"s_mov_b32 s{sMK+3}, 0x04000c0c")
    A("v_lshrrev_b32 v6, 4, v0"); A("v_lshlrev_b32 v6, 10, v6"); A("v_and_b32 v7, 15, v0"); A("v_lshl_add_u32 v6, v7, 4, v6")
    A(f"s_lshl_b32 s{sT0}, s{sHP}, 4"); A(f"s_add_u32 s{sT0}, s{sT0}, s{sRB}"); A(f"s_lshl_b32 s{sT0}, s{sT0}, 14")
    A(f"s_lshl_b32 s{sT1}, s{sWAVE}, 8"); A(f"s_add_u32 s{sT0}, s{sT0}, s{sT1}"); A(f"s_add_u32 s{sT0}, s{sT0}, {OFF_KVP}")
    for j in range(1, 4): A(f"s_add_u32 s{sDO+j}, s{sT0}, {j*4096}")
    X(zip_streams(maxes(0), maxes(1))); X(zip_streams(maxes(2), maxes(3)))
    X(zip_streams(xmax(0), xmax(1)))
    EQ = acc(4, 0)
    H1, ZL = 232, 72
    loads1 = [f"buffer_load_dwordx4 {vr(H1+4*j,4)}, v6, s[{sWS}:{sWS+3}], s{sT0 if j == 0 else sDO+j} offen sc1" for j in range(4)]
    for tt in range(4):
        X(exps(tt, EQ + tt * 8, EQ + tt * 8 + 4))
        if tt == H1AT: X(loads1)
    X(stamp(5))
    def tagcheck(quads, t1, t2, accr):
        L = []
        for i, q in enumerate(quads):
            L += [f"v_perm_b32 v{t1}, v{q+1}, v{q}, s{sMK+2}", f"v_perm_b32 v{t2}, v{q+3}, v{q+2}, s{sMK+3}"]
            if i == 0: L += [f"v_or_b32 v{t1}, v{t1}, v{t2}", f"v_xor_b32 v{accr}, v{t1}, v{vNON}"]
            else: L += [f"v_or_b32 v{t1}, v{t1}, v{t2}", f"v_xor_b32 v{t1}, v{t1}, v{vNON}", f"v_or_b32 v{accr}, v{accr}, v{t1}"]
        L += [f"v_cmp_ne_u32 vcc, 0, v{accr}"]
        return L
    def polled(lbl, loads, quads, wait):
        A(f"s_mov_b32 s{sKW}, 0")
        X([wait])
        A(f"L_{name}_{lbl}:")
        X(tagcheck(quads, 12, 13, 14))
        A(f"s_cbranch_vccz L_{name}_{lbl}x")
        A(f"s_add_u32 s{sKW}, s{sKW}, 1"); A(f"s_cmp_ge_u32 s{sKW}, {SPIN}"); A(f"s_cbranch_scc1 L_{name}_{lbl}x")
        A("s_mov_b64 exec, vcc")
        if SLEEP: A(f"s_sleep {SLEEP}")
        X(loads)
        A("s_mov_b64 exec, -1")
        A("s_waitcnt vmcnt(0)")
        A(f"s_branch L_{name}_{lbl}")
        A(f"L_{name}_{lbl}x:")
    polled("h1", loads1, [H1 + 4 * j for j in range(4)], "s_waitcnt vmcnt(0)")
    for j in range(16): A(f"v_and_b32 v{H1+j}, 0xffffff00, v{H1+j}")
    for j in (0, 2): A(pk("v_pk_add_f32", H1 + j, H1 + j, H1 + 4 + j)); A(pk("v_pk_add_f32", H1 + 8 + j, H1 + 8 + j, H1 + 12 + j))
    for j in (0, 2): A(pk("v_pk_add_f32", H1 + j, H1 + j, H1 + 8 + j))
    X(zip_streams(*[xreduce(H1 + j, H1 + 4 + j, "v_add_f32") for j in range(4)]))
    for j in range(4): A(f"v_perm_b32 v{H1+j}, v{H1+j}, v{vNON}, s{sSEL+j}")
    A(f"s_lshl_b32 s{sT0}, s{sHP}, 4"); A(f"s_add_u32 s{sT0}, s{sT0}, s{sRB}"); A(f"s_lshl_b32 s{sT0}, s{sT0}, 10")
    A(f"s_lshl_b32 s{sT1}, s{sWAVE}, 8"); A(f"s_add_u32 s{sT0}, s{sT0}, s{sT1}"); A(f"s_add_u32 s{sT0}, s{sT0}, {OFF_KVR}")
    A("s_mov_b64 exec, 0xffff")
    A(f"buffer_store_dwordx4 {vr(H1,4)}, v{vL16}, s[{sWS}:{sWS+3}], s{sT0} offen sc1")
    A("s_mov_b64 exec, -1")
    X(stamp(6))
    A(f"s_lshl_b32 s{sT1}, s{sHP}, 1"); A(f"s_add_u32 s{sT1}, s{sT1}, s{sHD}"); A(f"s_lshl_b32 s{sT2}, s{sT1}, 12"); A(f"s_add_u32 s{sT2}, s{sT2}, {OFF_ZP}")
    loadsz = [f"buffer_load_dwordx4 {vr(ZL+4*j,4)}, v{vL16}, s[{sWS}:{sWS+3}], s{sT2} offen offset:{j*1024} sc1" for j in range(4)]
    for t in loadsz: V(("Z", None, 0), t)
    A("v_min_u32 v7, 55, v0"); A("v_lshlrev_b32 v7, 4, v7")
    SD = 96
    def sideload(j): return [VM(("W13", None, j), f"buffer_load_dwordx4 {vr(SD+4*j,4)}, v7, s[{sW13}:{sW13+3}], s{sT3} offen"), f"s_add_u32 s{sT3}, s{sT3}, 7168"]
    if SIDE:
        for j in range(16): X(sideload(j))
    A("v_and_b32 v6, 3, v0"); A("v_lshlrev_b32 v6, 4, v6")
    A("v_and_b32 v8, 4, v0"); A("v_lshl_add_u32 v6, v8, 5, v6")
    A("v_and_b32 v8, 8, v0"); A("v_lshl_add_u32 v6, v8, 8, v6")
    A("v_and_b32 v8, 48, v0"); A("v_lshl_add_u32 v6, v8, 5, v6")
    A(f"s_lshl_b32 s{sDO}, s{sT1}, 13"); A(f"s_add_u32 s{sDO}, s{sDO}, {OFF_KVR}"); A(f"s_add_u32 s{sDO+1}, s{sDO}, 4096")
    H2 = 200
    loads2 = [f"buffer_load_dwordx4 {vr(H2 + ((fh_*2+dt)*2+h)*4, 4)}, v6, s[{sWS}:{sWS+3}], s{sDO+fh_} offen offset:{dt*64 + h*256} sc1" for fh_ in range(2) for dt in range(2) for h in range(2)]
    if H2AT == 0:
        for t in loads2: V(("H2", None, 0), t)
    A(f"s_lshl_b32 s{sT0}, s{sWAVE}, 11"); A(f"s_add_u32 s{sT0}, s{sT0}, {WPO}")
    A(f"v_lshl_add_u32 v9, v0, 3, s{sT0}"); A(f"v_add_u32 v8, s{sT0}, v8")
    polled("hz", loadsz, [ZL + 4 * j for j in range(4)], WaitVM([("Z", None, 0)]))
    for j in range(16): A(f"v_and_b32 v{ZL+j}, 0xffffff00, v{ZL+j}")
    for j in (0, 2): A(pk("v_pk_add_f32", ZL + j, ZL + j, ZL + 4 + j)); A(pk("v_pk_add_f32", ZL + 8 + j, ZL + 8 + j, ZL + 12 + j))
    for j in (0, 2): A(pk("v_pk_add_f32", ZL + j, ZL + j, ZL + 8 + j))
    X(zip_streams(*[xreduce(ZL + j, ZL + 4 + j, "v_add_f32") for j in range(4)]))
    A(f"v_cvt_pk_bf16_f32 v{ZL}, v{ZL}, v{ZL+1}"); A(f"v_cvt_pk_bf16_f32 v{ZL+1}, v{ZL+2}, v{ZL+3}")
    A(f"ds_write_b64 v9, {vr(ZL,2)}")
    if H2AT == 1:
        for t in loads2: V(("H2", None, 0), t)
    ZQ = 88
    for fh_ in range(2): A(f"ds_read_b128 {vr(ZQ+4*fh_,4)}, v8 offset:{fh_*64}")
    A("v_and_b32 v9, 1, v0"); A("v_cmp_eq_u32 vcc, 0, v9")
    CA = 56
    def sidesum(j):
        L = [WaitVM([("W13", None, j)])]
        o = CA if j == 0 else 64 + 8 * (j & 1)
        for d in range(4): L += [unpack_lo(o + 2*d, SD + 4*j + d), unpack_hi(o + 1 + 2*d, SD + 4*j + d)]
        if j:
            for d in range(4): L.append(pk("v_pk_add_f32", CA + 2*d, CA + 2*d, o + 2*d))
        return L
    if SIDE: X(sidesum(0)); X(sidesum(1))
    A("s_waitcnt lgkmcnt(0)")
    for j in range(8): A(f"v_cndmask_b32 v{ZQ+j}, v{vAM}, v{ZQ+j}, vcc")
    DN = 16
    for tt in range(4):
        for fh_ in range(2): A(f"{MFMA} {vr(DN + tt*8 + 4*fh_, 4)}, {vr(ZQ + 4*fh_, 4)}, {vr(EQ + tt*8 + 4*fh_, 4)}, 0")
    AB = 48
    strs = []
    for tt in range(4):
        d = DN + tt * 8
        strs.append([f"v_rcp_f32 v{d+1}, v{d+1}", f"v_rcp_f32 v{d+5}, v{d+5}", f"v_mul_f32 v{d}, v{d}, v{d+1}",
                     f"v_fmac_f32 v{d}, v{d+4}, v{d+5}", f"v_add_f32 v{d}, {fh(1e-6)}, v{d}", f"v_rcp_f32 v{d}, v{d}",
                     f"v_mul_f32 v{AB+2*tt}, v{d+1}, v{d}", f"v_mul_f32 v{AB+2*tt+1}, v{d+5}, v{d}"])
    X(zip_streams(*strs))
    if SIDE:
        for j in range(2, 16): X(sidesum(j))
        A(f"s_lshl_b32 s{sT0}, s{sWAVE}, 11"); A(f"s_add_u32 s{sT0}, s{sT0}, {CSL}"); A("v_lshlrev_b32 v8, 5, v0"); A(f"v_add_u32 v8, s{sT0}, v8")
        A(f"ds_write_b128 v8, {vr(CA,4)}"); A(f"ds_write_b128 v8, {vr(CA+4,4)} offset:16")
    if H2AT == 2:
        for t in loads2: V(("H2", None, 0), t)
    A(f"s_lshl_b32 s{sT0}, s{sTT0}, 5"); A(f"s_lshl_b32 s{sT1}, s{sHP}, 1"); A(f"s_add_u32 s{sT0}, s{sT0}, s{sT1}"); A(f"s_add_u32 s{sT0}, s{sT0}, s{sHD}")
    A(f"s_lshl_b32 s{sT0}, s{sT0}, 10"); A(f"s_add_u32 s{sT0}, s{sT0}, {OFF_O}")
    A(f"s_lshl_b32 s{sT1}, s{sHD}, 16")
    for tt in range(4): A(f"s_xor_b32 s{sDO+2+tt}, s{sT1}, {tt*32768}"); A(f"s_add_u32 s{sDO+2+tt}, s{sDO+2+tt}, s{sT0}")
    X(lane16(7))
    polled("h2", loads2, [H2 + 4 * j for j in range(8)], "s_waitcnt vmcnt(0)")
    KQ = 16
    for j in range(16): A(f"v_cvt_pk_bf16_f32 v{KQ+j}, v{H2+2*j}, v{H2+2*j+1}")
    OD = ACC
    for tt in range(4):
        for fh_ in range(2):
            for dt in range(2):
                A(f"{MFMA} {vr(OD + tt*16 + fh_*8 + dt*4, 4)}, {vr(KQ + (fh_*2+dt)*4, 4)}, {vr(EQ + tt*8 + 4*fh_, 4)}, 0")
    for tt in range(4):
        d = OD + tt * 16
        for j in range(0, 8, 2): A(pk("v_pk_mul_f32", d + j, d + j, AB + 2*tt, None, "[0,0]", "[1,0]"))
        for j in range(0, 8, 2): A(pk("v_pk_fma_f32", d + j, d + 8 + j, AB + 2*tt, d + j, "[0,1,0]", "[1,1,1]"))
        X(pack(d + 8, d, d + 4))
        A(f"buffer_store_dwordx4 {vr(d+8,4)}, v7, s[{sWS}:{sWS+3}], s{sDO+2+tt} offen{' sc1' if 'wt1' in abl else ''}")
    if SIDE:
        A("s_waitcnt lgkmcnt(0)"); A("s_barrier")
        A(f"s_lshl_b32 s{sT0}, s{sWAVE}, 6"); A(f"v_add_u32 v8, s{sT0}, v0"); A("v_lshlrev_b32 v9, 2, v8"); A(f"v_add_u32 v9, {CSL}, v9")
        for c in range(2):
            for w in range(4): A(f"ds_read_b32 v{CA + c*4 + w}, v9 offset:{w*2048 + c*1024}")
        A(f"s_lshr_b32 s{sT0}, s2, 7"); A(f"s_mul_i32 s{sT0}, s{sT0}, 3584"); A(f"s_and_b32 s{sT1}, s2, 7"); A(f"s_mul_i32 s{sT1}, s{sT1}, 448"); A(f"s_add_u32 s{sT0}, s{sT0}, s{sT1}")
        A(f"s_lshl_b32 s{sT0}, s{sT0}, 6"); A(f"s_lshr_b32 s{sT1}, s2, 3"); A(f"s_and_b32 s{sT1}, s{sT1}, 15"); A(f"s_lshl_b32 s{sT1}, s{sT1}, 2"); A(f"s_add_u32 s{sT0}, s{sT0}, s{sT1}")
        A(f"s_add_u32 s{sT0}, s{sT0}, {OFF_CS}"); A(f"s_add_u32 s{sT1}, s{sT0}, {256*64}")
        A("v_lshlrev_b32 v9, 6, v8")
        A("s_waitcnt lgkmcnt(0)")
        for c in range(2):
            A(f"v_add_f32 v{CA+c*4}, v{CA+c*4}, v{CA+1+c*4}"); A(f"v_add_f32 v{CA+2+c*4}, v{CA+2+c*4}, v{CA+3+c*4}"); A(f"v_add_f32 v{CA+c*4}, v{CA+c*4}, v{CA+2+c*4}")
        A(f"buffer_store_dword v{CA}, v9, s[{sWS}:{sWS+3}], s{sT0} offen")
        A(f"s_cmp_ge_u32 s{sWAVE}, 3"); A(f"s_cbranch_scc1 L_{name}_skip")
        A(f"buffer_store_dword v{CA+4}, v9, s[{sWS}:{sWS+3}], s{sT1} offen")
        A(f"L_{name}_skip:")
    if gen.STAMPS:
        A("s_waitcnt vmcnt(0)"); X(stamp(7)); X(stamp_store(1, 8, sWS))
    A(f"L_{name}_end:"); A("s_endpgm")
    X(OUT); A(f"L_{name}_fin:")
    if "dma" in abl: P.skip.add("D")
    return finish(P, name, 256 + 8, 256, WPO + 8192)
SLEEP = 1
```

```python
from gen import *
import gen
from gen_k1f import sw16, sw32, SPIN, OFF_NONCE
from gen_k5n import OFF_W2C

def gen_k4n(name="k4_kernel", abl=()):
    P = Prog(); A = P.pre.append
    def X(l): P.pre.extend(flat(l))
    def V(tag, text): P.pre.append(VM(tag, text))
    NT = 16
    UPO, SS, CSO = 14336, 32768, 28672
    sW, sX, sWS, sW2 = 4, 8, 12, 52
    sXO = 16
    sCNT, sM0, sWAVE, sRB, sCB, sT0, sT1, sT2, sTT0, sO, sNON, sT3 = 20, 21, 22, 23, 24, 25, 26, 27, 28, 29, 30, 31
    sWB, sXB = 32, 34
    sKEY, sSEL, sMK = 56, 60, 64
    vXO, vDS, vDS2, vDMA = 1, 2, 3, 4
    aX, aW, aOH, aCA, aST, aCS, aD = 0, 64, 120, 148, 152, 184, 200
    OUT = []
    lsmap = {2: 2, 4: 3, 8: 4, 12: 5, 14: 6}
    def acc(h, i, tt): return 32 + ((h * 7 + i) * 4 + tt) * 4
    def wreg(p, i, t=None):
        b = aW + (p & 1) * 28 + 4 * i
        return ar(b, 4) if t is None else ar(b + 2 * t, 2)
    def xreg(slot, tt): return ar(aX + slot * 16 + tt * 4, 4)
    X(kernel_header(name))
    A("s_cmp_ge_u32 s2, 256"); A(f"s_cbranch_scc1 L_{name}_end")
    A("s_load_dwordx4 s[36:39], s[0:1], 40")
    A("s_load_dwordx2 s[40:41], s[0:1], 80")
    A(f"s_load_dwordx2 s[{sW2}:{sW2+1}], s[0:1], 56")
    X(code_prefetch(name, f"L_{name}_fin", 3, 10, ar(aD, 2)))
    A("v_lshrrev_b32 v1, 6, v0"); A("v_and_b32 v0, 63, v0")
    A(f"v_readfirstlane_b32 s{sWAVE}, v1")
    X(wg_decode(sRB, sCB, sT0, sT1, sT2, 1, 4, 8))
    A(f"s_and_b32 s{sO}, s{sRB}, 4"); A(f"s_lshl_b32 s{sO}, s{sO}, 1")
    A(f"s_and_b32 s{sT0}, s{sWAVE}, 1"); A(f"s_mul_i32 s{sT0}, s{sT0}, {32*7168}")
    A(f"s_mul_i32 s{sT1}, s{sCB}, 224"); A(f"s_add_u32 s{sT0}, s{sT0}, s{sT1}")
    A(f"s_and_b32 s{sT1}, s{sCB}, 1"); A(f"s_lshl_b32 s{sT1}, s{sT1}, 1")
    for q in range(7):
        A(f"v_add_u32 v11, {64*q}, v0")
        A(f"v_mul_u32_u24 v12, 4682, v11"); A("v_lshrrev_b32 v12, 16, v12")
        A("v_mul_u32_u24 v13, 14, v12"); A("v_sub_u32 v13, v11, v13")
        A(f"v_add_u32 v13, s{sT1}, v13"); A("v_subrev_u32 v14, 14, v13"); A("v_min_u32 v13, v13, v14")
        A(f"v_mul_u32_u24 v12, 7168, v12"); A("v_lshlrev_b32 v13, 4, v13")
        A(f"v_add3_u32 v{vDMA+q}, v12, v13, s{sT0}")
        if q & 3: A(f"v_subrev_u32 v{vDMA+q}, {(q&3)*1024}, v{vDMA+q}")
    X(lane16(vXO, 11))
    for tt in range(1, 4): A(f"s_mov_b32 s{sXO+tt-1}, {tt*32768}")
    A(f"s_lshr_b32 s{sT0}, s{sWAVE}, 1"); A(f"s_mul_i32 s{sM0}, s{sT0}, {UPO}")
    A(f"s_and_b32 s{sT0}, s{sWAVE}, 1"); A(f"s_mul_i32 s{sT0}, s{sT0}, 7168"); A(f"s_add_u32 s{sM0}, s{sM0}, s{sT0}")
    A(f"s_lshl_b32 s{sTT0}, s{sRB}, 4"); A(f"s_lshl_b32 s{sT1}, s{sWAVE}, 2"); A(f"s_add_u32 s{sTT0}, s{sTT0}, s{sT1}")
    A(f"s_lshl_b32 s{sT3}, s{sTT0}, 15"); A(f"s_add_u32 s{sT3}, s{sT3}, {OFF_H}")
    A(f"s_mov_b32 s{sW+2}, {64*7168}"); A(f"s_mov_b32 s{sW+3}, 0x00020000")
    A(f"s_mov_b32 s{sX+2}, {C3D + 4*32768}"); A(f"s_mov_b32 s{sX+3}, 0x00020000")
    A(f"s_cmp_ge_u32 s{sWAVE}, 2")
    A("s_waitcnt lgkmcnt(0)")
    A(f"s_cselect_b32 s{sWB}, s38, s36"); A(f"s_cselect_b32 s{sWB+1}, s39, s37")
    A(f"s_add_u32 s{sXB}, s40, s{sT3}"); A(f"s_addc_u32 s{sXB+1}, s41, 0")
    X(gen.stamp(0))
    def setw(t): return [f"s_xor_b32 s{sT0}, s{sO}, {t}", f"s_mul_i32 s{sT0}, s{sT0}, {64*7168}", f"s_add_u32 s{sW}, s{sWB}, s{sT0}", f"s_addc_u32 s{sW+1}, s{sWB+1}, 0"]
    def setx(t): return [f"s_xor_b32 s{sT0}, s{sO}, {t}", f"s_lshl_b32 s{sT0}, s{sT0}, 11", f"s_add_u32 s{sX}, s{sXB}, s{sT0}", f"s_addc_u32 s{sX+1}, s{sXB+1}, 0"]
    def dma(t):
        L = [setw(t)]
        for q in range(7):
            grp = []
            if q in (0, 4): grp.append(f"s_add_u32 m0, s{sM0}, {(t & 3)*SS + q*1024}")
            grp.append(VM(("D", t, q), f"buffer_load_dwordx4 v{vDMA+q}, s[{sW}:{sW+3}], 0 offen offset:{(q&3)*1024} lds"))
            L.append(grp)
        return L
    def xload(t, ks):
        slot = (t & 1) * 2 + ks
        return [VM(("X", t, ks), f"buffer_load_dwordx4 {xreg(slot, tt)}, v{vXO}, s[{sX}:{sX+3}], {'0' if tt == 0 else 's%d' % (sXO+tt-1)} offen offset:{ks*1024}") for tt in range(4)]
    X(dma(0)); X(setx(0)); X(xload(0, 0)); X(xload(0, 1))
    X(dma(1)); X(setx(1)); X(xload(1, 0))
    X(srd(sWS, 40, 41, WS_BYTES))
    A(f"s_mov_b32 s{sW2+2}, {3584*2048}"); A(f"s_mov_b32 s{sW2+3}, 0x00020000")
    A(f"s_add_u32 s42, s40, {OFF_NONCE}"); A("s_addc_u32 s43, s41, 0"); A(f"s_load_dword s{sNON}, s[42:43], 0")
    def touch13(rowoff, n=56):
        return [[f"s_bitcmp1_b32 s2, 7", f"s_cselect_b32 s44, s38, s36", f"s_cselect_b32 s45, s39, s37", f"s_mov_b32 s46, {1024*7168}", "s_mov_b32 s47, 0x00020000"],
                [f"s_and_b32 s{sT1}, s2, 63", f"s_lshl_b32 s{sT1}, s{sT1}, 2", f"s_add_u32 s{sT1}, s{sT1}, s{sWAVE}", f"s_mul_i32 s{sT1}, s{sT1}, {n*128}",
                 f"s_bfe_u32 s{sT2}, s2, 0x10006", f"s_mul_i32 s{sT2}, s{sT2}, {512*7168}", f"s_add_u32 s{sT1}, s{sT1}, s{sT2}", f"s_add_u32 s{sT1}, s{sT1}, {rowoff*7168}"],
                [f"v_min_u32 v11, {n-1}, v0", "v_lshlrev_b32 v11, 7, v11", VM(("T", None, 0), f"buffer_load_dwordx2 {ar(aD,2)}, v11, s[44:47], s{sT1} offen offset:60")]]
    if "t13p" in abl: X(touch13(256))
    A("v_lshrrev_b32 v11, 2, v0"); A("v_mul_u32_u24 v11, 224, v11")
    A("v_and_b32 v12, 3, v0"); A(f"v_lshl_add_u32 v{vDS}, v12, 3, v11"); A(f"v_add_u32 v{vDS2}, 0x10000, v{vDS}")
    A("v_and_b32 v11, 15, v0"); A("v_mov_b32 v12, 0x3f803f80")
    for i in range(7):
        A(f"v_cmp_eq_u32 vcc, {i}, v11"); A("v_cndmask_b32 v13, 0, v12, vcc")
        for j in range(4): A(f"v_accvgpr_write_b32 a{aOH+4*i+j}, v13")
    A(f"s_and_b32 s{sT0}, s{sRB}, 3")
    for p in range(4): A(f"s_cmp_eq_u32 s{sWAVE}, {p}"); A(f"s_cselect_b32 s{sKEY+p}, s{sT0}, 99")
    for i in range(4): A(f"s_mov_b32 s{sSEL+i}, {0x07060500 | i}")
    A(f"s_mov_b32 s{sMK}, 0x0c0c0400"); A(f"s_mov_b32 s{sMK+1}, 0x04000c0c")
    def trreads(t, p):
        ks, h = p >> 1, p & 1
        return [f"ds_read_b64_tr_b16 {wreg(p, i, tt)}, v{vDS2 if t & 2 else vDS} offset:{(t & 1)*SS + h*UPO + (32*ks + 16*tt)*224 + i*32}" for i in range(7) for tt in range(2)]
    P.pre.append(WaitVM([("D", 0, None)], " lgkmcnt(0)"))
    A("s_barrier")
    X(trreads(0, 0))
    X(gen.stamp(1))
    ex = {}; prex = {}
    def EXF(t, p, g): ex.setdefault((t, p), []).extend(g)
    vNON = 11
    g = [f"v_mov_b32 v{vNON}, s{sNON}"]
    g += [f"v_accvgpr_read_b32 v{12+j}, a{aCA+j}" for j in range(4)]
    g += [f"v_perm_b32 v{12+j}, v{12+j}, v{vNON}, s{sSEL+j}" for j in range(4)]
    g += ["v_and_b32 v16, 15, v0", "v_lshlrev_b32 v16, 6, v16", "v_and_b32 v17, 48, v0", "v_add_u32 v16, v16, v17"]
    g += [[f"s_lshl_b32 s{sT1}, s{sCB}, 3", f"s_add_u32 s{sT1}, s{sT1}, s{sRB}", f"s_lshl_b32 s{sT1}, s{sT1}, 2", f"s_add_u32 s{sT1}, s{sT1}, s{sWAVE}",
           f"s_lshl_b32 s{sT1}, s{sT1}, 9", f"s_add_u32 s{sT1}, s{sT1}, {OFF_CS}"]]
    g += [["s_mov_b32 exec_lo, 0x00ff00ff", "s_mov_b32 exec_hi, 0x00ff00ff",
           VM(("CP", None, 0), f"buffer_store_dwordx4 v[12:15], v16, s[{sWS}:{sWS+3}], s{sT1} offen sc1"), "s_mov_b64 exec, -1"]]
    EXF(8, 1, g)
    EXF(5, 3, [[f"s_lshl_b32 s{sT3}, s2, 2", f"s_add_u32 s{sT3}, s{sT3}, s{sWAVE}", f"s_lshl_b32 s{sT3}, s{sT3}, 12", f"s_add_u32 s{sT3}, s{sT3}, {OFF_EX}"]] + [f"v_mov_b32 v{12+j}, -1" for j in range(4)])
    for k in range(4 if 'pf1' not in abl else 0): EXF(*((6, 1) if 'pfb' in abl else (6 + (k >> 1), 1 + 2 * (k & 1))), [VM(("PF", None, k), f"buffer_store_dwordx4 v[12:15], v{vXO}, s[{sWS}:{sWS+3}], s{sT3} offen offset:{k*1024}")])
    ST = " sc1" if "wt4" in abl else (" nt" if "nt4" in abl else "")
    g = [[f"s_lshl_b32 s{sT1}, s{sTT0}, 11", f"s_add_u32 s{sT1}, s{sT1}, {OFF_ST}", f"s_add_u32 s{sT2}, s{sT1}, 4096", "v_lshlrev_b32 v12, 4, v0"]]
    for p in range(2):
        for i in range(4): g.append(VM(("S", None, 0), f"buffer_load_dwordx4 {ar(aST + p*16 + i*4, 4)}, v12, s[{sWS}:{sWS+3}], s{sT1 if p == 0 else sT2} offen offset:{i*1024}"))
    EXF(11, 0, g)
    if 'rf' in abl: EXF(12, 0, code_refetch(name, 'rf', f'L_{name}_fin', 2, 13, ar(aD, 2), 92, sWAVE))
    vST = 20
    for p in range(2):
        b = 12
        g = [f"v_accvgpr_read_b32 v{b+j}, a{aST + p*16 + j}" for j in range(4)]
        for i in range(1, 4):
            g += [f"v_accvgpr_read_b32 v{b+4+j}, a{aST + p*16 + 4*i + j}" for j in range(4)]
            g += [f"v_add_f32 v{b+j}, v{b+j}, v{b+4+j}" for j in range(4)]
        g += [sw16(b, b + 1), sw16(b + 2, b + 3), f"v_add_f32 v{b+1}, v{b}, v{b+1}", f"v_add_f32 v{b+3}, v{b+2}, v{b+3}",
              sw32(b + 1, b + 3), f"v_add_f32 v{b+1}, v{b+1}, v{b+3}", f"v_mov_b32 v{b+3}, v{b+1}", sw32(b + 1, b + 3),
              f"v_mov_b32 v{b}, v{b+1}", f"v_mov_b32 v{b+2}, v{b+3}", sw16(b, b + 1), sw16(b + 2, b + 3)]
        fin = []
        for t in range(2):
            tt = 2 * p + t
            nm, c1, ve = vST + tt * 3, vST + tt * 3 + 1, vST + tt * 3 + 2
            fin.append([f"v_mul_f32 v{nm}, {fh(-1.0/1024)}, v{b+2*t}", f"v_mul_f32 v{ve}, {fh(1.0/1024)}, v{b+2*t+1}", f"v_fma_f32 v{ve}, -v{nm}, v{nm}, v{ve}",
                        f"v_max_f32 v{ve}, 0, v{ve}", f"v_add_f32 v{ve}, {fh(1e-5)}, v{ve}", f"v_rsq_f32 v{c1}, v{ve}", f"v_mul_f32 v{c1}, {fh(-LOG2E)}, v{c1}"])
        g += zip_streams(*fin)
        h2 = len(g) // 2
        EXF(13, 2 * p, g[:h2]); EXF(13, 2 * p + 1, g[h2:])
    prex[(13, 0)] = [WaitVM([("S", None, 0)])]
    CQ = 4
    cloads = [f"buffer_load_dwordx4 {vr(CQ+4*j,4)}, v{vDS}, s[{sWS}:{sWS+3}], s{sKEY+j} offen sc1" for j in range(4)]
    g = [["v_lshrrev_b32 v12, 4, v0", "v_lshlrev_b32 v12, 10, v12", "v_and_b32 v13, 15, v0", f"v_lshl_add_u32 v{vDS}, v13, 4, v12"],
         [f"s_lshl_b32 s{sT1}, s{sCB}, 14", f"s_lshl_b32 s{sT2}, s{sWAVE}, 8", f"s_add_u32 s{sT1}, s{sT1}, s{sT2}", f"s_add_u32 s{sKEY}, s{sT1}, {OFF_CS}"],
         [f"s_add_u32 s{sKEY+j}, s{sKEY}, {j*4096}" for j in range(1, 4)]]
    g += [VM(("CL", None, 0), t) for t in cloads]
    EXF(14, 1, g)
    cpaddr = [f"v_min_u32 v{vXO}, 55, v0", f"v_lshrrev_b32 v{vXO}, 3, v{vXO}", f"v_lshlrev_b32 v{vXO}, 6, v{vXO}", f"v_and_or_b32 v{vXO}, v0, 7, v{vXO}", f"v_lshlrev_b32 v{vXO}, 4, v{vXO}"]
    if "t2" in abl:
        g = [[f"s_lshl_b32 s{sT3}, s2, 2", f"s_add_u32 s{sT3}, s{sT3}, s{sWAVE}", f"s_mul_i32 s{sT3}, s{sT3}, {56*128}"]]
        if "w2c" in abl:
            g += cpaddr + [VM(("WC", None, 0), f"buffer_load_dwordx4 {ar(aD+4,4)}, v{vXO}, s[{sW2}:{sW2+3}], s{sT3} offen offset:384")]
        g += [f"v_min_u32 v{vXO}, 55, v0", f"v_lshlrev_b32 v{vXO}, 7, v{vXO}",
              VM(("T", None, 1), f"buffer_load_dwordx2 {ar(aD,2)}, v{vXO}, s[{sW2}:{sW2+3}], s{sT3} offen offset:60")]
        EXF(14, 2, g)
    if "tq" in abl:
        EXF(0, 1, touch13(256, 28)); EXF(2, 1, touch13(384, 28))
    if "te" in abl:
        for j in range(4): EXF(j, 1, touch13(256 + 64 * j, 14))
    if "tf" in abl:
        for j in range(10): EXF(j >> 1, 1 + 2 * (j & 1), touch13(192 + 32 * j, 7))
    if "tg" in abl:
        for j in range(5): EXF(j, 1, touch13(192 + 64 * j, 14))
    if "te3" in abl:
        for j in range(3): EXF(j + 1, 1, touch13(320 + 64 * j, 14))
    if "te2" in abl:
        for j in range(2): EXF(2 * j + 1, 1, touch13(384 + 64 * j, 14))
    def tagcheck():
        L = []
        for j in range(4):
            q = CQ + 4 * j
            L += [f"v_perm_b32 v{vXO}, v{q+1}, v{q}, s{sMK}", f"v_perm_b32 v{vXO}, v{q+2}, v{vXO}, s{sMK+1}", f"v_perm_b32 v{vXO}, v{q+3}, v{vXO}, s{sMK+2}",
                  f"v_cmp_ne_u32 {'vcc' if j == 0 else 's[48:49]'}, s{sNON}, v{vXO}"]
            if j: L.append("s_or_b64 vcc, vcc, s[48:49]")
        return L
    chk = tagcheck()
    prex[(15, 1)] = [WaitVM([("CL", None, 0)])]
    g = [[f"s_mov_b32 s{sMK+1}, 0x0c040100", f"s_mov_b32 s{sMK+2}, 0x04020100"]] + chk + [[f"s_cbranch_vccnz L_{name}_cr", f"L_{name}_cok:"]]
    OUT.extend([f"L_{name}_cr:", f"s_mov_b32 s{sCNT}, 0", f"L_{name}_cr2:", "s_sleep 1"] + cloads + ["s_waitcnt vmcnt(0)"] + chk +
               [f"s_add_u32 s{sCNT}, s{sCNT}, 1", f"s_cmp_ge_u32 s{sCNT}, {SPIN}", f"s_cbranch_scc1 L_{name}_cok", f"s_cbranch_vccnz L_{name}_cr2", f"s_branch L_{name}_cok"])
    g += [f"v_and_b32 v{CQ+j}, 0xffffff00, v{CQ+j}" for j in range(16)]
    EXF(15, 1, g)
    g = [f"v_add_f32 v{CQ+j}, v{CQ+j}, v{CQ+4+j}" for j in range(4)] + [f"v_add_f32 v{CQ+8+j}, v{CQ+8+j}, v{CQ+12+j}" for j in range(4)]
    g += [f"v_add_f32 v{CQ+j}, v{CQ+j}, v{CQ+8+j}" for j in range(4)]
    g += [sw16(CQ, CQ + 1), sw16(CQ + 2, CQ + 3), f"v_add_f32 v{CQ+1}, v{CQ}, v{CQ+1}", f"v_add_f32 v{CQ+3}, v{CQ+2}, v{CQ+3}",
          sw32(CQ + 1, CQ + 3), f"v_add_f32 v{CQ+1}, v{CQ+1}, v{CQ+3}"]
    g += [f"v_and_b32 v{CQ+8}, 15, v0", f"v_lshrrev_b32 v{CQ+9}, 4, v0", f"v_lshlrev_b32 v{CQ+9}, 2, v{CQ+9}", f"v_lshl_add_u32 v{CQ+8}, v{CQ+8}, 4, v{CQ+9}",
          [f"s_lshl_b32 s{sT1}, s{sWAVE}, 8", f"v_add_u32 v{CQ+8}, s{sT1}, v{CQ+8}"], f"ds_write_b32 v{CQ+8}, v{CQ+1} offset:{CSO}"]
    EXF(15, 2, g)
    sOb = 44
    g = lane16(vXO, None) + ["v_and_b32 v2, 48, v0"]
    g += [[f"s_mul_i32 s{sT0}, s{sCB}, 7", f"s_and_b32 s{sT1}, s{sCB}, 1", f"s_add_u32 s{sT0}, s{sT0}, s{sT1}", f"s_lshr_b32 s{sT0}, s{sT0}, 1"],
          [f"s_mul_i32 s{sT2}, s{sTT0}, 112", f"s_add_u32 s{sT0}, s{sT0}, s{sT2}", f"s_lshl_b32 s{sT0}, s{sT0}, 10", f"s_add_u32 s{sT0}, s{sT0}, {OFF_HH}"],
          [f"s_add_u32 s{sOb+tt}, s{sT0}, {tt*112*1024}" for tt in range(4)],
          [f"s_mov_b32 s{sT2}, {(-1024 + 8) & 0xffffffff}", f"s_cmp_eq_u32 s{sT1}, 0", f"s_cselect_b32 s{sT2}, {3*1024}, s{sT2}"],
          [f"s_add_u32 s{sOb+4+tt}, s{sOb+tt}, s{sT2}" for tt in range(4)]]
    def csread(grp, buf):
        L = []
        for k, i in enumerate(grp):
            L.append(f"ds_read_b128 {vr(buf + 8*k, 4)}, v2 offset:{CSO + i*64}")
            L.append(f"ds_read_b128 {vr(buf + 8*k + 4, 4)}, v2 offset:{CSO + 512 + i*64}")
        return L
    groups = [(0, 1), (2, 3), (4, 5), (6,)]
    g += csread(groups[0], 4)
    EXF(15, 3, g)
    for t in range(NT):
        for p in range(4):
            ks, h = p >> 1, p & 1
            slot = (t & 1) * 2 + ks
            first = t == 0 and ks == 0
            mf = [f"{MFMA} {vr(acc(h,i,tt),4)}, {wreg(p,i)}, {xreg(slot,tt)}, {'0' if first else vr(acc(h,i,tt),4)}" for i in range(7) for tt in (range(4) if i % 2 == 0 else range(3, -1, -1))]
            if p == 3: pre = [WaitVM([("D", t + 1, None)], " lgkmcnt(0)") if t + 1 < NT else "s_waitcnt lgkmcnt(0)", "s_barrier"]
            elif h == 0: pre = [WaitVM([("X", t, ks)], " lgkmcnt(0)")]
            else: pre = ["s_waitcnt lgkmcnt(0)"]
            pre = pre + prex.get((t, p), [])
            rd = trreads(t, p + 1) if p < 3 else (trreads(t + 1, 0) if t + 1 < NT else [])
            dl = []
            if p == 0 and t + 1 < NT: dl = xload(t + 1, 1)
            elif p == 2 and t + 2 < NT: dl = [setx(t + 2)] + xload(t + 2, 0)
            elif p == 1 and t + 2 < NT: dl = dma(t + 2)[0:5]
            elif p == 3 and t + 2 < NT: dl = dma(t + 2)[5:8]
            if t < 8 and 'nost' not in abl:
                lb = f"L_{name}_st{t}{p}"
                dl = dl + [[f"s_cmp_eq_u32 s{sKEY+p}, {t >> 1}", f"s_cbranch_scc1 {lb}", f"{lb}r:"]]
                OUT.append(f"{lb}:")
                for i in range(7):
                    OUT.append(f"{MFMA} {ar(aCA,4)}, {wreg(p,i)}, {ar(aOH+4*i,4)}, {'0' if (t & 1 == 0 and i == 0) else ar(aCA,4)}")
                OUT.append(f"s_branch {lb}r")
            body = pack_gaps(mf, rd, dl, ex.get((t, p), [])) if 'oldil' not in abl else interleave(mf, merge_fillers(rd, dl + ex.get((t, p), [])), 0, 22)
            if "ls4" in abl and p == 0 and t in lsmap: X(gen.stamp(lsmap[t]))
            X(pre); X(body)
    X(gen.stamp(7 if "ls4" in abl else 2))
    E = A; EX = X
    E("s_waitcnt lgkmcnt(0)")
    for gi, grp in enumerate(groups):
        cbuf = 4 if gi == 0 else acc(0, 0, 0) + 16 * ((gi - 1) & 1)
        for tt in range(4):
            nm, c1, ve = vST + tt * 3, vST + tt * 3 + 1, vST + tt * 3 + 2
            (pn, sn), (pc, sc), (pv, sv) = bc(nm), bc(c1), bc(ve)
            G = [acc(0, i, tt) for i in grp]; U = [acc(1, i, tt) for i in grp]
            for k in range(len(grp)):
                for j in (0, 2):
                    E(f"v_pk_fma_f32 {vr(G[k]+j,2)}, {vr(cbuf+8*k+j,2)}, {pn}, {vr(G[k]+j,2)} op_sel:[0,{sn},0] op_sel_hi:[1,{sn},1]")
                for j in (0, 2):
                    E(f"v_pk_fma_f32 {vr(U[k]+j,2)}, {vr(cbuf+8*k+4+j,2)}, {pn}, {vr(U[k]+j,2)} op_sel:[0,{sn},0] op_sel_hi:[1,{sn},1]")
            for k in range(len(grp)):
                for j in (0, 2): E(f"v_pk_mul_f32 {vr(U[k]+j,2)}, {vr(U[k]+j,2)}, {vr(G[k]+j,2)}")
            for k in range(len(grp)):
                for j in (0, 2): E(f"v_pk_mul_f32 {vr(G[k]+j,2)}, {vr(G[k]+j,2)}, {pc} op_sel:[0,{sc}] op_sel_hi:[1,{sc}]")
            for k in range(len(grp)):
                for j in range(4): E(f"v_exp_f32 v{G[k]+j}, v{G[k]+j}")
            for k in range(len(grp)):
                for j in (0, 2): E(f"v_pk_fma_f32 {vr(G[k]+j,2)}, {vr(G[k]+j,2)}, {pv}, {pv} op_sel:[0,{sv},{sv}] op_sel_hi:[1,{sv},{sv}]")
            for k in range(len(grp)):
                for j in range(4): E(f"v_rcp_f32 v{G[k]+j}, v{G[k]+j}")
            for k in range(len(grp)):
                for j in (0, 2): E(f"v_pk_mul_f32 {vr(G[k]+j,2)}, {vr(G[k]+j,2)}, {vr(U[k]+j,2)}")
            for k in range(len(grp)):
                for j in (0, 1): E(f"v_cvt_pk_bf16_f32 v{U[0]+2*k+j}, v{G[k]+2*j}, v{G[k]+2*j+1}")
            if len(grp) == 2:
                E(f"buffer_store_dwordx4 {vr(U[0],4)}, v{vXO}, s[{sWS}:{sWS+3}], s{sOb+tt} offen offset:{gi*1024}{ST}")
            else:
                E(f"buffer_store_dwordx2 {vr(U[0],2)}, v{vXO}, s[{sWS}:{sWS+3}], s{sOb+4+tt} offen{ST}")
            if tt == 3 and gi == 0:
                EX(csread(groups[1], acc(0, 0, 0))); EX(csread(groups[2], acc(0, 0, 0) + 16)); E("s_waitcnt lgkmcnt(4)")
            if tt == 3 and gi == 1:
                EX(csread(groups[3], acc(0, 0, 0))); E("s_waitcnt lgkmcnt(2)")
            if tt == 3 and gi == 2:
                E("s_waitcnt lgkmcnt(0)")
    if "w2c" in abl:
        EX(cpaddr); E(f"s_add_u32 s{sT3}, s{sT3}, {OFF_W2C}")
        E("s_waitcnt vmcnt(17)")
        E(f"buffer_store_dwordx4 {ar(aD+4,4)}, v{vXO}, s[{sWS}:{sWS+3}], s{sT3} offen offset:512")
    if gen.STAMPS and "ls4" in abl: EX(stamp_store(4, 8, sWS))
    elif gen.STAMPS:
        EX(gen.stamp(3))
        E("s_waitcnt vmcnt(0)")
        EX(gen.stamp(4))
        EX(stamp_store(4, 5, sWS))
    E(f"L_{name}_end:"); E("s_endpgm")
    X(OUT); A(f"L_{name}_fin:")
    return finish(P, name, 256 + 208, 256, 4 * SS)
```

```python
from gen import *
import gen
from gen_k1f import SPIN
OFF_W2C = WB0 + (64 << 20)

def gen_k5n(name="k5_kernel", abl=()):
    P = Prog(); A = P.pre.append
    def X(l): P.pre.extend(flat(l))
    J = 13
    SC1 = "" if "plain" in abl else " sc1"
    for k in abl:
        if k.startswith("J"): J = int(k[1:])
    NS = 28 - 2 * J
    NT = J + NS
    KS = 112
    SS = 32768
    sW0, sW1, sX, sWS, sAUX = 4, 8, 12, 16, 20
    sXO, sDO, sCNT, sM0, sWAVE, sRB, sCB, sT0, sT1, sT2, sTT0, sKH, sST, sTB, sNON = 24, 25, 28, 29, 30, 31, 32, 33, 34, 35, 44, 45, 46, 47, 48
    sB0, sB1, sXB = 50, 52, 54
    sSEL, sMK, sEX = 56, 60, 64
    vXO, vDMA, vL, vDS, vRM, vNON, vRES = 1, 2, 3, 4, 12, 13, 16
    ACC, EXL = 32, 96
    aX, aW = 0, 64
    OUT = []
    def acc(n, tt): return ACC + (n * 2 + tt) * 4
    def wreg(b, j, t=None):
        r = aW + b * 32 + j * 4
        return ar(r, 4) if t is None else ar(r + 2 * t, 2)
    def xreg(t, ks, tt): return ar(aX + (((t & 1) * 4 + ks) * 2 + tt) * 4, 4)
    X(kernel_header(name))
    A("s_cmp_ge_u32 s2, 256"); A(f"s_cbranch_scc1 L_{name}_end")
    A("s_load_dwordx4 s[36:39], s[0:1], 56")
    A("s_load_dwordx2 s[40:41], s[0:1], 80")
    X(code_prefetch(name, f"L_{name}_fin", 2, 10, "v[126:127]"))
    A("v_lshrrev_b32 v1, 6, v0"); A("v_and_b32 v0, 63, v0")
    A(f"v_readfirstlane_b32 s{sWAVE}, v1")
    A(f"s_and_b32 s{sRB}, s2, 1"); A(f"s_lshl_b32 s{sRB}, s{sRB}, 3"); A(f"s_bfe_u32 s{sT0}, s2, 0x30003"); A(f"s_add_u32 s{sRB}, s{sRB}, s{sT0}")
    A(f"s_and_b32 s{sCB}, s2, 2"); A(f"s_lshl_b32 s{sCB}, s{sCB}, 1"); A(f"s_lshr_b32 s{sT0}, s2, 6"); A(f"s_add_u32 s{sCB}, s{sCB}, s{sT0}")
    A(f"s_bfe_u32 s{sKH}, s2, 0x10002")
    PX = 4
    if "samex" in abl:
        A(f"s_and_b32 s{sRB}, s2, 3"); A(f"s_lshl_b32 s{sRB}, s{sRB}, 2"); A(f"s_bfe_u32 s{sT0}, s2, 0x20003"); A(f"s_add_u32 s{sRB}, s{sRB}, s{sT0}")
        A(f"s_and_b32 s{sCB}, s2, 4"); A(f"s_bfe_u32 s{sT0}, s2, 0x20005"); A(f"s_add_u32 s{sCB}, s{sCB}, s{sT0}")
        A(f"s_lshr_b32 s{sKH}, s2, 7")
        PX = 128
    A(f"s_lshl_b32 s{sCB}, s{sCB}, 1"); A(f"s_add_u32 s{sCB}, s{sCB}, s{sKH}")
    A(f"s_mul_i32 s{sTB}, s{sKH}, {28 - J}")
    A(f"s_mul_i32 s{sST}, s{sKH}, {J - 14}"); A(f"s_add_u32 s{sST}, s{sST}, 7")
    A("s_bitcmp1_b32 s2, 1"); A(f"s_cselect_b32 s{sST}, s{sST}, 0")
    if "noloc" in abl: A(f"s_mov_b32 s{sST}, 0")
    X(dma_voff_128(vDMA, 10, 11, 2048))
    A(f"s_lshl_b32 s{sT0}, s{sWAVE}, 16"); A(f"v_add_u32 v{vDMA}, s{sT0}, v{vDMA}")
    X(lane16(vXO))
    A(f"s_mov_b32 s{sXO}, {KS*1024}")
    for q in range(1, 4): A(f"s_mov_b32 s{sDO+q-1}, {q*15360}")
    A(f"s_lshl_b32 s{sM0}, s{sWAVE}, 12")
    A(f"s_lshl_b32 s{sTT0}, s{sRB}, 3"); A(f"s_lshl_b32 s{sT1}, s{sWAVE}, 1"); A(f"s_add_u32 s{sTT0}, s{sTT0}, s{sT1}")
    A(f"s_mul_i32 s{sT2}, s{sTT0}, {KS*1024}"); A(f"s_add_u32 s{sT2}, s{sT2}, {OFF_HH}")
    for s_ in (sW0, sW1): A(f"s_mov_b32 s{s_+2}, {127*2048 + 128}"); A(f"s_mov_b32 s{s_+3}, 0x00020000")
    A(f"s_mov_b32 s{sX+2}, {C3D + KS*1024 + 4096}"); A(f"s_mov_b32 s{sX+3}, 0x00020000")
    A("s_waitcnt lgkmcnt(0)")
    X(gen.stamp(0))
    A(f"s_add_u32 s{sXB}, s40, s{sT2}"); A(f"s_addc_u32 s{sXB+1}, s41, 0")
    A(f"s_add_u32 s42, s40, {OFF_W2C + 128}"); A("s_addc_u32 s43, s41, 0")
    for im, sb in ((0, sB0), (1, sB1)):
        A(f"s_xor_b32 s{sT0}, s{sCB}, {im}"); A(f"s_and_b32 s{sT1}, s{sT0}, 7")
        A(f"s_cmp_eq_u32 s{sT1}, {3 if 'w2c' in abl else 99}")
        A(f"s_cselect_b32 s{sb}, s42, s36"); A(f"s_cselect_b32 s{sb+1}, s43, s37")
        A(f"s_lshl_b32 s{sT0}, s{sT0}, 7"); A(f"s_add_u32 s{sb}, s{sb}, s{sT0}"); A(f"s_addc_u32 s{sb+1}, s{sb+1}, 0")
    def tidx(t):
        if t >= J: return [f"s_mov_b32 s{sT0}, {t}"]
        return [f"s_add_u32 s{sT0}, s{sST}, {t}", f"s_sub_u32 s{sT1}, s{sT0}, {J}", f"s_cselect_b32 s{sT0}, s{sT0}, s{sT1}", f"s_add_u32 s{sT0}, s{sT0}, s{sTB}"]
    def setw(t):
        L = tidx(t) + [f"s_lshl_b32 s{sT0}, s{sT0}, 18", f"s_add_u32 s{sW0}, s{sB0}, s{sT0}", f"s_addc_u32 s{sW0+1}, s{sB0+1}, 0"]
        if t < J: L += [f"s_add_u32 s{sW1}, s{sB1}, s{sT0}", f"s_addc_u32 s{sW1+1}, s{sB1+1}, 0"]
        return L
    def setx(t): return tidx(t) + [f"s_lshl_b32 s{sT0}, s{sT0}, 12", f"s_add_u32 s{sX}, s{sXB}, s{sT0}", f"s_addc_u32 s{sX+1}, s{sXB+1}, 0"]
    def dma(t):
        L = []
        for im in range(2 if t < J else 1):
            for q in range(4):
                grp = [f"s_add_u32 m0, s{sM0}, {(t % 3)*SS + im*16384}"] if q == 0 else []
                sw = sW1 if im else sW0
                grp.append(VM(("D", t, im * 4 + q), f"buffer_load_dwordx4 v{vDMA}, s[{sw}:{sw+3}], {'0' if q == 0 else 's%d' % (sDO+q-1)} offen offset:{q*1024} lds"))
                L.append(grp)
        n = len(L) // 4
        parts = [L[i*n:(i+1)*n] for i in range(4)]
        parts[0] = [setw(t)] + parts[0]
        return parts
    def xload(t, ks):
        L = [setx(t)] if ks == 0 else []
        return L + [VM(("X", t, ks), f"buffer_load_dwordx4 {xreg(t, ks, tt)}, v{vXO}, s[{sX}:{sX+3}], {'0' if tt == 0 else 's%d' % sXO} offen offset:{ks*1024}") for tt in range(2)]
    X(dma(0)); X([xload(0, ks) for ks in range(4)])
    X(dma(1)); X([xload(1, ks) for ks in range(3)])
    X(dma(2)[0])
    X(srd(sWS, 40, 41, WS_BYTES)); X(srd(sAUX, 38, 39, 2048 * 2048))
    X(tr_addr_128(vDS, 12, 13, 14))
    for i in range(4): A(f"v_add_u32 v{vDS+4+i}, 0x10000, v{vDS+i}")
    X(rowmajor_voff(vRM, 13, 14, 11))
    PH = []
    for t in range(NT):
        if t < J:
            for ks in range(4): PH.append((t, [(ks, n) for n in range(8)]))
        else:
            for h in range(2): PH.append((t, [(2 * h + k2, n) for k2 in range(2) for n in range(4)]))
    def reads(pi):
        t, fr = PH[pi]
        st = t % 3
        return [f"ds_read_b64_tr_b16 {wreg(pi & 1, j, tt)}, v{vDS + (n & 3) + (4 if st == 2 else 0)} offset:{(st & 1)*SS + (n >> 2)*16384 + (32*ks + 16*tt)*128}" for j, (ks, n) in enumerate(fr) for tt in range(2)]
    first_of = {}; last_of = {}
    for pi, (t, fr) in enumerate(PH):
        first_of.setdefault(t, pi); last_of[t] = pi
    dls = [[] for _ in PH]
    for t in range(2, NT):
        parts = dma(t)
        p0 = last_of[t - 3] if t >= 3 else -1
        for i, part in enumerate(parts):
            pi = p0 + i
            if pi < 0: continue
            pi = min(pi, last_of[t - 2] - 1) if t - 2 >= J else pi
            dls[pi].extend(part)
    for t in range(1, NT):
        for ks in range(4):
            if t == 1 and ks < 3: continue
            if t == 1: pi = 0
            else: pi = max(i for i, (tt_, fr) in enumerate(PH) if tt_ == t - 2 and any(k == ks for k, n in fr)) + 1
            dls[pi].extend(xload(t, ks))
    ex = [[] for _ in PH]
    pj = first_of[J]
    if 'rf5' in abl: ex[first_of[J - 3]].extend(code_refetch(name, 'rf', f'L_{name}_fin', 1, 14, 'v[126:127]', 92, sWAVE))
    if 'rf55' in abl: ex[first_of[5]].extend(code_refetch(name, 'rf2', f'L_{name}_fin', 1, 14, 'v[126:127]', 92, sWAVE))
    g = [[f"s_lshl_b32 s{sEX}, s2, 2", f"s_add_u32 s{sEX}, s{sEX}, s{sWAVE}", f"s_lshl_b32 s{sEX}, s{sEX}, 12", f"s_add_u32 s{sEX}, s{sEX}, {OFF_EX}",
          f"s_xor_b32 s{sEX+1}, s{sEX}, {PX << 14}"]]
    ex[pj - 1].extend(g)
    g = []
    for k in range(4):
        tt, m = k >> 1, k & 1
        a0, a1 = acc(4 + 2 * m, tt), acc(5 + 2 * m, tt)
        g += [f"v_cvt_pk_bf16_f32 v{a0}, v{a0}, v{a0+1}", f"v_cvt_pk_bf16_f32 v{a0+1}, v{a0+2}, v{a0+3}", f"v_cvt_pk_bf16_f32 v{a0+2}, v{a1}, v{a1+1}", f"v_cvt_pk_bf16_f32 v{a0+3}, v{a1+2}, v{a1+3}"]
        g.append(VM(("ES", None, k), f"buffer_store_dwordx4 {vr(a0,4)}, v{vXO}, s[{sWS}:{sWS+3}], s{sEX+1} offen offset:{k*1024}{SC1}"))
    estore = g
    g = [[f"s_lshl_b32 s{sT2}, s{sTT0}, 15", f"s_lshl_b32 s{sCNT}, s{sCB}, 11", f"s_add_u32 s{sT2}, s{sT2}, s{sCNT}", f"s_add_u32 s{sT2}, s{sT2}, {OFF_H}", f"s_add_u32 s{sCNT}, s{sT2}, 32768"]]
    for tt in range(2):
        for m in range(2):
            g.append(VM(("R", None, 0), f"buffer_load_dwordx4 {vr(vRES + (tt*2+m)*4, 4)}, v{vXO}, s[{sWS}:{sWS+3}], s{sT2 if tt == 0 else sCNT} offen offset:{m*1024}"))
    dls[pj - 2].extend(g)
    prex = {pj: dls[pj] + estore}; dls[pj] = []
    eloads = [f"buffer_load_dwordx4 {vr(EXL + 4*k, 4)}, v{vXO}, s[{sWS}:{sWS+3}], s{sEX} offen offset:{k*1024} sc1" for k in range(4)]
    ELAT = len(PH) - 1
    for k in abl:
        if k.startswith("E") and k[1:].isdigit(): ELAT = len(PH) - int(k[1:])
    if ELAT < len(PH): dls[ELAT].extend([VM(("EL", None, 0), t) for t in eloads])
    P.pre.append(WaitVM([("D", 0, None)], " lgkmcnt(0)"))
    A("s_barrier")
    X(reads(0))
    X(gen.stamp(1))
    for pi, (t, fr) in enumerate(PH):
        mf = []
        for j, (ks, n) in enumerate(fr):
            for tt in ((0, 1) if j % 2 == 0 else (1, 0)):
                mf.append(f"{MFMA} {vr(acc(n,tt),4)}, {wreg(pi & 1, j)}, {xreg(t, ks, tt)}, {'0' if pi == 0 else vr(acc(n,tt),4)}")
        tags = [("X", t, max(k for k, n in fr))]
        bar = pi == last_of[t] and t + 1 < NT
        if bar: tags.append(("D", t + 1, None))
        pre = [WaitVM(tags, " lgkmcnt(0)")] + (["s_barrier"] if bar else [])
        rd = reads(pi + 1) if pi + 1 < len(PH) else []
        if pi == pj: X(gen.stamp(2))
        X(prex.get(pi, []))
        X(pre); X(pack_gaps(mf, rd, dls[pi], ex[pi], last=13))
    X(gen.stamp(3))
    if ELAT >= len(PH): X(eloads)
    A(f"s_lshl_b32 s{sT0}, s{sTT0}, 15"); A(f"s_lshl_b32 s{sT1}, s{sCB}, 7"); A(f"s_add_u32 s{sT0}, s{sT0}, s{sT1}")
    A(f"s_add_u32 s{sT1}, s{sT0}, 32768")
    P.pre.append(WaitVM([("R", None, 0)]))
    for tt in range(2):
        for m in range(2):
            r = vRES + (tt * 2 + m) * 4
            for d in range(4):
                a = acc(2 * m + (d >> 1), tt) + 2 * (d & 1)
                A(unpack_lo(10, r + d)); A(unpack_hi(11, r + d))
                A(f"v_pk_add_f32 {vr(a,2)}, {vr(a,2)}, v[10:11]")
    def tagcheck():
        return [f"v_max3_u32 v10, v{EXL}, v{EXL+4}, v{EXL+8}", f"v_max3_u32 v11, v{EXL+3}, v{EXL+7}, v{EXL+11}", f"v_max3_u32 v10, v10, v{EXL+12}, v{EXL+15}",
                "v_max_u32 v10, v10, v11", "v_cmp_eq_u32 vcc, -1, v10"]
    A(f"s_mov_b32 s{sCNT}, 0")
    A("s_waitcnt vmcnt(0)")
    A(f"L_{name}_ck:")
    X(tagcheck())
    A(f"s_cbranch_vccnz L_{name}_rt")
    A(f"L_{name}_ok:")
    OUT.extend([f"L_{name}_rt:", f"s_add_u32 s{sCNT}, s{sCNT}, 1", f"s_cmp_ge_u32 s{sCNT}, {SPIN}", f"s_cbranch_scc1 L_{name}_ok",
                "s_mov_b64 exec, vcc", "s_sleep 1"] + eloads + ["s_mov_b64 exec, -1", "s_waitcnt vmcnt(0)", f"s_branch L_{name}_ck"])
    X(gen.stamp(4))
    for tt in range(2):
        for m in range(2):
            r = vRES + (tt * 2 + m) * 4
            for d in range(4):
                a = acc(2 * m + (d >> 1), tt) + 2 * (d & 1); e = EXL + (tt * 2 + m) * 4 + d
                A(unpack_lo(10, e)); A(unpack_hi(11, e))
                A(f"v_pk_add_f32 {vr(a,2)}, {vr(a,2)}, v[10:11]")
                A(f"v_cvt_pk_bf16_f32 v{r+d}, v{a}, v{a+1}")
            A(f"v_permlane16_swap_b32 v{r}, v{r+2}"); A(f"v_permlane16_swap_b32 v{r+1}, v{r+3}")
            A(f"buffer_store_dwordx4 {vr(r,4)}, v{vRM}, s[{sAUX}:{sAUX+3}], s{sT0 if tt == 0 else sT1} offen offset:{m*64}{' sc1' if 'wt5' in abl else ''}")
    if gen.STAMPS:
        X(gen.stamp(5)); A("s_waitcnt vmcnt(0)"); X(gen.stamp(6)); X(stamp_store(5, 7, sWS))
    A(f"L_{name}_end:"); A("s_endpgm")
    X(OUT); A(f"L_{name}_fin:")
    return finish(P, name, 128 + 128, 128, 3 * SS)
```

```python
import sys
import gen
from gen_k1f import gen_k1f
from gen_k4n import gen_k4n
from gen_k5n import gen_k5n
DEF = ("pt", "t13", "tg", "t2", "rf", "k5n", "w2c", "pfb", "rf5", "rf55")
def kernels(abl=DEF):
    return [gen_k1f(abl=abl), gen.gen_n64("k3", abl=abl), gen_k4n(abl=abl), (gen_k5n(abl=abl) if "k5n" in abl else gen.gen_n64("k5"))]
if __name__ == "__main__":
    REF = "sequential_preLN__linear_kernel_hedgehog__glu_gated_swiglu__prompt.s"
    HEADER = open(REF + ".ref").read().split("; Override launch")[0]
    out = sys.argv[1] if len(sys.argv) > 1 else REF
    abl = tuple(sys.argv[2].split(",")) if len(sys.argv) > 2 else DEF
    open(out, "w").write(HEADER + gen.build(kernels(abl)))
```

```python
import sys
import gen, mk
from asmlib import *
import hazard
gen.STAMPS = True
REF = "sequential_preLN__linear_kernel_hedgehog__glu_gated_swiglu__prompt.s"
HEADER = open(REF + ".ref").read().split("; Override launch")[0]
def diag(sel, wg):
    n = "d_kernel"
    L = kernel_header(n)
    A = L.append
    A("s_cmp_ge_u32 s2, 1"); A("s_cbranch_scc1 L_d_end")
    A("s_load_dwordx4 s[40:43], s[0:1], 72"); A("s_waitcnt lgkmcnt(0)")
    L += gen.srd(4, 40, 41, 256) + gen.srd(8, 42, 43, gen.WS_BYTES)
    A("v_mov_b32 v1, 0")
    for i, (a, b) in enumerate(sel):
        for j, (kid, idx) in enumerate((a, b)):
            A(f"s_mov_b32 s20, {gen.OFF_DBG + kid*65536 + wg*64 + idx*4}")
            A(f"buffer_load_dword v{2+j}, v1, s[8:11], s20 offen")
        A("s_waitcnt vmcnt(0)"); A("v_sub_u32 v2, v2, v3")
        A(f"buffer_store_dword v2, v1, s[4:7], 0 offen offset:{4*i}"); A("s_waitcnt vmcnt(0)")
    A("L_d_end:"); A("s_endpgm")
    return (f"; @launch kernel={n} grid=(1,1,1) block=(64,1,1) lds=0", hazard.fix(L), kernel_desc(n, 8, 8, 64))
abl = tuple(sys.argv[2].split(",")) if len(sys.argv) > 2 else mk.DEF
ks = mk.kernels(abl)
Z = (1, 8)
sel = [((1, 9), Z), ((1, 10), Z), ((1, 14), Z), ((1, 15), Z), ((3, 8), Z), ((3, 12), Z), ((4, 8), Z), ((4, 9), Z), ((4, 10), Z), ((4, 12), Z), ((5, 8), Z), ((5, 10), Z), ((5, 14), Z),
       ((1, 2), (1, 1)), ((4, 2), (4, 1)), ((5, 2), (5, 1))]
open(sys.argv[1], "w").write(HEADER + gen.build(ks + [diag(sel, 9)]))
```

```python
import sys, struct
from asmlib import *
import hazard

import os
WB0 = int(os.environ.get("WB0", "0")) << 20
OFF_O, OFF_H, OFF_HH, OFF_ST, OFF_CS, OFF_PQ, OFF_KV, OFF_XN, OFF_DBG = [WB0 + x for x in (24<<20, 4<<20, 8<<20, 61<<20, (61<<20) + (512<<10), 0, 0, 0, 72<<20)]
WS_BYTES = 268435456
LOG2E = 1.4426950408889634
def f2u(x): return struct.unpack("<I", struct.pack("<f", x))[0]
def fh(x): return hex(f2u(x))
MFMA = "v_mfma_f32_16x16x32_bf16"

STAMPS = False
NSTAMPS = {}
PREFETCH = True

def srd(base, ptr_lo, ptr_hi, nrec):
    return [f"s_mov_b32 s{base}, s{ptr_lo}", f"s_mov_b32 s{base+1}, s{ptr_hi}",
            f"s_mov_b32 s{base+2}, {nrec}", f"s_mov_b32 s{base+3}, 0x00020000"]

def srd_add(base, sreg_or_imm):
    return [f"s_add_u32 s{base}, s{base}, {sreg_or_imm}", f"s_addc_u32 s{base+1}, s{base+1}, 0"]

def srd_advance(base, step):
    return [f"s_add_u32 s{base}, s{base}, {step}", f"s_addc_u32 s{base+1}, s{base+1}, 0",
            f"s_sub_u32 s{base+2}, s{base+2}, {step}", f"s_cselect_b32 s{base+2}, 0, s{base+2}"]

def stamp(idx):
    if not STAMPS: return []
    return ["s_memtime s[98:99]", "s_memrealtime s[96:97]", "s_waitcnt lgkmcnt(0)", f"s_mov_b32 s{80+idx}, s98", f"s_mov_b32 s{72+idx}, s96"]

def stamp_store(kid, nst, srd_ws):
    if not STAMPS: return []
    NSTAMPS[kid] = nst
    L = [f"s_lshl_b32 s98, s2, 6", f"s_add_u32 s98, s98, {OFF_DBG + kid*65536}",
         "v_mov_b32 v1, 0"]
    L += ["s_mov_b64 exec, 1"]
    for i in range(nst):
        L += [f"v_mov_b32 v2, s{80+i}", f"buffer_store_dword v2, v1, s[{srd_ws}:{srd_ws+3}], s98 offen offset:{4*i}"]
        L += [f"v_mov_b32 v3, s{72+i}", f"buffer_store_dword v3, v1, s[{srd_ws}:{srd_ws+3}], s98 offen offset:{32+4*i}"]
    return L

OFF_EX = WB0
C3D = 28 << 20
def lane16(dst, tmp=None):
    return [f"v_lshlrev_b32 v{dst}, 4, v0",
            ["s_mov_b32 exec_lo, 0xff000000", "s_mov_b32 exec_hi, 0", f"v_add_u32 v{dst}, {C3D + 128}, v{dst}", "s_mov_b64 exec, -1"]]

CODEPF = True
def code_prefetch(name, endlabel, n, vt, dst, sp=92):
    if not CODEPF: return []
    return [f"s_getpc_b64 s[{sp}:{sp+1}]", f"L_{name}_pc:",
            f"s_and_b32 s{sp}, s{sp}, 0xffffff80",
            f"s_lshr_b32 s{sp+2}, s2, 3", f"s_lshl_b32 s{sp+2}, s{sp+2}, 2",
            f"v_lshrrev_b32 v{vt}, 6, v0", f"v_add_u32 v{vt}, s{sp+2}, v{vt}", f"v_mul_u32_u24 v{vt}, {n}, v{vt}",
            f"v_and_b32 v{vt+1}, 63, v0", f"v_min_u32 v{vt+1}, {n-1}, v{vt+1}", f"v_add_lshl_u32 v{vt}, v{vt}, v{vt+1}, 7",
            f"v_min_u32 v{vt}, {endlabel}-L_{name}_pc-128, v{vt}",
            f"global_load_dwordx2 {dst}, v{vt}, s[{sp}:{sp+1}] offset:60"]

def code_refetch(name, tag, endlabel, n, vt, dst, sp, sWAVE):
    if not CODEPF: return []
    return [[f"s_getpc_b64 s[{sp}:{sp+1}]", f"L_{name}_{tag}:", f"s_and_b32 s{sp}, s{sp}, 0xffffff80"],
            [f"s_lshr_b32 s{sp+2}, s2, 3", f"s_lshl_b32 s{sp+2}, s{sp+2}, 2", f"s_add_u32 s{sp+2}, s{sp+2}, s{sWAVE}", f"s_mul_i32 s{sp+2}, s{sp+2}, {n}"],
            f"v_min_u32 v{vt}, {n-1}, v0", f"v_add_lshl_u32 v{vt}, v{vt}, s{sp+2}, 7",
            f"v_min_u32 v{vt}, {endlabel}-L_{name}_{tag}-128, v{vt}",
            VM(("T", None, 7), f"global_load_dwordx2 {dst}, v{vt}, s[{sp}:{sp+1}] offset:60")]

def flat(l):
    o = []
    for e in l:
        if isinstance(e, list): o.extend(flat(e))
        else: o.append(e)
    return o

def bc(reg):
    return (f"v[{reg & ~1}:{(reg & ~1) + 1}]", reg & 1)

def xreduce(reg, tmp, op):
    return [f"v_mov_b32 v{tmp}, v{reg}", f"v_permlane16_swap_b32 v{tmp}, v{reg}", f"{op} v{reg}, v{reg}, v{tmp}",
            f"v_mov_b32 v{tmp}, v{reg}", f"v_permlane32_swap_b32 v{tmp}, v{reg}", f"{op} v{reg}, v{reg}, v{tmp}"]

def zip_streams(*streams):
    out = []
    n = max(len(x) for x in streams)
    for i in range(n):
        for x in streams:
            if i < len(x): out.append(x[i])
    return out

def finish(P, name, nv, accum, lds, block=256, grid=256):
    P.resolve()
    pre, body, post = P.text(P.pre), P.text(P.body), P.text(P.post)
    MARK1, MARK2 = "; --body--", "; --post--"
    allt = hazard.fix(pre + [MARK1] + body + [MARK2] + post)
    i1, i2 = allt.index(MARK1), allt.index(MARK2)
    bad = hazard.check_loop(allt[i1 + 1:i2])
    assert not bad, bad
    desc = kernel_desc(name, nv, accum)
    launch = f"; @launch kernel={name} grid=({grid},1,1) block=({block},1,1) lds={lds}"
    return launch, allt, desc

def wg_decode(sRB, sCB, sT0, sT1, sT2, rbits_x, rb_per, cb_per):
    import math
    lr = int(math.log2(rb_per)); lc = int(math.log2(cb_per))
    return [f"s_and_b32 s{sT0}, s2, 7", f"s_lshr_b32 s{sT1}, s2, 3",
            f"s_and_b32 s{sRB}, s{sT0}, {(1<<rbits_x)-1}", f"s_lshl_b32 s{sRB}, s{sRB}, {lr}",
            f"s_and_b32 s{sT2}, s{sT1}, {rb_per-1}", f"s_add_u32 s{sRB}, s{sRB}, s{sT2}",
            f"s_lshr_b32 s{sCB}, s{sT0}, {rbits_x}", f"s_lshl_b32 s{sCB}, s{sCB}, {lc}",
            f"s_lshr_b32 s{sT2}, s{sT1}, {lr}", f"s_add_u32 s{sCB}, s{sCB}, s{sT2}"]

def gen_k4(name="k4_kernel", abl=()):
    P = Prog()
    A = P.pre.append
    def X(l): P.pre.extend(flat(l))
    NT, UNR = 16, 2
    UPO = 14336
    SS = 32768
    CSO = 28672
    sW, sX, sWS = 4, 8, 12
    sXO = 16
    sCNT, sM0, sWAVE, sRB, sCB, sT0, sT1, sT2, sTT0 = 20, 21, 22, 23, 24, 25, 26, 27, 28
    vXO, vDS, vDMA = 1, 2, 4
    aX, aW, aST, aCS = 0, 64, 120, 152
    def acc(h, i, tt): return 32 + ((h * 7 + i) * 4 + tt) * 4
    def wreg(p, i, t=None):
        b = aW + (p & 1) * 28 + 4 * i
        return ar(b, 4) if t is None else ar(b + 2 * t, 2)
    def xreg(slot, tt): return ar(aX + slot * 16 + tt * 4, 4)

    X(kernel_header(name))
    A("s_cmp_ge_u32 s2, 256"); A(f"s_cbranch_scc1 L_{name}_end")
    X(stamp(0))
    A("s_load_dwordx4 s[36:39], s[0:1], 40")
    A("s_load_dwordx2 s[40:41], s[0:1], 80")
    A("v_mov_b32 v31, v0")
    A("v_lshrrev_b32 v1, 6, v0"); A("v_and_b32 v0, 63, v0")
    A(f"v_readfirstlane_b32 s{sWAVE}, v1")
    X(wg_decode(sRB, sCB, sT0, sT1, sT2, 1, 4, 8))
    A(f"s_and_b32 s{sT0}, s{sWAVE}, 1"); A(f"s_mul_i32 s{sT0}, s{sT0}, {32*7168}")
    A(f"s_mul_i32 s{sT1}, s{sCB}, 224"); A(f"s_add_u32 s{sT0}, s{sT0}, s{sT1}")
    A(f"s_and_b32 s{sT1}, s{sCB}, 1"); A(f"s_lshl_b32 s{sT1}, s{sT1}, 1")
    for q in range(7):
        A(f"v_add_u32 v11, {64*q}, v0")
        A(f"v_mul_u32_u24 v12, 4682, v11"); A("v_lshrrev_b32 v12, 16, v12")
        A("v_mul_u32_u24 v13, 14, v12"); A("v_sub_u32 v13, v11, v13")
        A(f"v_add_u32 v13, s{sT1}, v13"); A("v_subrev_u32 v14, 14, v13"); A("v_min_u32 v13, v13, v14")
        A(f"v_mul_u32_u24 v12, 7168, v12"); A("v_lshlrev_b32 v13, 4, v13")
        A(f"v_add3_u32 v{vDMA+q}, v12, v13, s{sT0}")
        if q & 3: A(f"v_subrev_u32 v{vDMA+q}, {(q&3)*1024}, v{vDMA+q}")
    A(f"v_lshlrev_b32 v{vXO}, 4, v0")
    for tt in range(1, 4): A(f"s_mov_b32 s{sXO+tt-1}, {tt*32768}")
    A(f"s_lshr_b32 s{sT0}, s{sWAVE}, 1"); A(f"s_mul_i32 s{sM0}, s{sT0}, {UPO}")
    A(f"s_and_b32 s{sT0}, s{sWAVE}, 1"); A(f"s_mul_i32 s{sT0}, s{sT0}, 7168"); A(f"s_add_u32 s{sM0}, s{sM0}, s{sT0}")
    A(f"s_lshl_b32 s{sTT0}, s{sRB}, 4"); A(f"s_lshl_b32 s{sT1}, s{sWAVE}, 2"); A(f"s_add_u32 s{sTT0}, s{sTT0}, s{sT1}")
    A(f"s_lshl_b32 s{sT0}, s{sTT0}, 15"); A(f"s_add_u32 s{sT0}, s{sT0}, {OFF_H}")
    A(f"s_cmp_ge_u32 s{sWAVE}, 2")
    A("s_waitcnt lgkmcnt(0)")
    A(f"s_cselect_b32 s{sW}, s38, s36"); A(f"s_cselect_b32 s{sW+1}, s39, s37")
    A(f"s_mov_b32 s{sW+2}, {1024*7168}"); A(f"s_mov_b32 s{sW+3}, 0x00020000")
    X(srd(sX, 40, 41, 4*32768)); X(srd_add(sX, f"s{sT0}"))
    X(srd(sWS, 40, 41, WS_BYTES))

    def dma(tile_rel, stage_off):
        L = []
        for q in range(7):
            grp = []
            if q in (0, 4):
                grp.append(f"s_add_u32 m0, s{sM0}, {stage_off + q*1024}")
            grp.append(VM(("D", tile_rel, q), f"buffer_load_dwordx4 v{vDMA+q}, s[{sW}:{sW+3}], 0 offen offset:{(q&3)*1024} lds"))
            L.append(grp)
        L.append(srd_advance(sW, 64 * 7168))
        return L
    def xload(tile_rel, ks, slot):
        return [VM(("X", tile_rel, ks), f"buffer_load_dwordx4 {xreg(slot, tt)}, v{vXO}, s[{sX}:{sX+3}], {'0' if tt == 0 else 's%d' % (sXO+tt-1)} offen offset:{ks*1024}") for tt in range(4)]
    xadv = [srd_add(sX, 2048)]

    X(dma(0, 0)); X(xload(0, 0, 0)); X(xload(0, 1, 1)); X(xadv)
    X(dma(1, SS)); X(xload(1, 0, 2))
    A("v_lshrrev_b32 v11, 4, v0"); A("v_lshlrev_b32 v11, 2, v11")
    A("v_and_b32 v12, 15, v0"); A("v_lshrrev_b32 v12, 2, v12"); A("v_add_u32 v11, v11, v12")
    A("v_mul_u32_u24 v11, 224, v11")
    A("v_and_b32 v12, 3, v0"); A(f"v_lshl_add_u32 v{vDS}, v12, 3, v11")
    A("v_and_b32 v11, 15, v0"); A("v_lshrrev_b32 v12, 4, v0")
    A("v_lshlrev_b32 v11, 7, v11"); A("v_lshl_add_u32 v11, v12, 5, v11")
    A(f"s_lshl_b32 s{sT0}, s{sTT0}, 11"); A(f"s_add_u32 s{sT0}, s{sT0}, {OFF_ST}")
    for tt in range(4):
        for i in range(2):
            P.pre.append(VM(("S", None, 0), f"buffer_load_dwordx4 {ar(aST + tt*8 + i*4, 4)}, v11, s[{sWS}:{sWS+3}], s{sT0} offen offset:{(tt&1)*2048 + i*16}"))
        if tt == 1: A(f"s_add_u32 s{sT0}, s{sT0}, 4096")
    A("v_cmp_le_u32 vcc, 112, v31"); A("v_subrev_u32 v11, 112, v31"); A("v_mov_b32 v13, 0"); A(f"v_mov_b32 v14, {3584*64}")
    A("v_cndmask_b32 v11, v31, v11, vcc"); A("v_cndmask_b32 v13, v13, v14, vcc")
    A(f"s_and_b32 s{sT1}, s{sCB}, 1"); A(f"s_lshl_b32 s{sT1}, s{sT1}, 4")
    A(f"v_add_u32 v11, s{sT1}, v11"); A("v_subrev_u32 v12, 112, v11"); A("v_min_u32 v11, v11, v12")
    A("v_lshl_add_u32 v11, v11, 6, v13")
    A(f"s_mul_i32 s{sT0}, s{sCB}, {112*64}"); A(f"s_add_u32 s{sT0}, s{sT0}, {OFF_CS}")
    for i in range(4):
        P.pre.append(VM(("C", None, 0), f"buffer_load_dwordx4 {ar(aCS+4*i, 4)}, v11, s[{sWS}:{sWS+3}], s{sT0} offen offset:{16*i}"))
    for r in range(32, 256): A(f"v_mov_b32 v{r}, 0")
    def trreads(p, stage_imm):
        ks, h = p >> 1, p & 1
        return [f"ds_read_b64_tr_b16 {wreg(p, i, t)}, v{vDS} offset:{stage_imm + h*UPO + (32*ks + 16*t)*224 + i*32}" for i in range(7) for t in range(2)]
    P.pre.append(WaitVM([("D", 0, None)]))
    A("s_barrier")
    X(trreads(0, 0))
    A(f"s_mov_b32 s{sCNT}, 0")
    A(f"s_xor_b32 s{sM0}, s{sM0}, 0x10000")
    X(stamp(1))
    A(f"L_{name}_loop:")
    B = P.body
    for u in range(UNR):
        for p in range(4):
            ks, h = p >> 1, p & 1
            slot = u * 2 + ks
            mf = [f"{MFMA} {vr(acc(h,i,tt),4)}, {wreg(p,i)}, {xreg(slot,tt)}, {vr(acc(h,i,tt),4)}" for i in range(7) for tt in (range(4) if i % 2 == 0 else range(3, -1, -1))]
            if p == 3: pre = [WaitVM([("D", u + 1, None)], " lgkmcnt(0)"), "s_barrier"]
            elif h == 0: pre = [WaitVM([("X", u, ks)], " lgkmcnt(0)")]
            else: pre = ["s_waitcnt lgkmcnt(0)"]
            if p < 3: rd = trreads(p + 1, u * SS)
            else:
                rd = trreads(0, ((u + 1) & 1) * SS)
                if u == 1: rd = [f"v_xor_b32 v{vDS}, 0x10000, v{vDS}"] + rd
            if p == 0:
                xl = xload(u + 1, 1, ((u + 1) & 1) * 2 + 1) + xadv
                if u == 0: xl += [[f"s_cmp_eq_u32 s{sCNT}, {NT//UNR - 1}", f"s_cselect_b32 s{sX+2}, 0, s{sX+2}"]]
            elif p == 2: xl = xload(u + 2, 0, u * 2)
            else: xl = []
            d = dma(u + 2, u * SS)
            if p == 1: dl = d[0:4]
            elif p == 3: dl = d[4:8]
            else: dl = []
            if "dma" in abl: dl = []
            if "x" in abl: xl = []
            if "tr" in abl: rd = []
            if "bar" in abl: pre = [x for x in pre if x != "s_barrier"]
            if "dma" in abl or "x" in abl: pre = [("s_waitcnt lgkmcnt(0)" if isinstance(x, WaitVM) else x) for x in pre]
            body = interleave(mf, merge_fillers(rd, xl + dl), 0, 22)
            B.extend(pre + flat(body))
    B.append(f"s_xor_b32 s{sM0}, s{sM0}, 0x10000")
    B.append(f"s_add_u32 s{sCNT}, s{sCNT}, 1"); B.append(f"s_cmp_lt_u32 s{sCNT}, {NT//UNR}")
    B.append(f"s_cbranch_scc1 L_{name}_loop")
    P.niter = NT // UNR; P.unr = UNR
    E = P.post.append
    def EX(l): P.post.extend(flat(l))
    EX(stamp(2))
    P.post.append(WaitVM([("S", None, 0), ("C", None, 0)]))
    for i in range(16): E(f"v_accvgpr_read_b32 v{4+i}, a{aCS+i}")
    for s in (8, 4, 2, 1):
        for i in range(s): E(f"v_add_f32 v{4+i}, v{4+i}, v{4+s+i}")
    E("v_lshlrev_b32 v3, 2, v31")
    E(f"ds_write_b32 v3, v4 offset:{CSO}")
    vST = 20
    for tt in range(4):
        for i in range(8): E(f"v_accvgpr_read_b32 v{4+i}, a{aST + tt*8 + i}")
        E("v_add_f32 v4, v4, v6"); E("v_add_f32 v5, v5, v7"); E("v_add_f32 v8, v8, v10"); E("v_add_f32 v9, v9, v11")
        E("v_add_f32 v4, v4, v8"); E("v_add_f32 v5, v5, v9")
        EX(zip_streams(xreduce(4, 6, "v_add_f32"), xreduce(5, 7, "v_add_f32")))
        nm, c1, ve = vST + tt * 3, vST + tt * 3 + 1, vST + tt * 3 + 2
        E(f"v_mul_f32 v{nm}, {fh(-1.0/1024)}, v4")
        E(f"v_mul_f32 v{ve}, {fh(1.0/1024)}, v5")
        E(f"v_fma_f32 v{ve}, -v{nm}, v{nm}, v{ve}")
        E(f"v_max_f32 v{ve}, 0, v{ve}")
        E(f"v_add_f32 v{ve}, {fh(1e-5)}, v{ve}")
        E(f"v_rsq_f32 v{c1}, v{ve}")
        E(f"v_mul_f32 v{c1}, {fh(-LOG2E)}, v{c1}")
    E("s_waitcnt lgkmcnt(0)"); E("s_barrier")
    EX(stamp(3))
    E("v_lshrrev_b32 v3, 4, v0"); E("v_lshlrev_b32 v3, 4, v3")
    E(f"s_mul_i32 s{sT0}, s{sCB}, 7"); E(f"s_and_b32 s{sT1}, s{sCB}, 1"); E(f"s_add_u32 s{sT0}, s{sT0}, s{sT1}"); E(f"s_lshr_b32 s{sT0}, s{sT0}, 1")
    E(f"s_mul_i32 s{sT2}, s{sTT0}, 112"); E(f"s_add_u32 s{sT0}, s{sT0}, s{sT2}")
    E(f"s_lshl_b32 s{sT0}, s{sT0}, 10"); E(f"s_add_u32 s{sT0}, s{sT0}, {OFF_HH}")
    sO = 44
    for tt in range(4): E(f"s_add_u32 s{sO+tt}, s{sT0}, {tt*112*1024}")
    E(f"s_mov_b32 s{sT2}, {(-1024 + 8) & 0xffffffff}"); E(f"s_cmp_eq_u32 s{sT1}, 0"); E(f"s_cselect_b32 s{sT2}, {3*1024}, s{sT2}")
    for tt in range(4): E(f"s_add_u32 s{sO+4+tt}, s{sO+tt}, s{sT2}")
    def csread(grp, buf):
        L = []
        for k, i in enumerate(grp):
            L.append(f"ds_read_b128 {vr(buf + 8*k, 4)}, v3 offset:{CSO + i*64}")
            L.append(f"ds_read_b128 {vr(buf + 8*k + 4, 4)}, v3 offset:{CSO + 448 + i*64}")
        return L
    groups = [(0, 1), (2, 3), (4, 5), (6,)]
    EX(csread(groups[0], 4))
    E("s_waitcnt lgkmcnt(0)")
    for gi, grp in enumerate(groups):
        cbuf = 4 if gi == 0 else acc(0, 0, 0) + 16 * ((gi - 1) & 1)
        for tt in range(4):
            nm, c1, ve = vST + tt * 3, vST + tt * 3 + 1, vST + tt * 3 + 2
            (pn, sn), (pc, sc), (pv, sv) = bc(nm), bc(c1), bc(ve)
            G = [acc(0, i, tt) for i in grp]; U = [acc(1, i, tt) for i in grp]
            for k in range(len(grp)):
                for j in (0, 2):
                    E(f"v_pk_fma_f32 {vr(G[k]+j,2)}, {vr(cbuf+8*k+j,2)}, {pn}, {vr(G[k]+j,2)} op_sel:[0,{sn},0] op_sel_hi:[1,{sn},1]")
                for j in (0, 2):
                    E(f"v_pk_fma_f32 {vr(U[k]+j,2)}, {vr(cbuf+8*k+4+j,2)}, {pn}, {vr(U[k]+j,2)} op_sel:[0,{sn},0] op_sel_hi:[1,{sn},1]")
            for k in range(len(grp)):
                for j in (0, 2): E(f"v_pk_mul_f32 {vr(U[k]+j,2)}, {vr(U[k]+j,2)}, {vr(G[k]+j,2)}")
            for k in range(len(grp)):
                for j in (0, 2): E(f"v_pk_mul_f32 {vr(G[k]+j,2)}, {vr(G[k]+j,2)}, {pc} op_sel:[0,{sc}] op_sel_hi:[1,{sc}]")
            for k in range(len(grp)):
                for j in range(4): E(f"v_exp_f32 v{G[k]+j}, v{G[k]+j}")
            for k in range(len(grp)):
                for j in (0, 2): E(f"v_pk_fma_f32 {vr(G[k]+j,2)}, {vr(G[k]+j,2)}, {pv}, {pv} op_sel:[0,{sv},{sv}] op_sel_hi:[1,{sv},{sv}]")
            for k in range(len(grp)):
                for j in range(4): E(f"v_rcp_f32 v{G[k]+j}, v{G[k]+j}")
            for k in range(len(grp)):
                for j in (0, 2): E(f"v_pk_mul_f32 {vr(G[k]+j,2)}, {vr(G[k]+j,2)}, {vr(U[k]+j,2)}")
            for k in range(len(grp)):
                for j in (0, 1): E(f"v_cvt_pk_bf16_f32 v{U[0]+2*k+j}, v{G[k]+2*j}, v{G[k]+2*j+1}")
            if len(grp) == 2:
                E(f"buffer_store_dwordx4 {vr(U[0],4)}, v{vXO}, s[{sWS}:{sWS+3}], s{sO+tt} offen offset:{gi*1024}")
            else:
                E(f"buffer_store_dwordx2 {vr(U[0],2)}, v{vXO}, s[{sWS}:{sWS+3}], s{sO+4+tt} offen")
            if tt == 3 and gi == 0:
                EX(csread(groups[1], acc(0, 0, 0))); EX(csread(groups[2], acc(0, 0, 0) + 16)); E("s_waitcnt lgkmcnt(4)")
            if tt == 3 and gi == 1:
                EX(csread(groups[3], acc(0, 0, 0))); E("s_waitcnt lgkmcnt(2)")
            if tt == 3 and gi == 2:
                E("s_waitcnt lgkmcnt(0)")
    if STAMPS:
        EX(stamp(4))
        E("s_waitcnt vmcnt(0)")
        EX(stamp(5))
        EX(stamp_store(4, 6, sWS))
    E(f"L_{name}_end:"); E("s_endpgm")
    return finish(P, name, 256 + 168, 256, 4 * SS)


def unpack_lo(dst, src): return f"v_lshlrev_b32 v{dst}, 16, v{src}"
def unpack_hi(dst, src): return f"v_and_b32 v{dst}, 0xffff0000, v{src}"

def rowmajor_voff(dst, t1, t2, row_stride_log2):
    return [f"v_and_b32 v{t1}, 15, v0", f"v_lshlrev_b32 v{t1}, {row_stride_log2}, v{t1}",
            f"v_and_b32 v{t2}, 16, v0", f"v_lshl_add_u32 v{t1}, v{t2}, 1, v{t1}",
            f"v_and_b32 v{t2}, 32, v0", f"v_lshrrev_b32 v{t2}, 1, v{t2}", f"v_add_u32 v{dst}, v{t1}, v{t2}"]

def tr_addr_128(vDS, t1, t2, t3):
    L = [f"v_lshrrev_b32 v{t1}, 2, v0",
         f"v_lshrrev_b32 v{t2}, 1, v{t1}", f"v_and_b32 v{t2}, 3, v{t2}",
         f"v_lshlrev_b32 v{t1}, 7, v{t1}",
         f"v_and_b32 v{t3}, 3, v0", f"v_lshl_add_u32 v{t1}, v{t3}, 3, v{t1}"]
    for i in range(4):
        L += [f"v_xor_b32 v{t3}, {i}, v{t2}", f"v_lshl_add_u32 v{vDS+i}, v{t3}, 5, v{t1}"]
    return L

def dma_voff_128(dst, t1, t2, row_stride):
    return [f"v_lshrrev_b32 v{t1}, 3, v0", f"v_and_b32 v{t2}, 6, v{t1}",
            f"v_mul_u32_u24 v{t1}, {row_stride}, v{t1}",
            f"v_xor_b32 v{t2}, v{t2}, v0", f"v_and_b32 v{t2}, 7, v{t2}",
            f"v_lshl_add_u32 v{dst}, v{t2}, 4, v{t1}"]

def gen_n64(kind, abl=(), WN=1, ra=0, rb_=0):
    ST = ' sc1' if 'wt3' in abl else ''
    name = f"{kind}_kernel"
    k3 = kind == "k3"
    KS = 32 if k3 else 112
    NT, UNR = KS // 4, 4
    if WN is None: WN = 8 if k3 else 7
    XOFF = OFF_O if k3 else OFF_HH
    P = Prog(); A = P.pre.append
    def X(l): P.pre.extend(flat(l))
    SS = 16384
    sW, sX, sWS, sAUX = 4, 8, 12, 16
    sXO, sDO, sCNT, sM0, sWAVE, sRB, sCB, sT0, sT1, sT2, sTT0 = 20, 21, 24, 25, 26, 27, 28, 29, 30, 31, 32
    sJ, sC, sWB, sTI = 33, 34, 35, 42
    sXB, sWBASE = 44, 36
    vXO, vDMA, vDS, vRM, vRES = 1, 2, 4, 8, 16
    aX, aW = 0, 128
    def acc(i, tt): return 32 + (i * 2 + tt) * 4
    def wreg(p, k2, i, t=None):
        b = aW + (p & 1) * 32 + (k2 * 4 + i) * 4
        return ar(b, 4) if t is None else ar(b + 2 * t, 2)
    def xreg(u, ks, tt): return ar(aX + ((u * 4 + ks) * 2 + tt) * 4, 4)
    X(kernel_header(name))
    A("s_cmp_ge_u32 s2, 256"); A(f"s_cbranch_scc1 L_{name}_end")
    X(stamp(0))
    A(f"s_load_dwordx2 s[36:37], s[0:1], {24 if k3 else 56}")
    A(f"s_load_dwordx2 s[38:39], s[0:1], {0 if k3 else 64}")
    A("s_load_dwordx2 s[40:41], s[0:1], 80")
    X(code_prefetch(name, f"L_{name}_fin", 1, 10, "v[14:15]"))
    A("v_lshrrev_b32 v1, 6, v0"); A("v_and_b32 v0, 63, v0")
    A(f"v_readfirstlane_b32 s{sWAVE}, v1")
    X(wg_decode(sRB, sCB, sT0, sT1, sT2, 2, 4, 8))
    X(dma_voff_128(vDMA, 10, 11, 2048))
    A(f"s_lshl_b32 s{sT0}, s{sWAVE}, 16"); A(f"s_lshl_b32 s{sT1}, s{sCB}, 7"); A(f"s_add_u32 s{sT0}, s{sT0}, s{sT1}")
    A(f"v_add_u32 v{vDMA}, s{sT0}, v{vDMA}")
    X(lane16(vXO))
    A(f"s_mov_b32 s{sXO}, {KS*1024}")
    for q in range(1, 4): A(f"s_mov_b32 s{sDO+q-1}, {q*15360}")
    A(f"s_lshl_b32 s{sM0}, s{sWAVE}, 12")
    A(f"s_lshl_b32 s{sTT0}, s{sRB}, 3"); A(f"s_lshl_b32 s{sT1}, s{sWAVE}, 1"); A(f"s_add_u32 s{sTT0}, s{sTT0}, s{sT1}")
    A(f"s_and_b32 s{sT0}, s{sCB}, 7"); A(f"s_mul_i32 s{sT0}, s{sT0}, {ra}"); A(f"s_and_b32 s{sT1}, s{sRB}, 3"); A(f"s_mul_i32 s{sT1}, s{sT1}, {rb_}")
    A(f"s_add_u32 s{sJ}, s{sT0}, s{sT1}")
    mx = ra * 7 + rb_ * 3
    k = 1
    while WN * k * 2 <= mx: k *= 2
    while k >= 1:
        A(f"s_sub_u32 s{sT0}, s{sJ}, {WN*k}"); A(f"s_cselect_b32 s{sJ}, s{sJ}, s{sT0}"); k //= 2
    A(f"s_mov_b32 s{sC}, 0"); A(f"s_mov_b32 s{sWB}, 0")
    A(f"s_mul_i32 s{sT0}, s{sTT0}, {KS*1024}"); A(f"s_add_u32 s{sT0}, s{sT0}, {XOFF}")
    A("s_waitcnt lgkmcnt(0)")
    A(f"s_add_u32 s{sXB}, s40, s{sT0}"); A(f"s_addc_u32 s{sXB+1}, s41, 0")
    X(srd(sW, 36, 37, 128 * 2048))
    X(srd(sX, sXB, sXB + 1, C3D + KS * 1024 + 4096))
    X(srd(sWS, 40, 41, WS_BYTES)); X(srd(sAUX, 38, 39, 2048 * 2048))
    settile = [[f"s_add_u32 s{sTI}, s{sWB}, s{sJ}",
                f"s_lshl_b32 s{sT0}, s{sTI}, 12", f"s_add_u32 s{sX}, s{sXB}, s{sT0}", f"s_addc_u32 s{sX+1}, s{sXB+1}, 0"],
               [f"s_lshl_b32 s{sT0}, s{sTI}, 18", f"s_add_u32 s{sW}, s{sWBASE}, s{sT0}", f"s_addc_u32 s{sW+1}, s{sWBASE+1}, 0"],
               [f"s_add_u32 s{sJ}, s{sJ}, 1", f"s_cmp_eq_u32 s{sJ}, {WN}", f"s_cselect_b32 s{sJ}, 0, s{sJ}"],
               [f"s_add_u32 s{sC}, s{sC}, 1", f"s_cmp_eq_u32 s{sC}, {WN}", f"s_cselect_b32 s{sC}, 0, s{sC}", f"s_cselect_b32 s{sT0}, {WN}, 0", f"s_add_u32 s{sWB}, s{sWB}, s{sT0}"]]
    def dma(tile_rel, stage):
        L = []
        for q in range(4):
            grp = [f"s_add_u32 m0, s{sM0}, {stage*SS}"] if q == 0 else []
            grp.append(VM(("D", tile_rel, q), f"buffer_load_dwordx4 v{vDMA}, s[{sW}:{sW+3}], {'0' if q == 0 else 's%d' % (sDO+q-1)} offen offset:{q*1024} lds"))
            L.append(grp)
        return L
    def xload(tile_rel, p, u):
        return [VM(("X", tile_rel, p), f"buffer_load_dwordx4 {xreg(u, ks, tt)}, v{vXO}, s[{sX}:{sX+3}], {'0' if tt == 0 else 's%d' % sXO} offen offset:{ks*1024}")
                for ks in (2 * p, 2 * p + 1) for tt in range(2)]
    for t in range(4):
        X(settile)
        X(dma(t, t)); X(xload(t, 0, t))
        if t < 3: X(xload(t, 1, t))
        if t == 0:
            X(tr_addr_128(vDS, 10, 11, 12))
            for r in range(32, 64): A(f"v_mov_b32 v{r}, 0")
            X(rowmajor_voff(vRM, 10, 11, 11))
    if k3:
        A(f"s_lshl_b32 s{sT0}, s{sTT0}, 15"); A(f"s_lshl_b32 s{sT1}, s{sCB}, 7"); A(f"s_add_u32 s{sT0}, s{sT0}, s{sT1}")
        A(f"s_add_u32 s{sT1}, s{sT0}, 32768")
        for tt in range(2):
            for m in range(2):
                P.pre.append(VM(("R", None, 0), f"buffer_load_dwordx4 {vr(vRES + (tt*2+m)*4, 4)}, v{vRM}, s[{sAUX}:{sAUX+3}], s{sT0 if tt == 0 else sT1} offen offset:{m*64}"))
    else:
        A(f"s_lshl_b32 s{sT0}, s{sTT0}, 15"); A(f"s_lshl_b32 s{sT1}, s{sCB}, 11"); A(f"s_add_u32 s{sT0}, s{sT0}, s{sT1}")
        A(f"s_add_u32 s{sT0}, s{sT0}, {OFF_H}"); A(f"s_add_u32 s{sT1}, s{sT0}, 32768")
        for tt in range(2):
            for m in range(2):
                P.pre.append(VM(("R", None, 0), f"buffer_load_dwordx4 {vr(vRES + (tt*2+m)*4, 4)}, v{vXO}, s[{sWS}:{sWS+3}], s{sT0 if tt == 0 else sT1} offen offset:{m*1024}"))
    def trreads(p, stage):
        return [f"ds_read_b64_tr_b16 {wreg(p, k2, i, t)}, v{vDS+i} offset:{stage*SS + (32*(2*p+k2) + 16*t)*128}" for k2 in range(2) for i in range(4) for t in range(2)]
    P.pre.append(WaitVM([("D", 0, None)]))
    A("s_barrier")
    X(trreads(0, 0))
    A(f"s_mov_b32 s{sCNT}, 0")
    X(stamp(1))
    def tile(u, tail):
        L = []
        for p in range(2):
            mf = [f"{MFMA} {vr(acc(i,tt),4)}, {wreg(p,k2,i)}, {xreg(u,2*p+k2,tt)}, {vr(acc(i,tt),4)}" for k2 in range(2) for i in range(4) for tt in range(2)]
            last = tail and u == 3
            if p == 1:
                if last: pre = [WaitVM([("X", u, 1)], " lgkmcnt(0)")]
                else: pre = [WaitVM([("D", u + 1, None), ("X", u, 1)], " lgkmcnt(0)"), "s_barrier"]
            else: pre = [WaitVM([("X", u, 0)], " lgkmcnt(0)")]
            rd = trreads(1, u) if p == 0 else ([] if last else trreads(0, (u + 1) & 3))
            if p == 0:
                xl = xload(u + 3, 1, (u + 3) & 3) if (not tail or u == 0) else []
                if not tail: xl = xl + settile
            else: xl = [] if tail else dma(u + 4, u) + xload(u + 4, 0, u)
            if "mfma" in abl: mf = ["s_nop 0"] * len(mf)
            if "tr" in abl: rd = []
            if "bar" in abl: pre = [x for x in pre if x != "s_barrier"]
            body = interleave(mf, merge_fillers(rd, xl), 0, 13)
            L.extend(pre + flat(body))
        return L
    A(f"L_{name}_loop:")
    B = P.body
    for u in range(UNR): B.extend(tile(u, False))
    if NT // UNR - 1 > 1:
        B.append(f"s_add_u32 s{sCNT}, s{sCNT}, 1"); B.append(f"s_cmp_lt_u32 s{sCNT}, {NT//UNR - 1}")
        B.append(f"s_cbranch_scc1 L_{name}_loop")
    P.niter = NT // UNR - 1; P.unr = UNR
    for u in range(UNR): P.post.extend(tile(u, True))
    E = P.post.append
    def EX(l): P.post.extend(flat(l))
    EX(stamp(2))
    P.post.append(WaitVM([("R", None, 0)]))
    if k3:
        E(f"s_lshl_b32 s{sT0}, s{sTT0}, 15"); E(f"s_lshl_b32 s{sT1}, s{sCB}, 11"); E(f"s_add_u32 s{sT0}, s{sT0}, s{sT1}")
        E(f"s_add_u32 s{sT0}, s{sT0}, {OFF_H}"); E(f"s_add_u32 s{sT1}, s{sT0}, 32768")
        E(f"s_mov_b32 s{sT2}, 0x3f803f80")
        for q in range(4):
            r = vRES + 4 * q
            E(f"v_permlane16_swap_b32 v{r}, v{r+2}"); E(f"v_permlane16_swap_b32 v{r+1}, v{r+3}")
    else:
        E(f"s_lshl_b32 s{sT0}, s{sTT0}, 15"); E(f"s_lshl_b32 s{sT1}, s{sCB}, 7"); E(f"s_add_u32 s{sT0}, s{sT0}, s{sT1}")
        E(f"s_add_u32 s{sT1}, s{sT0}, 32768")
    for tt in range(2):
        if k3: E(f"v_mov_b32 v{12+2*tt}, 0"); E(f"v_mov_b32 v{13+2*tt}, 0")
        for m in range(2):
            r = vRES + (tt * 2 + m) * 4
            for d in range(4):
                a = acc(2 * m + (d >> 1), tt) + 2 * (d & 1)
                E(unpack_lo(10, r + d)); E(unpack_hi(11, r + d))
                E(f"v_add_f32 v{a}, v{a}, v10"); E(f"v_add_f32 v{a+1}, v{a+1}, v11")
                E(f"v_cvt_pk_bf16_f32 v{r+d}, v{a}, v{a+1}")
            if k3:
                E(f"buffer_store_dwordx4 {vr(r,4)}, v{vXO}, s[{sWS}:{sWS+3}], s{sT0 if tt == 0 else sT1} offen offset:{m*1024}{ST}")
                for d in range(4):
                    E(f"v_dot2c_f32_bf16 v{12+2*tt}, s{sT2}, v{r+d}"); E(f"v_dot2c_f32_bf16 v{13+2*tt}, v{r+d}, v{r+d}")
            else:
                E(f"v_permlane16_swap_b32 v{r}, v{r+2}"); E(f"v_permlane16_swap_b32 v{r+1}, v{r+3}")
                E(f"buffer_store_dwordx4 {vr(r,4)}, v{vRM}, s[{sAUX}:{sAUX+3}], s{sT0 if tt == 0 else sT1} offen offset:{m*64}")
    if k3:
        EX(zip_streams(*[xreduce(12 + j, 32 + j, "v_add_f32") for j in range(4)]))
        E(f"s_lshl_b32 s{sT0}, s{sTT0}, 11"); E(f"s_lshl_b32 s{sT1}, s{sCB}, 8"); E(f"s_add_u32 s{sT0}, s{sT0}, s{sT1}")
        E(f"s_add_u32 s{sT0}, s{sT0}, {OFF_ST}")
        E("s_mov_b64 exec, 0xffff")
        E(f"buffer_store_dwordx4 v[12:15], v{vXO}, s[{sWS}:{sWS+3}], s{sT0} offen")
        E("s_mov_b64 exec, -1")
    if STAMPS:
        EX(stamp(3)); E("s_waitcnt vmcnt(0)"); EX(stamp(4)); EX(stamp_store(3 if k3 else 5, 5, sWS))
    E(f"L_{name}_end:"); E("s_endpgm"); E(f"L_{name}_fin:")
    if "nox" in abl: P.skip.add("X")
    if "nod" in abl: P.skip.add("D")
    return finish(P, name, 64 + 192, 64, 4 * SS)

def gen_k0(name="k0_kernel"):
    P = Prog(); A = P.pre.append
    def X(l): P.pre.extend(flat(l))
    sXS, sWS, sWAVE, sT0, sT1, sONE = 4, 8, 12, 13, 14, 15
    X(kernel_header(name))
    A("s_cmp_ge_u32 s2, 128"); A(f"s_cbranch_scc1 L_{name}_end")
    A("s_load_dwordx2 s[36:37], s[0:1], 0"); A("s_load_dwordx2 s[40:41], s[0:1], 80")
    A("v_lshrrev_b32 v1, 6, v0"); A("v_and_b32 v0, 63, v0")
    A(f"v_readfirstlane_b32 s{sWAVE}, v1")
    X(rowmajor_voff(2, 10, 11, 11))
    A(f"s_lshl_b32 s{sT0}, s2, 15"); A(f"s_lshl_b32 s{sT1}, s{sWAVE}, 9"); A(f"s_add_u32 s{sT0}, s{sT0}, s{sT1}")
    A(f"s_mov_b32 s{sONE}, 0x3f803f80")
    A("s_waitcnt lgkmcnt(0)")
    X(srd(sXS, 36, 37, 2048 * 2048)); X(srd(sWS, 40, 41, WS_BYTES))
    for j in range(8): A(f"buffer_load_dwordx4 {vr(16+4*j,4)}, v2, s[{sXS}:{sXS+3}], s{sT0} offen offset:{j*64}")
    A("v_mov_b32 v4, 0"); A("v_mov_b32 v5, 0")
    A("s_waitcnt vmcnt(0)")
    for r in range(16, 48): A(f"v_dot2c_f32_bf16 v4, s{sONE}, v{r}"); A(f"v_dot2c_f32_bf16 v5, v{r}, v{r}")
    X(zip_streams(xreduce(4, 6, "v_add_f32"), xreduce(5, 7, "v_add_f32")))
    A("v_and_b32 v8, 15, v0"); A("v_lshlrev_b32 v8, 3, v8"); A(f"s_lshl_b32 s{sT1}, s{sWAVE}, 7"); A(f"v_add_u32 v9, s{sT1}, v8")
    A("ds_write_b64 v9, v[4:5]"); A("s_waitcnt lgkmcnt(0)"); A("s_barrier")
    for w in range(4): A(f"ds_read_b64 {vr(48+2*w,2)}, v8 offset:{w*128}")
    A("s_waitcnt lgkmcnt(0)")
    A("v_add_f32 v4, v48, v50"); A("v_add_f32 v5, v49, v51"); A("v_add_f32 v6, v52, v54"); A("v_add_f32 v7, v53, v55")
    A("v_add_f32 v4, v4, v6"); A("v_add_f32 v5, v5, v7")
    A(f"v_mul_f32 v4, {fh(-1.0/1024)}, v4"); A(f"v_mul_f32 v5, {fh(1.0/1024)}, v5")
    A("v_fma_f32 v5, -v4, v4, v5"); A("v_max_f32 v5, 0, v5"); A(f"v_add_f32 v5, {fh(1e-5)}, v5"); A("v_rsq_f32 v5, v5")
    A("v_mul_f32 v4, v4, v5")
    A(f"s_lshl_b32 s{sT0}, s2, 15"); A(f"s_lshl_b32 s{sT1}, s{sWAVE}, 13"); A(f"s_add_u32 s{sT0}, s{sT0}, s{sT1}"); A(f"s_add_u32 s{sT0}, s{sT0}, {OFF_XN}")
    A(f"s_add_u32 s{sT1}, s{sT0}, 4096")
    A("v_lshlrev_b32 v3, 4, v0")
    for j in range(8):
        r = 16 + 4 * j
        for d in range(4):
            A(unpack_lo(10, r + d)); A(unpack_hi(11, r + d))
            A("v_fma_f32 v10, v10, v5, v4"); A("v_fma_f32 v11, v11, v5, v4")
            A(f"v_cvt_pk_bf16_f32 v{r+d}, v10, v11")
        A(f"v_permlane16_swap_b32 v{r}, v{r+2}"); A(f"v_permlane16_swap_b32 v{r+1}, v{r+3}")
        A(f"buffer_store_dwordx4 {vr(r,4)}, v3, s[{sWS}:{sWS+3}], s{sT0 if j < 4 else sT1} offen offset:{(j&3)*1024}")
    A(f"L_{name}_end:"); A("s_endpgm")
    return finish(P, name, 64, 64, 1024, grid=128)


def softmax_pm(src, tp, tn, t0, qp, qn):
    mx, mn, a, b, sp, sn = t0, t0 + 1, t0 + 2, t0 + 3, t0 + 4, t0 + 5
    L = []
    s1 = [f"v_max3_f32 v{mx}, v{src}, v{src+1}, v{src+2}", f"v_max3_f32 v{mx}, v{mx}, v{src+3}, v{src+4}",
          f"v_max3_f32 v{mx}, v{mx}, v{src+5}, v{src+6}", f"v_max_f32 v{mx}, v{mx}, v{src+7}"] + xreduce(mx, a, "v_max_f32")
    s2 = [f"v_min3_f32 v{mn}, v{src}, v{src+1}, v{src+2}", f"v_min3_f32 v{mn}, v{mn}, v{src+3}, v{src+4}",
          f"v_min3_f32 v{mn}, v{mn}, v{src+5}, v{src+6}", f"v_min_f32 v{mn}, v{mn}, v{src+7}"] + xreduce(mn, b, "v_min_f32")
    L += zip_streams(s1, s2)
    L += [f"v_mul_f32 v{mx}, {fh(-LOG2E)}, v{mx}", f"v_mul_f32 v{mn}, {fh(LOG2E)}, v{mn}"]
    for j in range(8): L.append(f"v_fma_f32 v{tp+j}, v{src+j}, s{SLOG2E}, v{mx}")
    for j in range(8): L.append(f"v_fma_f32 v{tn+j}, -v{src+j}, s{SLOG2E}, v{mn}")
    for j in range(8): L.append(f"v_exp_f32 v{tp+j}, v{tp+j}")
    for j in range(8): L.append(f"v_exp_f32 v{tn+j}, v{tn+j}")
    def summ(t, d, tmp):
        return [f"v_add_f32 v{d}, v{t}, v{t+1}"] + [f"v_add_f32 v{d}, v{d}, v{t+j}" for j in range(2, 8)] + xreduce(d, tmp, "v_add_f32") + [f"v_rcp_f32 v{d}, v{d}"]
    L += zip_streams(summ(tp, sp, a), summ(tn, sn, b))
    for j in range(8): L.append(f"v_mul_f32 v{tp+j}, v{tp+j}, v{sp}")
    for j in range(8): L.append(f"v_mul_f32 v{tn+j}, v{tn+j}, v{sn}")
    for j in range(4): L.append(f"v_cvt_pk_bf16_f32 v{qp+j}, v{tp+2*j}, v{tp+2*j+1}")
    for j in range(4): L.append(f"v_cvt_pk_bf16_f32 v{qn+j}, v{tn+2*j}, v{tn+2*j+1}")
    return L
SLOG2E = 60

OFF_Z = OFF_KV + (4 << 20)
def gen_k1(name="k1_kernel"):
    P = Prog(); A = P.pre.append
    def X(l): P.pre.extend(flat(l))
    NT, UNR, SS = 16, 2, 32768
    WPO = 3 * SS + 24576
    RS = 416
    sW, sX, sWS, sWP = 4, 8, 12, 16
    sXO, sDO, sCNT, sM0, sWAVE, sRB, sHP, sT0, sT1, sT2, sTT0 = 20, 21, 27, 28, 29, 30, 31, 32, 33, 34, 35
    vXO, vDMA, vDS = 1, 2, 4
    aX, aW = 0, 32
    def acc(nt, tt): return 64 + (nt * 2 + tt) * 4
    def wreg(p, k, t=None):
        b = aW + (p & 1) * 24 + 4 * k
        return ar(b, 4) if t is None else ar(b + 2 * t, 2)
    def xreg(slot, tt): return ar(aX + slot * 8 + tt * 4, 4)
    X(kernel_header(name))
    A("s_cmp_ge_u32 s2, 256"); A(f"s_cbranch_scc1 L_{name}_end")
    X(stamp(0))
    A("s_load_dwordx4 s[36:39], s[0:1], 8")
    A("s_load_dwordx2 s[40:41], s[0:1], 80")
    A("v_lshrrev_b32 v1, 6, v0"); A("v_and_b32 v0, 63, v0")
    A(f"v_readfirstlane_b32 s{sWAVE}, v1")
    X(wg_decode(sRB, sHP, sT0, sT1, sT2, 1, 8, 4))
    X(dma_voff_128(vDMA, 10, 11, 6144))
    A(f"s_lshl_b32 s{sT1}, s{sHP}, 7"); A(f"v_add_u32 v{vDMA}, s{sT1}, v{vDMA}")
    A(f"v_lshlrev_b32 v{vXO}, 4, v0")
    A(f"s_mov_b32 s{sXO}, 32768")
    A(f"s_mov_b32 s{SLOG2E}, {fh(LOG2E)}")
    A(f"s_mul_i32 s{sT0}, s{sWAVE}, 6")
    for q in range(6):
        A(f"s_add_u32 s{sT1}, s{sT0}, {q}")
        A(f"s_and_b32 s{sT2}, s{sT1}, 7"); A(f"s_mul_i32 s{sT2}, s{sT2}, {8*6144}")
        A(f"s_lshr_b32 s{sT1}, s{sT1}, 3"); A(f"s_lshl_b32 s{sT1}, s{sT1}, 11")
        A(f"s_add_u32 s{sDO+q}, s{sT1}, s{sT2}")
        if q & 3: A(f"s_sub_u32 s{sDO+q}, s{sDO+q}, {(q&3)*1024}")
    A(f"s_mul_i32 s{sM0}, s{sWAVE}, 6144")
    A(f"s_lshl_b32 s{sTT0}, s{sRB}, 3"); A(f"s_lshl_b32 s{sT1}, s{sWAVE}, 1"); A(f"s_add_u32 s{sTT0}, s{sTT0}, s{sT1}")
    A(f"s_lshl_b32 s{sT0}, s{sTT0}, 15"); A(f"s_add_u32 s{sT0}, s{sT0}, {OFF_XN}")
    A("s_waitcnt lgkmcnt(0)")
    X(srd(sW, 36, 37, 1024 * 6144)); X(srd(sWP, 38, 39, 65536))
    X(srd(sX, 40, 41, 65536)); X(srd_add(sX, f"s{sT0}"))
    X(srd(sWS, 40, 41, WS_BYTES))
    def dma(tile_rel, stage_off):
        L = []
        for q in range(6):
            grp = [f"s_add_u32 m0, s{sM0}, {stage_off + q*1024}"] if q in (0, 4) else []
            grp.append(VM(("D", tile_rel, q), f"buffer_load_dwordx4 v{vDMA}, s[{sW}:{sW+3}], s{sDO+q} offen offset:{(q&3)*1024} lds"))
            L.append(grp)
        L.append(srd_advance(sW, 64 * 6144))
        return L
    def xload(tile_rel, ks, slot):
        return [VM(("X", tile_rel, ks), f"buffer_load_dwordx4 {xreg(slot, tt)}, v{vXO}, s[{sX}:{sX+3}], {'0' if tt == 0 else 's%d' % sXO} offen offset:{ks*1024}") for tt in range(2)]
    xadv = [srd_add(sX, 2048)]
    X(dma(0, 0)); X(xload(0, 0, 0)); X(xload(0, 1, 1)); X(xadv)
    X(dma(1, SS)); X(xload(1, 0, 2))
    A(f"s_lshl_b32 s{sT0}, s{sHP}, 12"); A(f"s_lshl_b32 s{sT1}, s{sWAVE}, 10"); A(f"s_add_u32 s{sT0}, s{sT0}, s{sT1}")
    A(f"s_add_u32 m0, s{sT1}, {WPO}")
    P.pre.append(VM(("P", None, 0), f"buffer_load_dwordx4 v{vXO}, s[{sWP}:{sWP+3}], s{sT0} offen lds"))
    X(tr_addr_128(vDS, 10, 11, 12))
    for r in range(64, 160): A(f"v_mov_b32 v{r}, 0")
    def trreads(p, stage_imm):
        ks, h = p >> 1, p & 1
        L = []
        for k in range(6):
            nt = h * 6 + k; m, i = nt >> 2, nt & 3
            for t in range(2):
                L.append(f"ds_read_b64_tr_b16 {wreg(p, k, t)}, v{vDS+i} offset:{stage_imm + m*8192 + (32*ks + 16*t)*128}")
        return L
    P.pre.append(WaitVM([("D", 0, None)]))
    A("s_barrier")
    X(trreads(0, 0))
    A(f"s_mov_b32 s{sCNT}, 0")
    A(f"s_xor_b32 s{sM0}, s{sM0}, 0x10000")
    X(stamp(1))
    A(f"L_{name}_loop:")
    B = P.body
    for u in range(UNR):
        for p in range(4):
            ks, h = p >> 1, p & 1
            slot = u * 2 + ks
            mf = [f"{MFMA} {vr(acc(h*6+k,tt),4)}, {wreg(p,k)}, {xreg(slot,tt)}, {vr(acc(h*6+k,tt),4)}" for k in range(6) for tt in ((0, 1) if k % 2 == 0 else (1, 0))]
            if p == 3: pre = [WaitVM([("D", u + 1, None)], " lgkmcnt(0)"), "s_barrier"]
            elif h == 0: pre = [WaitVM([("X", u, ks)], " lgkmcnt(0)")]
            else: pre = ["s_waitcnt lgkmcnt(0)"]
            if p < 3: rd = trreads(p + 1, u * SS)
            else:
                rd = trreads(0, ((u + 1) & 1) * SS)
                if u == 1: rd = [[f"v_xor_b32 v{vDS+i}, 0x10000, v{vDS+i}" for i in range(4)]] + rd
            if p == 0:
                xl = xload(u + 1, 1, ((u + 1) & 1) * 2 + 1) + xadv
                if u == 0: xl += [[f"s_cmp_eq_u32 s{sCNT}, {NT//UNR - 1}", f"s_cselect_b32 s{sX+2}, 0, s{sX+2}"]]
            elif p == 2: xl = xload(u + 2, 0, u * 2)
            else: xl = []
            d = dma(u + 2, u * SS)
            dl = {0: d[0:1], 1: d[1:4], 2: d[4:5], 3: d[5:7]}[p]
            body = interleave(mf, merge_fillers(rd, xl + dl), 0, 9)
            B.extend(pre + flat(body))
    B.append(f"s_xor_b32 s{sM0}, s{sM0}, 0x10000")
    B.append(f"s_add_u32 s{sCNT}, s{sCNT}, 1"); B.append(f"s_cmp_lt_u32 s{sCNT}, {NT//UNR}")
    B.append(f"s_cbranch_scc1 L_{name}_loop")
    P.niter = NT // UNR; P.unr = UNR
    E = P.post.append
    def EX(l): P.post.extend(flat(l))
    EX(stamp(2))
    E("s_waitcnt vmcnt(0) lgkmcnt(0)"); E("s_barrier")
    if PREFETCH:
        E("s_load_dwordx2 s[44:45], s[0:1], 24"); E("s_load_dwordx2 s[48:49], s[0:1], 56")
        E(f"s_lshl_b32 s{sT0}, s2, 2"); E(f"s_add_u32 s{sT0}, s{sT0}, s{sWAVE}")
        E(f"s_mul_i32 s{sT1}, s{sT0}, {56*128}"); E(f"s_lshl_b32 s{sT0}, s{sT0}, 11")
        E("v_min_u32 v13, 55, v0"); E("v_lshlrev_b32 v13, 7, v13")
        E("v_and_b32 v14, 15, v0"); E("v_lshlrev_b32 v14, 7, v14")
        E("s_waitcnt lgkmcnt(0)")
        E("s_mov_b32 s46, 2097152"); E("s_mov_b32 s47, 0x00020000"); E("s_mov_b32 s50, 7340032"); E("s_mov_b32 s51, 0x00020000")
        E(f"buffer_load_dword v254, v14, s[44:47], s{sT0} offen"); E(f"buffer_load_dword v255, v13, s[48:51], s{sT1} offen")
    E("v_lshrrev_b32 v10, 2, v0"); E("v_lshlrev_b32 v10, 6, v10"); E("v_and_b32 v11, 3, v0"); E("v_lshl_add_u32 v10, v11, 3, v10")
    E(f"v_add_u32 v10, {WPO}, v10")
    for hd in range(2):
        for ft in range(2):
            for t in range(2):
                E(f"ds_read_b64_tr_b16 {ar((hd*2+ft)*4 + 2*t, 2)}, v10 offset:{hd*2048 + t*1024 + ft*32}")
    E("v_and_b32 v11, 15, v0"); E(f"s_lshl_b32 s{sT0}, s{sWAVE}, 5"); E(f"v_add_u32 v11, s{sT0}, v11"); E(f"v_mul_u32_u24 v11, {RS}, v11")
    E("v_lshrrev_b32 v12, 4, v0"); E("v_lshl_add_u32 v3, v12, 3, v11")
    def quad(m, hd, tt): return acc(m * 4 + hd * 2, tt)
    for m in (1, 2, 0):
        for hd in range(2):
            for tt in range(2):
                a0, a1 = acc(m*4 + hd*2, tt), acc(m*4 + hd*2 + 1, tt)
                E(f"v_cvt_pk_bf16_f32 v{a0}, v{a0}, v{a0+1}"); E(f"v_cvt_pk_bf16_f32 v{a0+1}, v{a0+2}, v{a0+3}")
                E(f"v_cvt_pk_bf16_f32 v{a0+2}, v{a1}, v{a1+1}"); E(f"v_cvt_pk_bf16_f32 v{a0+3}, v{a1+2}, v{a1+3}")
                if m == 2:
                    E(f"ds_write_b64 v3, {vr(a0,2)} offset:{tt*16*RS + 256 + hd*64}")
                    E(f"ds_write_b64 v3, {vr(a0+2,2)} offset:{tt*16*RS + 256 + hd*64 + 32}")
    E("s_waitcnt lgkmcnt(8)")
    def pbuf(m, hd, tt): return 160 + ((m * 2 + hd) * 2 + tt) * 8
    for m in (1, 0):
        for hd in range(2):
            for tt in range(2):
                for ft in range(2):
                    E(f"{MFMA} {vr(pbuf(m,hd,tt) + 4*ft, 4)}, {ar((hd*2+ft)*4, 4)}, {vr(quad(m,hd,tt), 4)}, 0")
    TP, TN, T0, QP, QN = 16, 24, 32, 40, 44
    for hd in range(2):
        for tt in range(2):
            EX(softmax_pm(pbuf(1, hd, tt), TP, TN, T0, QP, QN))
            for k, r in enumerate((QP, QP + 2, QN, QN + 2)):
                E(f"ds_write_b64 v3, {vr(r,2)} offset:{tt*16*RS + hd*128 + k*32}")
    E("s_waitcnt lgkmcnt(0)"); E("s_barrier")
    E("v_lshrrev_b32 v10, 2, v0"); E(f"v_mul_u32_u24 v10, {RS}, v10"); E("v_and_b32 v11, 3, v0"); E("v_lshl_add_u32 v10, v11, 3, v10")
    E(f"s_lshl_b32 s{sT0}, s{sWAVE}, 6"); E(f"v_add_u32 v11, s{sT0}, v10")
    E(f"s_lshr_b32 s{sT0}, s{sWAVE}, 1"); E(f"s_lshl_b32 s{sT0}, s{sT0}, 6"); E(f"s_add_u32 s{sT0}, s{sT0}, 256"); E(f"v_add_u32 v12, s{sT0}, v10")
    for j in range(4): E(f"v_mov_b32 v{48+j}, 0x3f803f80")
    aF = 16
    for ks in range(4):
        for x, (va, c) in enumerate(((11, 0), (11, 32), (12, 0), (12, 32))):
            for t in range(2):
                E(f"ds_read_b64_tr_b16 {ar(aF + ks*16 + x*4 + 2*t, 2)}, v{va} offset:{(32*ks + 16*t)*RS + c}")
        if ks == 1: pass
    KV = 224
    for ks in range(4):
        E(f"s_waitcnt lgkmcnt({min(15, (3-ks)*8)})")
        for ft in range(2):
            for dt in range(2):
                d = KV + (dt * 2 + ft) * 4
                E(f"{MFMA} {vr(d,4)}, {ar(aF + ks*16 + ft*4, 4)}, {ar(aF + ks*16 + 8 + dt*4, 4)}, {'0' if ks == 0 else vr(d,4)}")
            d = KV + 16 + ft * 4
            E(f"{MFMA} {vr(d,4)}, {ar(aF + ks*16 + ft*4, 4)}, v[48:51], {'0' if ks == 0 else vr(d,4)}")
    E(f"s_lshl_b32 s{sT0}, s{sRB}, 6"); E(f"s_lshl_b32 s{sT1}, s{sHP}, 2"); E(f"s_add_u32 s{sT0}, s{sT0}, s{sT1}"); E(f"s_add_u32 s{sT0}, s{sT0}, s{sWAVE}")
    E(f"s_lshl_b32 s{sT1}, s{sT0}, 7"); E(f"s_add_u32 s{sT1}, s{sT1}, {OFF_Z}")
    E(f"s_lshl_b32 s{sT0}, s{sT0}, 12"); E(f"s_add_u32 s{sT0}, s{sT0}, {OFF_KV}")
    for k in range(4): E(f"buffer_store_dwordx4 {vr(KV+4*k,4)}, v{vXO}, s[{sWS}:{sWS+3}], s{sT0} offen offset:{k*1024}")
    E("v_and_b32 v10, 48, v0")
    E("s_mov_b32 exec_lo, 0x00010001"); E("s_mov_b32 exec_hi, 0x00010001")
    for ft in range(2): E(f"buffer_store_dwordx4 {vr(KV+16+4*ft,4)}, v10, s[{sWS}:{sWS+3}], s{sT1} offen offset:{ft*64}")
    E("s_mov_b64 exec, -1")
    E(f"s_lshl_b32 s{sT0}, s{sHP}, 8"); E(f"s_add_u32 s{sT0}, s{sT0}, s{sTT0}"); E(f"s_lshl_b32 s{sT0}, s{sT0}, 11"); E(f"s_add_u32 s{sT0}, s{sT0}, {OFF_PQ}")
    E(f"s_add_u32 s{sT1}, s{sT0}, {128*2048}")
    for hd in range(2):
        for tt in range(2):
            qp = 64 + (hd * 2 + tt) * 8
            EX(softmax_pm(pbuf(0, hd, tt), TP, TN, T0, qp, qp + 4))
            for k in range(2):
                E(f"buffer_store_dwordx4 {vr(qp+4*k,4)}, v{vXO}, s[{sWS}:{sWS+3}], s{sT0 if hd == 0 else sT1} offen offset:{tt*2048 + k*1024}")
    if STAMPS:
        EX(stamp(3)); E("s_waitcnt vmcnt(0)"); EX(stamp(4)); EX(stamp_store(1, 5, sWS))
    E(f"L_{name}_end:"); E("s_endpgm")
    return finish(P, name, 256 + 80, 256, 4 * SS)

def gen_k2(name="k2_kernel"):
    P = Prog(); A = P.pre.append
    def X(l): P.pre.extend(flat(l))
    sWS, sW, sWAVE, sH, sR, sT0, sT1, sT2 = 4, 8, 12, 13, 14, 15, 16, 17
    X(kernel_header(name))
    A("s_cmp_ge_u32 s2, 256"); A(f"s_cbranch_scc1 L_{name}_end")
    X(stamp(0))
    A("s_load_dwordx4 s[36:39], s[0:1], 40"); A("s_load_dwordx2 s[40:41], s[0:1], 80")
    A("v_lshrrev_b32 v1, 6, v0"); A("v_and_b32 v0, 63, v0")
    A(f"v_readfirstlane_b32 s{sWAVE}, v1")
    A(f"s_and_b32 s{sH}, s2, 7"); A(f"s_lshl_b32 s{sH}, s{sH}, 2"); A(f"s_lshr_b32 s{sT0}, s2, 3"); A(f"s_and_b32 s{sT0}, s{sT0}, 3"); A(f"s_add_u32 s{sH}, s{sH}, s{sT0}")
    A(f"s_lshr_b32 s{sR}, s2, 5")
    A("v_lshlrev_b32 v1, 4, v0")
    A("s_bitcmp1_b32 s2, 7")
    A("s_waitcnt lgkmcnt(0)")
    A(f"s_cselect_b32 s{sW}, s38, s36"); A(f"s_cselect_b32 s{sW+1}, s39, s37")
    A(f"s_mov_b32 s{sW+2}, {1024*7168}"); A(f"s_mov_b32 s{sW+3}, 0x00020000")
    X(srd(sWS, 40, 41, WS_BYTES))
    A(f"s_lshl_b32 s{sT0}, s{sH}, 13"); A(f"s_lshl_b32 s{sT1}, s{sWAVE}, 11"); A(f"s_add_u32 s{sT0}, s{sT0}, s{sT1}"); A(f"s_add_u32 s{sT0}, s{sT0}, {OFF_KV}")
    KVL = 64
    for rb in range(16):
        for ft in range(2):
            P.pre.append(VM(("KV", None, rb), f"buffer_load_dwordx4 {vr(KVL + rb*8 + ft*4, 4)}, v1, s[{sWS}:{sWS+3}], s{sT0} offen offset:{ft*1024}"))
        if rb < 15: A(f"s_add_u32 s{sT0}, s{sT0}, {32*8192}")
    A("v_and_b32 v2, 15, v0"); A("v_lshlrev_b32 v2, 13, v2"); A("v_and_b32 v3, 48, v0"); A("v_add_u32 v2, v2, v3")
    A(f"s_lshl_b32 s{sT0}, s{sH}, 8"); A(f"s_lshl_b32 s{sT1}, s{sWAVE}, 6"); A(f"s_add_u32 s{sT0}, s{sT0}, s{sT1}"); A(f"s_add_u32 s{sT0}, s{sT0}, {OFF_Z}")
    P.pre.append(VM(("Z", None, 0), f"buffer_load_dwordx4 v[4:7], v2, s[{sWS}:{sWS+3}], s{sT0} offen"))
    A(f"s_lshl_b32 s{sT2}, s{sR}, 4"); A(f"s_lshl_b32 s{sT1}, s{sWAVE}, 2"); A(f"s_add_u32 s{sT2}, s{sT2}, s{sT1}")
    A(f"s_lshl_b32 s{sT0}, s{sH}, 7"); A(f"s_add_u32 s{sT0}, s{sT0}, s{sT2}"); A(f"s_lshl_b32 s{sT0}, s{sT0}, 11"); A(f"s_add_u32 s{sT0}, s{sT0}, {OFF_PQ}")
    A(f"s_add_u32 s{sT1}, s{sT0}, 4096")
    for i in range(4):
        for k in range(2):
            P.pre.append(VM(("Q", None, i), f"buffer_load_dwordx4 {ar((i*2+k)*4, 4)}, v1, s[{sWS}:{sWS+3}], s{sT0 if i < 2 else sT1} offen offset:{(i&1)*2048 + k*1024}"))
    A("v_min_u32 v8, 55, v0"); A("v_lshlrev_b32 v8, 4, v8")
    A(f"s_lshr_b32 s{sT0}, s2, 3"); A(f"s_and_b32 s{sT0}, s{sT0}, 15"); A(f"s_lshl_b32 s{sT0}, s{sT0}, 2"); A(f"s_add_u32 s{sT0}, s{sT0}, s{sWAVE}")
    A(f"s_mul_i32 s{sT0}, s{sT0}, {16*7168}"); A(f"s_and_b32 s{sT1}, s2, 7"); A(f"s_mul_i32 s{sT1}, s{sT1}, 896"); A(f"s_add_u32 s{sT0}, s{sT0}, s{sT1}")
    CL = 192
    for j in range(16):
        P.pre.append(VM(("W", None, j), f"buffer_load_dwordx4 {vr(CL + 4*j, 4)}, v8, s[{sW}:{sW+3}], s{sT0} offen"))
        if j < 15: A(f"s_add_u32 s{sT0}, s{sT0}, 7168")
    for rb in range(1, 16):
        P.pre.append(WaitVM([("KV", None, rb)]))
        for j in range(8): A(f"v_add_f32 v{KVL+j}, v{KVL+j}, v{KVL + rb*8 + j}")
    for j in range(4): A(f"v_cvt_pk_bf16_f32 v{KVL+8+j}, v{KVL+2*j}, v{KVL+2*j+1}")
    A(f"s_lshl_b32 s{sT0}, s{sWAVE}, 10"); A(f"v_add_u32 v2, s{sT0}, v1")
    A(f"ds_write_b128 v2, {vr(KVL+8,4)}")
    P.pre.append(WaitVM([("Z", None, 0)]))
    for sh in (8, 4, 2, 1):
        for j in range(4): A(f"v_add_f32_dpp v{4+j}, v{4+j}, v{4+j} row_ror:{sh} row_mask:0xf bank_mask:0xf")
    A("v_cvt_pk_bf16_f32 v4, v4, v5"); A("v_cvt_pk_bf16_f32 v5, v6, v7")
    A(f"s_lshr_b32 s{sT0}, s{sWAVE}, 1"); A(f"s_lshl_b32 s{sT0}, s{sT0}, 10"); A(f"s_and_b32 s{sT1}, s{sWAVE}, 1"); A(f"s_lshl_b32 s{sT1}, s{sT1}, 3")
    A(f"s_add_u32 s{sT0}, s{sT0}, s{sT1}"); A(f"v_add_u32 v2, s{sT0}, v1")
    A("ds_write_b64 v2, v[4:5] offset:4096")
    A("s_waitcnt lgkmcnt(0)"); A("s_barrier")
    for k in range(6): A(f"ds_read_b128 {ar(32+4*k,4)}, v1 offset:{k*1024}")
    A("s_waitcnt lgkmcnt(0)")
    A(f"s_lshl_b32 s{sT0}, s{sT2}, 5"); A(f"s_add_u32 s{sT0}, s{sT0}, s{sH}"); A(f"s_lshl_b32 s{sT0}, s{sT0}, 10"); A(f"s_add_u32 s{sT0}, s{sT0}, {OFF_O}")
    for i in range(4):
        P.pre.append(WaitVM([("Q", None, i)]))
        d = 64 + i * 12
        for fh_ in range(2):
            for dt in range(2):
                A(f"{MFMA} {vr(d+4*dt,4)}, {ar(32 + (fh_*2+dt)*4, 4)}, {ar((i*2+fh_)*4, 4)}, {'0' if fh_ == 0 else vr(d+4*dt,4)}")
            A(f"{MFMA} {vr(d+8,4)}, {ar(48 + fh_*4, 4)}, {ar((i*2+fh_)*4, 4)}, {'0' if fh_ == 0 else vr(d+8,4)}")
    for i in range(4):
        d = 64 + i * 12
        A(f"v_add_f32 v{d+8}, {fh(1e-6)}, v{d+8}"); A(f"v_rcp_f32 v{d+8}, v{d+8}")
        for j in range(8): A(f"v_mul_f32 v{d+j}, v{d+j}, v{d+8}")
        for j in range(4): A(f"v_cvt_pk_bf16_f32 v{d+8+j}, v{d+2*j}, v{d+2*j+1}")
        A(f"buffer_store_dwordx4 {vr(d+8,4)}, v1, s[{sWS}:{sWS+3}], s{sT0} offen")
        if i < 3: A(f"s_add_u32 s{sT0}, s{sT0}, 32768")
    X(stamp(1))
    for j in range(8): A(f"v_mov_b32 v{16+j}, 0")
    for j in range(16):
        P.pre.append(WaitVM([("W", None, j)]))
        for d in range(4):
            A(unpack_lo(10, CL + 4*j + d)); A(unpack_hi(11, CL + 4*j + d))
            A(f"v_add_f32 v{16+2*d}, v{16+2*d}, v10"); A(f"v_add_f32 v{17+2*d}, v{17+2*d}, v11")
    A(f"s_lshl_b32 s{sT0}, s{sWAVE}, 11"); A("v_lshlrev_b32 v2, 5, v0"); A(f"v_add_u32 v2, s{sT0}, v2")
    A("ds_write_b128 v2, v[16:19] offset:8192"); A("ds_write_b128 v2, v[20:23] offset:8208")
    A("s_waitcnt lgkmcnt(0)"); A("s_barrier")
    A(f"s_lshl_b32 s{sT0}, s{sWAVE}, 6"); A(f"v_add_u32 v2, s{sT0}, v0"); A("v_lshlrev_b32 v3, 2, v2")
    for c in range(2):
        for w in range(4): A(f"ds_read_b32 v{16 + c*4 + w}, v3 offset:{8192 + w*2048 + c*1024}")
    A("s_waitcnt lgkmcnt(0)")
    for c in range(2):
        A(f"v_add_f32 v{16+c*4}, v{16+c*4}, v{17+c*4}"); A(f"v_add_f32 v{18+c*4}, v{18+c*4}, v{19+c*4}"); A(f"v_add_f32 v{16+c*4}, v{16+c*4}, v{18+c*4}")
    A(f"s_lshr_b32 s{sT0}, s2, 7"); A(f"s_mul_i32 s{sT0}, s{sT0}, 3584"); A(f"s_and_b32 s{sT1}, s2, 7"); A(f"s_mul_i32 s{sT1}, s{sT1}, 448"); A(f"s_add_u32 s{sT0}, s{sT0}, s{sT1}")
    A(f"s_lshl_b32 s{sT0}, s{sT0}, 6"); A(f"s_lshr_b32 s{sT1}, s2, 3"); A(f"s_and_b32 s{sT1}, s{sT1}, 15"); A(f"s_lshl_b32 s{sT1}, s{sT1}, 2"); A(f"s_add_u32 s{sT0}, s{sT0}, s{sT1}")
    A(f"s_add_u32 s{sT0}, s{sT0}, {OFF_CS}"); A(f"s_add_u32 s{sT1}, s{sT0}, {256*64}")
    A("v_lshlrev_b32 v3, 6, v2")
    A(f"buffer_store_dword v16, v3, s[{sWS}:{sWS+3}], s{sT0} offen")
    A(f"s_cmp_ge_u32 s{sWAVE}, 3"); A(f"s_cbranch_scc1 L_{name}_skip")
    A(f"buffer_store_dword v20, v3, s[{sWS}:{sWS+3}], s{sT1} offen")
    A(f"L_{name}_skip:")
    if STAMPS:
        X(stamp(2)); A("s_waitcnt vmcnt(0)"); X(stamp(3)); X(stamp_store(2, 4, sWS))
    A(f"L_{name}_end:"); A("s_endpgm")
    return finish(P, name, 256 + 56, 256, 16384)

def all_kernels():
    return [gen_k0(), gen_k1(), gen_k2(), gen_n64("k3"), gen_k4(), gen_n64("k5")]

HEADER = open("sequential_preLN__linear_kernel_hedgehog__glu_gated_swiglu__prompt.s.ref").read().split("; Override launch")[0] if __name__ == "__main__" else ""

def build(kernels):
    launches = [k[0] for k in kernels]
    out = launches + ['.amdgcn_target "amdgcn-amd-amdhsa--gfx950"', ".text"]
    for k in kernels: out += k[1]
    out += ["L_text_fin:", '.section .rodata,"a"']
    for k in kernels: out += [".p2align 6"] + k[2]
    return "\n".join(out) + "\n"

if __name__ == "__main__":
    out = sys.argv[1] if len(sys.argv) > 1 else "sequential_preLN__linear_kernel_hedgehog__glu_gated_swiglu__prompt.s"
    open(out, "w").write(HEADER + build(all_kernels()))
```

```python
from gen import *
import gen

OFF_XS  = WB0 + (60 << 20) + (768 << 10)
OFF_QCS = WB0 + (60 << 20) + (256 << 10)
OFF_KVP = WB0 + (56 << 20)
OFF_KVR = WB0 + (60 << 20)
OFF_ZP  = WB0 + (60 << 20) + (448 << 10)
OFF_FL  = WB0 + (60 << 20) + (576 << 10)
OFF_NONCE = WB0 + (60 << 20) + (632 << 10)
SPIN = 20000

def sw16(a, b): return f"v_permlane16_swap_b32 v{a}, v{b}"
def sw32(a, b): return f"v_permlane32_swap_b32 v{a}, v{b}"

def gen_k1f(name="k1_kernel", abl=()):
    P = Prog(); A = P.pre.append
    def X(l): P.pre.extend(flat(l))
    def V(tag, text): P.pre.append(VM(tag, text))
    def W(tags, extra=""): P.pre.append(WaitVM(tags, extra))
    NT, S = 16, 3
    H1AT = 3 if 'h13' in abl else (1 if 'h11' in abl else 2)
    H2AT = 0 if 'h20' in abl else (2 if 'h22' in abl else 1)
    LOOPST = "ls" in abl
    lsmap = {1: 2, 4: 3, 8: 4, 12: 5, 14: 6}
    def stamp(i, loop=False):
        if LOOPST:
            if loop or i in (0, 1): return gen.stamp(i)
            if i == 2: return gen.stamp(7)
            return []
        return [] if loop else gen.stamp(i)
    XS, WB, WS_ = 16384, 49152, 24576
    WPO = WB + 3 * WS_
    RS = 608
    CSL = 81920
    sXs, sW, sWS, sDBG, sWP, sW13, sWO = 4, 8, 12, 16, 20, 24, 28
    sWAVE, sM, sHD, sRB, sHP, sR, sT0, sT1, sT2, sTT0, sNON, sT3, sCNT = 32, 33, 34, 35, 36, 37, 38, 39, 61, 62, 63, 64, 65
    sXO, sM0X, sM0W, sKX, sKW, sSEL, sDO = 66, 70, 71, 69, 60, 44, 88
    sO = 94
    sMK = 48
    PTR = 40
    vL16, vXD, vWD, vXR, vWR, vXR2 = 1, 2, 4, 6, 8, 12
    FR, ACC, vWP, vST, vCS = 16, 96, 192, 200, 232
    vFM, vFA, vFV, vFL = 224, 225, 226, 227
    def xf(b, tt): return FR + b * 40 + tt * 4
    def wf(b, k): return FR + b * 40 + 16 + k * 4
    def acc(k, tt): return ACC + (k * 4 + tt) * 4
    X(kernel_header(name))
    if "top" in abl and gen.STAMPS: A("s_memtime s[76:77]"); A("s_memrealtime s[78:79]")
    A("s_cmp_ge_u32 s2, 256"); A(f"s_cbranch_scc1 L_{name}_end")
    A(f"s_load_dwordx16 s[{PTR}:{PTR+15}], s[0:1], 0")
    A("s_load_dwordx4 s[56:59], s[0:1], 72")
    X(code_prefetch(name, "L_text_fin", 8, 10, "a[0:1]", 84))
    A("v_lshrrev_b32 v1, 6, v0"); A("v_and_b32 v0, 63, v0")
    A(f"v_readfirstlane_b32 s{sWAVE}, v1")
    X(wg_decode(sRB, sHP, sT0, sT1, sT2, 1, 8, 4))
    A(f"s_lshr_b32 s{sM}, s{sWAVE}, 1"); A(f"s_and_b32 s{sHD}, s{sWAVE}, 1")
    A(f"s_and_b32 s{sT0}, s{sHP}, 3"); A(f"s_lshl_b32 s{sT0}, s{sT0}, 2"); A(f"s_lshr_b32 s{sT1}, s{sHP}, 2"); A(f"s_add_u32 s{sR}, s{sT0}, s{sT1}")
    A(f"s_and_b32 s{sT0}, s{sRB}, 7"); A(f"s_lshl_b32 s{sT0}, s{sT0}, 1"); A(f"s_lshr_b32 s{sT1}, s{sRB}, 3"); A(f"s_add_u32 s{sR}, s{sR}, s{sT0}"); A(f"s_add_u32 s{sR}, s{sR}, s{sT1}")
    if "off" in abl:
        A(f"s_and_b32 s{sO}, s{sHP}, 12"); A(f"s_and_b32 s{sT0}, s{sRB}, 8"); A(f"s_lshr_b32 s{sT0}, s{sT0}, 2"); A(f"s_add_u32 s{sO}, s{sO}, s{sT0}")
    else: A(f"s_mov_b32 s{sO}, 0")
    A(f"s_sub_u32 s{sR}, s{sR}, s{sO}"); A(f"s_and_b32 s{sR}, s{sR}, 15")
    A(f"v_lshlrev_b32 v{vL16}, 4, v0")
    A("v_lshrrev_b32 v12, 3, v0"); A("v_lshrrev_b32 v13, 4, v0"); A("v_xor_b32 v13, v13, v0"); A("v_and_b32 v13, 7, v13")
    A("v_lshlrev_b32 v14, 11, v12")
    A(f"s_lshl_b32 s{sT0}, s{sRB}, 18"); A(f"s_lshl_b32 s{sT1}, s{sWAVE}, 16"); A(f"s_add_u32 s{sT0}, s{sT0}, s{sT1}")
    A(f"v_add_u32 v14, s{sT0}, v14")
    A(f"v_lshl_add_u32 v{vXD}, v13, 4, v14"); A("v_xor_b32 v13, 4, v13"); A(f"v_lshl_add_u32 v{vXD+1}, v13, 4, v14")
    A("v_and_b32 v13, 2, v12"); A("v_xor_b32 v13, v13, v0"); A("v_and_b32 v13, 7, v13")
    A("v_mul_u32_u24 v14, 6144, v12"); A(f"s_lshl_b32 s{sT0}, s{sHP}, 7"); A(f"v_add_u32 v14, s{sT0}, v14")
    A(f"v_lshl_add_u32 v{vWD}, v13, 4, v14"); A("v_xor_b32 v13, 4, v13"); A(f"v_lshl_add_u32 v{vWD+1}, v13, 4, v14")
    for q in range(1, 4): A(f"s_mov_b32 s{sXO+q-1}, {q*15360}")
    A(f"s_lshl_b32 s{sM0X}, s{sWAVE}, 12")
    A(f"s_mul_i32 s{sM0W}, s{sWAVE}, 6144"); A(f"s_add_u32 s{sM0W}, s{sM0W}, {WB}")
    A(f"s_mul_i32 s{sT0}, s{sWAVE}, 6")
    for q in range(6):
        A(f"s_add_u32 s{sT1}, s{sT0}, {q}")
        A(f"s_and_b32 s{sT2}, s{sT1}, 7"); A(f"s_mul_i32 s{sT2}, s{sT2}, {8*6144}")
        A(f"s_lshr_b32 s{sT1}, s{sT1}, 3"); A(f"s_lshl_b32 s{sT1}, s{sT1}, 11")
        A(f"s_add_u32 s{sDO+q}, s{sT1}, s{sT2}")
        if q & 3: A(f"s_sub_u32 s{sDO+q}, s{sDO+q}, {(q&3)*1024}")
    A(f"s_mov_b32 s{sXs+2}, {2048*2048 - 15*128}"); A(f"s_mov_b32 s{sXs+3}, 0x00020000")
    A(f"s_mov_b32 s{sW+2}, {64*6144}"); A(f"s_mov_b32 s{sW+3}, 0x00020000")
    A("s_waitcnt lgkmcnt(0)")
    if "top" in abl and gen.STAMPS: A("s_mov_b32 s80, s76"); A("s_mov_b32 s72, s78"); X(stamp(1))
    else: X(stamp(0))
    def settile(si):
        if si == 0: pre = [f"s_add_u32 s{sKX}, s{sR}, s{sO}", f"s_and_b32 s{sKX}, s{sKX}, 15"]
        else: pre = [f"s_cmp_le_u32 s{sR}, {si-1}", f"s_addc_u32 s{sKX}, s{sO}, {si-1}", f"s_and_b32 s{sKX}, s{sKX}, 15"]
        return [pre + [f"s_lshl_b32 s{sT0}, s{sKX}, 7", f"s_add_u32 s{sXs}, s{PTR}, s{sT0}", f"s_addc_u32 s{sXs+1}, s{PTR+1}, 0"],
                [f"s_mul_i32 s{sT0}, s{sKX}, {64*6144}", f"s_add_u32 s{sW}, s{PTR+2}, s{sT0}", f"s_addc_u32 s{sW+1}, s{PTR+3}, 0"]]
    def dma(si):
        stg = si % S
        L = settile(si)
        for q in range(4):
            grp = [f"s_add_u32 m0, s{sM0X}, {stg*XS}"] if q == 0 else []
            grp.append(VM(("D", si, q), f"buffer_load_dwordx4 v{vXD+(q&1)}, s[{sXs}:{sXs+3}], {'0' if q == 0 else 's%d' % (sXO+q-1)} offen offset:{q*1024} lds"))
            L.append(grp)
        for q in range(6):
            grp = [f"s_add_u32 m0, s{sM0W}, {stg*WS_ + q*1024}"] if q in (0, 4) else []
            grp.append(VM(("D", si, 4 + q), f"buffer_load_dwordx4 v{vWD+(q&1)}, s[{sW}:{sW+3}], s{sDO+q} offen offset:{(q&3)*1024} lds"))
            L.append(grp)
        return L
    X(dma(0)); X(dma(1))
    A("s_bitcmp1_b32 s2, 7")
    A(f"s_cselect_b32 s{sW13}, s{PTR+12}, s{PTR+10}"); A(f"s_cselect_b32 s{sW13+1}, s{PTR+13}, s{PTR+11}")
    A(f"s_mov_b32 s{sW13+2}, {1024*7168}"); A(f"s_mov_b32 s{sW13+3}, 0x00020000")
    X(srd(sWP, PTR + 4, PTR + 5, 65536)); X(srd(sWO, PTR + 6, PTR + 7, 2097152))
    X(srd(sDBG, 56, 57, 256)); X(srd(sWS, 58, 59, WS_BYTES))
    if "c3" in abl:
        A(f"s_and_b32 s{sT0}, s{sHP}, 7"); A(f"s_cmp_ge_u32 s{sT0}, 3"); A(f"s_cbranch_scc1 L_{name}_c3")
        A(f"s_cmp_lg_u32 s{sWAVE}, 0"); A(f"s_cbranch_scc1 L_{name}_c3")
        A(f"s_lshr_b32 s{sT1}, s{sHP}, 2"); A(f"s_lshr_b32 s{sT2}, s{sRB}, 3"); A(f"s_add_u32 s{sT1}, s{sT1}, s{sT2}")
        A(f"s_and_b32 s{sT2}, s{sRB}, 7"); A(f"s_lshl_b32 s{sT2}, s{sT2}, 1"); A(f"s_add_u32 s{sT1}, s{sT1}, s{sT2}"); A(f"s_add_u32 s{sT1}, s{sT1}, 13"); A(f"s_and_b32 s{sT1}, s{sT1}, 15")
        A(f"s_mul_i32 s{sT1}, s{sT1}, {64*6144}"); A(f"s_add_u32 s{sW}, s{PTR+2}, s{sT1}"); A(f"s_addc_u32 s{sW+1}, s{PTR+3}, 0")
        A(f"s_lshl_b32 s{sT0}, s{sT0}, 11"); A(f"s_or_b32 s{sT1}, s{sHP}, 3"); A(f"s_lshl_b32 s{sT1}, s{sT1}, 7"); A(f"s_add_u32 s{sT0}, s{sT0}, s{sT1}")
        A("v_mul_u32_u24 v14, 6144, v0")
        A(f"buffer_load_dwordx2 a[0:1], v14, s[{sW}:{sW+3}], s{sT0} offen offset:60")
        A(f"L_{name}_c3:")
    A(f"s_lshl_b32 s{sT0}, s{sHP}, 1"); A(f"s_add_u32 s{sT0}, s{sT0}, s{sHD}"); A(f"s_lshl_b32 s{sT0}, s{sT0}, 11")
    A(f"s_lshl_b32 s{sT1}, s{sWAVE}, 11"); A(f"s_add_u32 m0, s{sT1}, {WPO}")
    for q in range(2): V(("P", None, 0), f"buffer_load_dwordx4 v{vL16}, s[{sWP}:{sWP+3}], s{sT0} offen offset:{q*1024} lds")
    if "pt" in abl or "ptall" in abl:
        n, base = (5, OFF_KVR) if "ptall" in abl else (3, OFF_QCS)
        A(f"s_lshl_b32 s{sT0}, s2, 2"); A(f"s_add_u32 s{sT0}, s{sT0}, s{sWAVE}"); A(f"s_mul_i32 s{sT0}, s{sT0}, {n*128}"); A(f"s_add_u32 s{sT0}, s{sT0}, {base}")
        A(f"v_min_u32 v14, {n-1}, v0"); A("v_lshlrev_b32 v14, 7, v14")
        V(("T", None, 9), f"buffer_load_dwordx2 a[0:1], v14, s[{sWS}:{sWS+3}], s{sT0} offen offset:60 sc1")
    if "pf1" in abl:
        A(f"s_lshl_b32 s{sT0}, s2, 2"); A(f"s_add_u32 s{sT0}, s{sT0}, s{sWAVE}"); A(f"s_lshl_b32 s{sT0}, s{sT0}, 12"); A(f"s_add_u32 s{sT0}, s{sT0}, {OFF_EX}")
        X(lane16(14))
        for j in range(4): A(f"v_mov_b32 v{96+j}, -1")
        for k in range(4): V(("PF", None, k), f"buffer_store_dwordx4 v[96:99], v14, s[{sWS}:{sWS+3}], s{sT0} offen offset:{k*1024}")
    A(f"s_lshl_b32 s{sTT0}, s{sRB}, 3"); A(f"s_lshl_b32 s{sT1}, s{sM}, 2"); A(f"s_add_u32 s{sTT0}, s{sTT0}, s{sT1}")
    A("v_and_b32 v14, 15, v0"); A("v_lshrrev_b32 v15, 1, v14"); A("v_lshrrev_b32 v16, 4, v0"); A("v_xor_b32 v15, v15, v16")
    A("v_lshlrev_b32 v14, 7, v14"); A(f"s_lshl_b32 s{sT0}, s{sM}, 13"); A(f"s_lshl_b32 s{sT1}, s{sHD}, 12"); A(f"s_add_u32 s{sT0}, s{sT0}, s{sT1}")
    A(f"v_add_u32 v14, s{sT0}, v14")
    A(f"v_lshl_add_u32 v{vXR}, v15, 4, v14"); A(f"v_xor_b32 v{vXR+1}, 64, v{vXR}")
    A(f"v_xor_b32 v{vXR2}, 4096, v{vXR}"); A(f"v_xor_b32 v{vXR2+1}, 4096, v{vXR+1}")
    A("v_lshrrev_b32 v14, 4, v0"); A("v_bfe_u32 v15, v0, 2, 2")
    A("v_lshl_add_u32 v16, v14, 3, v15"); A("v_lshlrev_b32 v16, 7, v16")
    A("v_and_b32 v17, 3, v0"); A("v_lshl_add_u32 v16, v17, 3, v16")
    A("v_and_b32 v14, 1, v14"); A("v_lshrrev_b32 v15, 1, v15"); A("v_lshl_add_u32 v14, v14, 1, v15")
    A(f"s_lshl_b32 s{sT0}, s{sHD}, 1"); A(f"v_xor_b32 v14, s{sT0}, v14")
    A("v_lshl_add_u32 v16, v14, 5, v16")
    A(f"v_add_u32 v{vWR}, {WB}, v16"); A(f"v_xor_b32 v{vWR+1}, 32, v{vWR}")
    A(f"v_add_u32 v{vWR+2}, {2*WS_}, v{vWR}"); A(f"v_add_u32 v{vWR+3}, {2*WS_}, v{vWR+1}")
    vONE = 220
    for j in range(4): A(f"v_mov_b32 v{vONE+j}, 0x3f803f80")
    A("v_and_b32 v14, 15, v0")
    for k in range(6):
        A(f"v_cmp_eq_u32 vcc, {k}, v14"); A(f"v_cndmask_b32 v{vCS+4*k}, 0, v{vONE}, vcc")
        for j in range(1, 4): A(f"v_mov_b32 v{vCS+4*k+j}, v{vCS+4*k}")
    for i, m in enumerate((0x22222222, 0x44444444, 0x88888888)):
        A(f"s_mov_b32 s{sMK+2*i}, {m}"); A(f"s_mov_b32 s{sMK+2*i+1}, {m}")
    for i in range(4): A(f"s_mov_b32 s{sSEL+i}, {0x07060500 | i}")
    A(f"s_lshl_b32 s{sT0}, s{sRB}, 7"); A(f"s_lshl_b32 s{sT1}, s{sHP}, 7"); A(f"s_add_u32 s{sT1}, s{sT1}, 2048")
    A(f"v_mov_b32 v14, s{sT0}"); A(f"v_mov_b32 v15, s{sT1}"); A("v_cmp_gt_u32 vcc, 16, v0"); A(f"v_cndmask_b32 v{vFA}, v15, v14, vcc")
    A("v_and_b32 v16, 15, v0"); A(f"v_lshl_add_u32 v{vFA}, v16, 2, v{vFA}")
    A(f"v_lshl_add_u32 v14, s{sHP}, 2, v14"); A(f"v_lshl_add_u32 v15, s{sRB}, 2, v15"); A("v_cmp_eq_u32 vcc, 0, v0"); A(f"v_cndmask_b32 v{vFM}, v15, v14, vcc")
    A(f"v_mov_b32 v{vFV}, 0")
    A(f"s_or_b32 s{sT0}, s2, s{sWAVE}"); A(f"s_cmp_lg_u32 s{sT0}, 0"); A(f"s_cbranch_scc1 L_{name}_nn")
    A("s_memtime s[96:97]"); A("s_waitcnt lgkmcnt(0)"); A("s_or_b32 s96, s96, 0x01010101"); A("v_mov_b32 v14, s96")
    A(f"s_mov_b32 s{sT0}, {OFF_NONCE}")
    A("s_mov_b64 exec, 1"); A(f"buffer_store_dword v14, v{vFV}, s[{sDBG}:{sDBG+3}], 0 offen sc1")
    A(f"buffer_store_dword v14, v{vFV}, s[{sWS}:{sWS+3}], s{sT0} offen sc1"); A("s_mov_b64 exec, -1")
    A(f"L_{name}_nn:")
    def reads(si, ks, b):
        stg = si % S
        L = []
        for tt in range(4):
            L.append(f"ds_read_b128 {vr(xf(b,tt),4)}, v{(vXR if tt < 2 else vXR2) + ks} offset:{stg*XS + (tt&1)*2048}")
        for k in range(6):
            m, dh = k >> 1, k & 1
            va = vWR + dh + (2 if stg == 2 else 0)
            for t in range(2):
                L.append(f"ds_read_b64_tr_b16 {vr(wf(b,k)+2*t,2)}, v{va} offset:{(stg & 1)*WS_ + m*8192 + (32*ks + 4*t)*128}")
        return L[4:6] + L[0:4] + L[6:]
    W([("D", 0, None)])
    A("s_barrier")
    X(reads(0, 0, 0))
    if "top" not in abl: X(stamp(1))
    ex = {}
    OUT = []
    prex = {}
    wtags = {}
    def EXF(si, ks, groups): ex.setdefault((si, ks), []).extend(groups)
    g = []
    for tt in range(2):
        gr = 208 + 4 * tt
        g.append(f"v_cndmask_b32 v{gr}, v{gr}, v{gr+1}, s[{sMK}:{sMK+1}]"); g.append(f"v_cndmask_b32 v{gr}, v{gr}, v{gr+2}, s[{sMK+2}:{sMK+3}]")
        g.append(f"v_cndmask_b32 v{201+2*tt}, v{gr}, v{gr+3}, s[{sMK+4}:{sMK+5}]")
    g.append("v_mov_b32 v202, v204")
    g.append("v_and_b32 v14, 15, v0"); g.append("v_lshlrev_b32 v15, 4, v14")
    g.append([f"s_lshr_b32 s{sT1}, s{sTT0}, 1", f"s_add_u32 s{sT1}, s{sT1}, s{sHD}", f"s_lshl_b32 s{sT1}, s{sT1}, 12",
              f"s_lshl_b32 s{sT2}, s{sHP}, 8", f"s_add_u32 s{sT1}, s{sT1}, s{sT2}", f"s_add_u32 s{sT1}, s{sT1}, {OFF_XS}"])
    g.append(["s_mov_b32 exec_lo, 0x00f0000f", "s_mov_b32 exec_hi, 0xf0000f00",
              VM(("SS", None, 0), f"buffer_store_dwordx4 v[200:203], v15, s[{sWS}:{sWS+3}], s{sT1} offen sc1"), "s_mov_b64 exec, -1"])
    g.append("v_lshlrev_b32 v14, 10, v14"); g.append("v_and_b32 v15, 48, v0"); g.append("v_lshl_add_u32 v14, v15, 4, v14")
    g.append([f"s_lshl_b32 s{sT1}, s{sHP}, 1", f"s_add_u32 s{sT1}, s{sT1}, s{sHD}", f"s_mul_i32 s{sT1}, s{sT1}, 6144",
              f"s_lshl_b32 s{sT2}, s{sRB}, 4", f"s_add_u32 s{sT1}, s{sT1}, s{sT2}", f"s_add_u32 s{sT1}, s{sT1}, {OFF_QCS}"])
    g.append([f"s_mul_i32 s{sT2}, s{sM}, 3", f"s_lshl_b32 s{sT2}, 0x00070007, s{sT2}", f"s_mov_b32 exec_lo, s{sT2}", f"s_mov_b32 exec_hi, s{sT2}",
              VM(("SS", None, 1), f"buffer_store_dwordx4 v[216:219], v14, s[{sWS}:{sWS+3}], s{sT1} offen sc1"), "s_mov_b64 exec, -1"])
    EXF(1, 0, g)
    EXF(1, 1, ["v_lshrrev_b32 v14, 2, v0", "v_lshlrev_b32 v14, 6, v14", "v_and_b32 v15, 3, v0", "v_lshl_add_u32 v14, v15, 3, v14",
               [f"s_lshl_b32 s{sT1}, s{sWAVE}, 11", f"s_add_u32 s{sT1}, s{sT1}, {WPO}", f"v_add_u32 v14, s{sT1}, v14"]] +
              [f"ds_read_b64_tr_b16 {vr(vWP + ft*4 + 2*t, 2)}, v14 offset:{t*1024 + ft*32}" for ft in range(2) for t in range(2)])
    SPUB, SFL, SCHK = 3, 7, 8
    wtags[SPUB] = [("SS", None, None)]
    nload = f"buffer_load_dword v{vFL}, v{vFV}, s[{sDBG}:{sDBG+3}], 0 offen sc1"
    EXF(1, 1, [VM(("NO", None, 0), nload)])
    prex[(3, 0)] = [WaitVM([("NO", None, 0)]), f"v_readfirstlane_b32 s{sNON}, v{vFL}", f"s_cmp_eq_u32 s{sNON}, 0", f"s_cbranch_scc1 L_{name}_nsp", f"L_{name}_nok:"]
    OUT.extend([f"L_{name}_nsp:", f"s_mov_b32 s{sCNT}, 0", f"L_{name}_nsp2:", "s_sleep 2", nload, "s_waitcnt vmcnt(0)", f"v_readfirstlane_b32 s{sNON}, v{vFL}",
                f"s_add_u32 s{sCNT}, s{sCNT}, 1", f"s_cmp_ge_u32 s{sCNT}, {SPIN}", f"s_cbranch_scc1 L_{name}_nok",
                f"s_cmp_eq_u32 s{sNON}, 0", f"s_cbranch_scc1 L_{name}_nsp2", f"s_branch L_{name}_nok"])
    EXF(3, 0, [f"v_mov_b32 v{vFV}, s{sNON}", f"s_mov_b32 s{sKW}, {OFF_FL}"])
    EXF(SPUB, 1, [[f"s_cmp_eq_u32 s{sWAVE}, 0", f"s_cbranch_scc1 L_{name}_pf", f"L_{name}_pfr:"]])
    OUT.extend([f"L_{name}_pf:", "s_mov_b64 exec, 3", f"buffer_store_dword v{vFV}, v{vFM}, s[{sWS}:{sWS+3}], s{sKW} offen sc1", "s_mov_b64 exec, -1", f"s_branch L_{name}_pfr"])
    fload = f"buffer_load_dword v{vFL}, v{vFA}, s[{sWS}:{sWS+3}], s{sKW} offen sc1"
    EXF(SFL, 0, [VM(("FL", None, 0), fload)])
    prex[(SCHK, 0)] = [WaitVM([("FL", None, 0)]), f"v_cmp_ne_u32 vcc, v{vFL}, v{vFV}", f"s_cbranch_vccnz L_{name}_fsp", f"L_{name}_fok:"]
    OUT.extend([f"L_{name}_fsp:", f"s_mov_b32 s{sCNT}, 0", f"L_{name}_fsp2:", "s_sleep 1", fload, "s_waitcnt vmcnt(0)", f"v_cmp_ne_u32 vcc, v{vFL}, v{vFV}",
                f"s_add_u32 s{sCNT}, s{sCNT}, 1", f"s_cmp_ge_u32 s{sCNT}, {SPIN}", f"s_cbranch_scc1 L_{name}_fok",
                f"s_cbranch_vccnz L_{name}_fsp2", f"s_branch L_{name}_fok"])
    side_base = [f"s_lshr_b32 s{sT3}, s2, 3", f"s_and_b32 s{sT3}, s{sT3}, 15", f"s_lshl_b32 s{sT3}, s{sT3}, 2", f"s_add_u32 s{sT3}, s{sT3}, s{sWAVE}",
                 f"s_mul_i32 s{sT3}, s{sT3}, {16*7168}", f"s_and_b32 s{sT1}, s2, 7", f"s_mul_i32 s{sT1}, s{sT1}, 896", f"s_add_u32 s{sT3}, s{sT3}, s{sT1}"]
    n13 = 42 if ("tf" in abl or "tg" in abl) else 56
    t13 = [[f"s_and_b32 s{sT1}, s2, 63", f"s_lshl_b32 s{sT1}, s{sT1}, 2", f"s_add_u32 s{sT1}, s{sT1}, s{sWAVE}", f"s_mul_i32 s{sT1}, s{sT1}, {n13*128}",
            f"s_bfe_u32 s{sT2}, s2, 0x10006", f"s_mul_i32 s{sT2}, s{sT2}, {512*7168}", f"s_add_u32 s{sT1}, s{sT1}, s{sT2}",
            f"v_min_u32 v14, {n13-1}, v0", "v_lshlrev_b32 v14, 7, v14"],
           VM(("T", None, 0), f"buffer_load_dwordx2 a[0:1], v14, s[{sW13}:{sW13+3}], s{sT1} offen offset:60")]
    if "t13all" in abl: t13 += [[f"s_add_u32 s{sT1}, s{sT1}, {256*7168}", VM(("T", None, 1), f"buffer_load_dwordx2 a[0:1], v14, s[{sW13}:{sW13+3}], s{sT1} offen offset:60")]]
    for key, n in (("te3", 14), ("te2", 28)):
        if key in abl:
            t13 += [[f"s_and_b32 s{sT1}, s2, 63", f"s_lshl_b32 s{sT1}, s{sT1}, 2", f"s_add_u32 s{sT1}, s{sT1}, s{sWAVE}", f"s_mul_i32 s{sT1}, s{sT1}, {n*128}",
                     f"s_add_u32 s{sT1}, s{sT1}, s{sT2}", f"s_add_u32 s{sT1}, s{sT1}, {256*7168}", f"v_min_u32 v14, {(n-1)*128}, v14"],
                    VM(("T", None, 1), f"buffer_load_dwordx2 a[0:1], v14, s[{sW13}:{sW13+3}], s{sT1} offen offset:60")]
    touch = [
             [f"s_lshl_b32 s{sT1}, s2, 2", f"s_add_u32 s{sT1}, s{sT1}, s{sWAVE}", f"s_lshl_b32 s{sT1}, s{sT1}, 11",
              "v_and_b32 v14, 15, v0", "v_lshlrev_b32 v14, 7, v14"],
             VM(("T", None, 2), f"buffer_load_dwordx2 a[0:1], v14, s[{sWO}:{sWO+3}], s{sT1} offen offset:60")]
    SIDE = "side" in abl
    if "t13" in abl or "t13all" in abl: touch = touch + t13
    EXF(3, 0, [side_base])
    if 'rf' in abl: EXF(7, 1, code_refetch(name, 'rf', f'L_{name}_fin', 2, 14, 'a[0:1]', 56, sWAVE))
    g = [[f"s_lshr_b32 s{sT1}, s{sTT0}, 1", f"s_add_u32 s{sT1}, s{sT1}, s{sHD}", f"s_lshl_b32 s{sT1}, s{sT1}, 12", f"s_add_u32 s{sT1}, s{sT1}, {OFF_XS}",
          f"s_xor_b32 s{sT2}, s{sT1}, 4096"]]
    for p in range(2):
        for i in range(4):
            g.append(VM(("RS", None, p), f"buffer_load_dwordx4 {vr(vST + p*16 + i*4, 4)}, v{vL16}, s[{sWS}:{sWS+3}], s{sT1 if p == 0 else sT2} offen offset:{i*1024} sc1"))
    EXF(SCHK, 0, g)
    g = [[f"s_lshl_b32 s{sT1}, s{sHP}, 1", f"s_add_u32 s{sT1}, s{sT1}, s{sHD}", f"s_mul_i32 s{sT1}, s{sT1}, 6144", f"s_add_u32 s{sT1}, s{sT1}, {OFF_QCS}",
          f"s_add_u32 s{sT2}, s{sT1}, 4096"]]
    for k in range(6):
        g.append(VM(("QC", None, k), f"buffer_load_dwordx4 {vr(vCS + k*4, 4)}, v{vL16}, s[{sWS}:{sWS+3}], s{sT1 if k < 4 else sT2} offen offset:{(k&3)*1024} sc1"))
    EXF(SCHK, 0, g)
    wtags[9] = [("RS", None, 1), ("QC", None, 5)]
    def KP(tt): return vST + (tt >> 1) * 16 + 4 + 2 * (tt & 1)
    def CR(tt): return vST + (tt >> 1) * 16 + 8 + (tt & 1)
    def CC(p): return vST + p * 16 + 10
    red = []
    strs = []
    for p in range(2):
        b = vST + p * 16
        s = []
        for j in range(4): s.append(f"v_add_f32 v{b+j}, v{b+j}, v{b+4+j}")
        for j in range(4): s.append(f"v_add_f32 v{b+8+j}, v{b+8+j}, v{b+12+j}")
        for j in range(4): s.append(f"v_add_f32 v{b+j}, v{b+j}, v{b+8+j}")
        s += [sw16(b, b + 1), sw16(b + 2, b + 3), f"v_add_f32 v{b+1}, v{b}, v{b+1}", f"v_add_f32 v{b+3}, v{b+2}, v{b+3}",
              sw32(b + 1, b + 3), f"v_add_f32 v{b+1}, v{b+1}, v{b+3}", f"v_mov_b32 v{b+3}, v{b+1}", sw32(b + 1, b + 3),
              f"v_mov_b32 v{b}, v{b+1}", f"v_mov_b32 v{b+2}, v{b+3}", sw16(b, b + 1), sw16(b + 2, b + 3)]
        fin = []
        for t in range(2):
            tt = 2 * p + t
            sm, sq, nm, rs = b + 2 * t, b + 2 * t + 1, KP(tt), KP(tt) + 1
            fin.append([f"v_mul_f32 v{nm}, {fh(-1.0/1024)}, v{sm}", f"v_mul_f32 v{sq}, {fh(1.0/1024)}, v{sq}", f"v_fma_f32 v{sq}, -v{nm}, v{nm}, v{sq}",
                        f"v_max_f32 v{sq}, 0, v{sq}", f"v_add_f32 v{sq}, {fh(1e-5)}, v{sq}", f"v_rsq_f32 v{rs}, v{sq}", f"v_mul_f32 v{CR(tt)}, {fh(LOG2E)}, v{rs}"])
        s += zip_streams(*fin)
        s.append(f"v_cndmask_b32 v{CC(p)}, v{CR(2*p)}, v{CR(2*p+1)}, s[{sMK}:{sMK+1}]")
        strs.append(s)
    red += [[f"s_mov_b32 s{sMK}, 0", f"s_mov_b32 s{sMK+1}, -1"]] + zip_streams(*strs)
    for sh in (8, 4, 2, 1):
        for j in range(24): red.append(f"v_add_f32_dpp v{vCS+j}, v{vCS+j}, v{vCS+j} row_ror:{sh} row_mask:0xf bank_mask:0xf")
    vIE, vIV, vIR, vAP, vAM, vNON = 212, 213, 214, 228, 2, 15
    prep = ["v_and_b32 v14, 15, v0", [f"s_lshl_b32 s{sT1}, s{sM}, 6", f"v_add_u32 v14, s{sT1}, v14"], f"v_mul_u32_u24 v14, {RS}, v14",
            f"v_and_b32 v{vIV}, 48, v0", [f"s_lshl_b32 s{sT1}, s{sHD}, 7", f"v_add3_u32 v{vIE}, v14, v{vIV}, s{sT1}"],
            f"v_lshrrev_b32 v{vIR}, 2, v{vIV}", [f"s_lshl_b32 s{sT1}, s{sHD}, 5", f"s_add_u32 s{sT1}, s{sT1}, 512", f"v_add3_u32 v{vIR}, v14, v{vIR}, s{sT1}"],
            "v_and_b32 v14, 1, v0", "v_cmp_eq_u32 vcc, 0, v14", "v_mov_b32 v14, 0x3f803f80",
            f"v_cndmask_b32 v{vAP}, 0, v14, vcc", f"v_cndmask_b32 v{vAM}, v14, 0, vcc"]
    prep += [f"v_mov_b32 v{vAP+j}, v{vAP}" for j in range(1, 4)] + [f"v_mov_b32 v{vAM+j}, v{vAM}" for j in range(1, 4)]
    prep += [f"v_mov_b32 v{vNON}, s{sNON}"]
    red = red + prep
    phases = [(9, 1)] + [(si, ks) for si in range(10, 16) for ks in range(2)]
    wts = [16] * 8 + [20, 28, 28, 28, 40]
    tot = sum(wts); k0 = 0; accw = 0
    cum = [0]
    for x in red: cum.append(cum[-1] + icost(x))
    for ph, wt in zip(phases, wts):
        accw += wt
        k1 = k0
        while k1 < len(red) and cum[k1 + 1] <= cum[-1] * accw / tot + 1e-6: k1 += 1
        EXF(*ph, red[k0:k1]); k0 = k1
    assert k0 == len(red)
    aSD = 0
    sidef = {(13, 1): touch}
    for si in range(NT):
        for ks in range(2):
            b = ks
            mf = []
            for k in range(6):
                for tt in (range(4) if k % 2 == 0 else range(3, -1, -1)):
                    mf.append(f"{MFMA} {vr(acc(k,tt),4)}, {vr(wf(b,k),4)}, {vr(xf(b,tt),4)}, {'0' if (si == 0 and ks == 0) else vr(acc(k,tt),4)}")
            def C(r): return '0' if ks == 0 else vr(r, 4)
            if si == 0:
                for tt in range(2):
                    mf.append(f"{MFMA} {vr(200+4*tt,4)}, {vr(vONE,4)}, {vr(xf(b,tt),4)}, {C(200+4*tt)}")
                    mf.append(f"{MFMA} {vr(208+4*tt,4)}, {vr(xf(b,tt),4)}, {vr(xf(b,tt),4)}, {C(208+4*tt)}")
                for k in range(6):
                    mf.append(f"{MFMA} v[216:219], {vr(wf(b,k),4)}, {vr(vCS+4*k,4)}, {'0' if (ks == 0 and k == 0) else 'v[216:219]'}")
            if ks == 0: pre = ["s_waitcnt lgkmcnt(0)"]
            else:
                tags = ([("D", si + 1, None)] if si + 1 < NT else []) + wtags.get(si, [])
                if si == 0: tags.append(("P", None, 0))
                pre = [WaitVM(tags, " lgkmcnt(0)") if tags else "s_waitcnt lgkmcnt(0)", "s_barrier"]
            pre = pre + prex.get((si, ks), [])
            rd = reads(si, 1, 1) if ks == 0 else (reads(si + 1, 0, 0) if si + 1 < NT else [])
            dl = []
            if ks == 0:
                if si == 0: dl = dma(2)
                elif si + 2 < NT: dl = dma(si + 2)[7:]
            elif si + 3 < NT: dl = dma(si + 3)[:7]
            dl = dl + sidef.get((si, ks), [])
            if "mfma" in abl: mf = ["s_nop 0"] * len(mf)
            if "rd" in abl: rd = []
            if "bar" in abl: pre = [x for x in pre if x != "s_barrier"]
            e = ex.get((si, ks), [])
            body = pack_gaps(mf, rd, dl, e, last=19, ex_first=(6 if (si, ks) == (1, 0) else 0))
            if ks == 0 and si in lsmap: X(stamp(lsmap[si], True))
            X(pre); X(body)
    X(stamp(2))
    def pk(op, d, a, b_, c=None, sel=None, selhi=None, neg=None):
        t = f"{op} {vr(d,2)}, {vr(a,2)}, {vr(b_,2)}" + (f", {vr(c,2)}" if c is not None else "")
        if sel: t += f" op_sel:{sel} op_sel_hi:{selhi}"
        if neg: t += f" neg_lo:{neg} neg_hi:{neg}"
        return t
    def lnfix(m, tt):
        L = []
        for dh in range(2):
            a = acc(2*m + dh, tt); c = vCS + 4 * (2*m + dh)
            for j in (0, 2): L.append(pk("v_pk_fma_f32", a + j, c + j, KP(tt), a + j, "[0,0,0]", "[1,0,1]"))
        return L
    def pack(d, a0, a1):
        return [f"v_cvt_pk_bf16_f32 v{d}, v{a0}, v{a0+1}", f"v_cvt_pk_bf16_f32 v{d+1}, v{a0+2}, v{a0+3}",
                f"v_cvt_pk_bf16_f32 v{d+2}, v{a1}, v{a1+1}", f"v_cvt_pk_bf16_f32 v{d+3}, v{a1+2}, v{a1+3}"]
    PB = 16
    TB = 48
    MX = 64
    def pmf(m, tt):
        q = acc(2*m, tt)
        return lnfix(m, tt) + pack(q, q, acc(2*m + 1, tt)) + [f"{MFMA} {vr(PB + tt*8 + 4*ft, 4)}, {vr(vWP + 4*ft, 4)}, {vr(q, 4)}, 0" for ft in range(2)]
    def maxes(tt):
        s, mx, mn = PB + tt * 8, MX + 2 * tt, MX + 2 * tt + 1
        a = [f"v_max3_f32 v{mx}, v{s}, v{s+1}, v{s+2}", f"v_max3_f32 v{mx}, v{mx}, v{s+3}, v{s+4}", f"v_max3_f32 v{mx}, v{mx}, v{s+5}, v{s+6}", f"v_max_f32 v{mx}, v{mx}, v{s+7}"]
        b_ = [f"v_max3_f32 v{mn}, -v{s}, -v{s+1}, -v{s+2}", f"v_max3_f32 v{mn}, v{mn}, -v{s+3}, -v{s+4}", f"v_max3_f32 v{mn}, v{mn}, -v{s+5}, -v{s+6}", f"v_max_f32 v{mn}, v{mn}, -v{s+7}"]
        return zip_streams(a, b_)
    def xmax(p):
        a, b_ = MX + 4 * p, MX + 4 * p + 2
        return [sw16(a, a + 1), sw16(b_, b_ + 1), f"v_max_f32 v{a}, v{a}, v{a+1}", f"v_max_f32 v{b_}, v{b_}, v{b_+1}",
                sw32(a, b_), f"v_max_f32 v{a}, v{a}, v{b_}", f"v_mul_f32 v{a+1}, -v{a}, v{CC(p)}", f"v_mul_f32 v{b_+1}, -v{a}, v{CC(p)}",
                sw32(a + 1, b_ + 1), f"v_mov_b32 v{a}, v{a+1}", f"v_mov_b32 v{b_}, v{b_+1}", sw16(a, a + 1), sw16(b_, b_ + 1)]
    def exps(tt, dp, dn):
        s, t, mx = PB + tt * 8, TB + (tt & 1) * 8, MX + 2 * tt
        cp, cs_ = CR(tt) & ~1, CR(tt) & 1
        L = []
        for j in range(0, 8, 2): L.append(pk("v_pk_fma_f32", t + j, s + j, cp, mx, f"[0,{cs_},1]", f"[1,{cs_},1]", "[1,0,0]"))
        for j in range(0, 8, 2): L.append(pk("v_pk_fma_f32", s + j, s + j, cp, mx, f"[0,{cs_},0]", f"[1,{cs_},0]"))
        for j in range(8): L.append(f"v_exp_f32 v{s+j}, v{s+j}")
        for j in range(8): L.append(f"v_exp_f32 v{t+j}, v{t+j}")
        return L + pack(dp, s, s + 4) + pack(dn, t, t + 4)
    SM = 72
    for tt in range(4): X(pmf(1, tt))
    X(zip_streams(*[lnfix(2, tt) for tt in range(2)]))
    X(zip_streams(maxes(0), maxes(1))); X(zip_streams(maxes(2), maxes(3)))
    X(zip_streams(xmax(0), xmax(1), lnfix(2, 2) + lnfix(2, 3)))
    def vside(tt):
        sm = SM + 4 * tt; a0, a1 = acc(4, tt), acc(5, tt); t = TB + (tt & 1) * 8
        L = [f"v_rcp_f32 v{sm}, v{sm}", f"v_rcp_f32 v{sm+1}, v{sm+1}",
             pk("v_pk_mul_f32", sm + 2, sm, KP(tt), None, "[0,1]", "[1,1]"), f"v_cvt_pk_bf16_f32 v{sm}, v{sm}, v{sm+1}",
             f"ds_write_b32 v{vIR}, v{sm} offset:{tt*16*RS}"]
        for j, a in enumerate((a0, a0 + 2, a1, a1 + 2)): L.append(pk("v_pk_mul_f32", t + 2 * j, a, sm + 2, None, "[0,0]", "[1,0]"))
        for j, a in enumerate((a0, a0 + 2, a1, a1 + 2)): L.append(pk("v_pk_mul_f32", a, a, sm + 2, None, "[0,1]", "[1,1]"))
        L += pack(t, t, t + 4) + [f"ds_write_b128 v{vIE}, {vr(t,4)} offset:{tt*16*RS + 256}"]
        L += pack(a0, a0, a1) + [f"ds_write_b128 v{vIE}, {vr(a0,4)} offset:{tt*16*RS + 320}"]
        return L
    for tt in range(4):
        dp, dn = acc(2, tt), acc(3, tt)
        X(exps(tt, dp, dn))
        A(f"{MFMA} {vr(SM+4*tt,4)}, {vr(vAP,4)}, {vr(dp,4)}, 0"); A(f"{MFMA} {vr(SM+4*tt,4)}, {vr(vAM,4)}, {vr(dn,4)}, {vr(SM+4*tt,4)}")
        A(f"ds_write_b128 v{vIE}, {vr(dp,4)} offset:{tt*16*RS}"); A(f"ds_write_b128 v{vIE}, {vr(dn,4)} offset:{tt*16*RS + 64}")
        if tt >= 1: X(vside(tt - 1))
    A("v_lshrrev_b32 v6, 2, v0"); A(f"v_mul_u32_u24 v6, {RS}, v6"); A("v_and_b32 v7, 3, v0"); A("v_lshl_add_u32 v6, v7, 3, v6")
    A(f"s_lshl_b32 s{sT0}, s{sM}, 5"); A(f"v_add_u32 v7, s{sT0}, v6")
    A(f"s_lshl_b32 s{sT0}, s{sWAVE}, 6"); A(f"v_add_u32 v6, s{sT0}, v6")
    A(f"v_add_u32 v10, {64*RS}, v6"); A(f"v_add_u32 v11, {64*RS}, v7")
    X(vside(3))
    A("s_waitcnt lgkmcnt(0)"); A("s_barrier")
    X(stamp(3))
    KF = 16
    for ks in range(4):
        for x, (va, c) in enumerate(((6, 0), (6, 256), (6, 32), (6, 288), (7, 512))):
            xx = (0, 2, 1, 3, 4)[x]
            for t in range(2): A(f"ds_read_b64_tr_b16 {vr(KF + ks*20 + xx*4 + 2*t, 2)}, v{va + 4*(ks>>1)} offset:{(32*(ks&1) + 16*t)*RS + c}")
    KV = acc(2, 0)
    A(f"s_lshl_b32 s{sT0}, s{sHP}, 4"); A(f"s_lshl_b32 s{sT1}, s{sWAVE}, 2"); A(f"s_add_u32 s{sT0}, s{sT0}, s{sT1}"); A(f"s_lshl_b32 s{sT0}, s{sT0}, 4")
    A(f"s_add_u32 s{sT0}, s{sT0}, s{sRB}"); A(f"s_lshl_b32 s{sT0}, s{sT0}, 10"); A(f"s_add_u32 s{sT0}, s{sT0}, {OFF_KVP}")
    for k in range(1, 4): A(f"s_add_u32 s{sDO+k}, s{sT0}, {k*16384}")
    A(f"s_lshl_b32 s{sT2}, s{sHP}, 1"); A(f"s_add_u32 s{sT2}, s{sT2}, s{sM}"); A(f"s_lshl_b32 s{sT2}, s{sT2}, 4"); A(f"s_add_u32 s{sT2}, s{sT2}, s{sRB}")
    A(f"s_lshl_b32 s{sT2}, s{sT2}, 1"); A(f"s_add_u32 s{sT2}, s{sT2}, s{sHD}"); A(f"s_lshl_b32 s{sT2}, s{sT2}, 7"); A(f"s_add_u32 s{sT2}, s{sT2}, {OFF_ZP}")
    A(f"s_lshl_b32 s{sT1}, 0x00010001, s{sHD}")
    A("v_and_b32 v8, 48, v0")
    lq = lnfix(0, 0) + lnfix(0, 1) + lnfix(0, 2) + lnfix(0, 3)
    for ks in range(4):
        A(f"s_waitcnt lgkmcnt({min(15, (3-ks)*10)})")
        for ft in range(2):
            for dt in range(3):
                d = KV + (dt * 2 + ft) * 4
                A(f"{MFMA} {vr(d,4)}, {vr(KF + ks*20 + ft*4, 4)}, {vr(KF + ks*20 + 8 + dt*4, 4)}, {'0' if ks == 0 else vr(d,4)}")
    X(lq[:6])
    for k in (0, 2, 1, 3):
        for j in range(4): A(f"v_perm_b32 v{KV+4*k+j}, v{KV+4*k+j}, v{vNON}, s{sSEL + j}")
        A(f"buffer_store_dwordx4 {vr(KV+4*k,4)}, v{vL16}, s[{sWS}:{sWS+3}], s{sT0 if k == 0 else sDO+k} offen sc1")
    for j in range(16, 24): A(f"v_perm_b32 v{KV+j}, v{KV+j}, v{vNON}, s{sSEL + (j&3)}")
    A(f"s_mov_b32 exec_lo, s{sT1}"); A(f"s_mov_b32 exec_hi, s{sT1}")
    for ft in range(2): A(f"buffer_store_dwordx4 {vr(KV+16+4*ft,4)}, v8, s[{sWS}:{sWS+3}], s{sT2} offen offset:{ft*64} sc1")
    A("s_mov_b64 exec, -1")
    X(stamp(4))
    X(lq[6:])
    for tt in range(4):
        q = acc(0, tt)
        X(pack(q, q, acc(1, tt)))
        for ft in range(2): A(f"{MFMA} {vr(PB + tt*8 + 4*ft, 4)}, {vr(vWP + 4*ft, 4)}, {vr(q, 4)}, 0")
    A(f"s_mov_b32 s{sMK+2}, 0x0c0c0400"); A(f"s_mov_b32 s{sMK+3}, 0x04000c0c")
    A("v_lshrrev_b32 v6, 4, v0"); A("v_lshlrev_b32 v6, 10, v6"); A("v_and_b32 v7, 15, v0"); A("v_lshl_add_u32 v6, v7, 4, v6")
    A(f"s_lshl_b32 s{sT0}, s{sHP}, 4"); A(f"s_add_u32 s{sT0}, s{sT0}, s{sRB}"); A(f"s_lshl_b32 s{sT0}, s{sT0}, 14")
    A(f"s_lshl_b32 s{sT1}, s{sWAVE}, 8"); A(f"s_add_u32 s{sT0}, s{sT0}, s{sT1}"); A(f"s_add_u32 s{sT0}, s{sT0}, {OFF_KVP}")
    for j in range(1, 4): A(f"s_add_u32 s{sDO+j}, s{sT0}, {j*4096}")
    X(zip_streams(maxes(0), maxes(1))); X(zip_streams(maxes(2), maxes(3)))
    X(zip_streams(xmax(0), xmax(1)))
    EQ = acc(4, 0)
    H1, ZL = 232, 72
    loads1 = [f"buffer_load_dwordx4 {vr(H1+4*j,4)}, v6, s[{sWS}:{sWS+3}], s{sT0 if j == 0 else sDO+j} offen sc1" for j in range(4)]
    for tt in range(4):
        X(exps(tt, EQ + tt * 8, EQ + tt * 8 + 4))
        if tt == H1AT: X(loads1)
    X(stamp(5))
    def tagcheck(quads, t1, t2, accr):
        L = []
        for i, q in enumerate(quads):
            L += [f"v_perm_b32 v{t1}, v{q+1}, v{q}, s{sMK+2}", f"v_perm_b32 v{t2}, v{q+3}, v{q+2}, s{sMK+3}"]
            if i == 0: L += [f"v_or_b32 v{t1}, v{t1}, v{t2}", f"v_xor_b32 v{accr}, v{t1}, v{vNON}"]
            else: L += [f"v_or_b32 v{t1}, v{t1}, v{t2}", f"v_xor_b32 v{t1}, v{t1}, v{vNON}", f"v_or_b32 v{accr}, v{accr}, v{t1}"]
        L += [f"v_cmp_ne_u32 vcc, 0, v{accr}"]
        return L
    def polled(lbl, loads, quads, wait):
        A(f"s_mov_b32 s{sKW}, 0")
        X([wait])
        A(f"L_{name}_{lbl}:")
        X(tagcheck(quads, 12, 13, 14))
        A(f"s_cbranch_vccz L_{name}_{lbl}x")
        A(f"s_add_u32 s{sKW}, s{sKW}, 1"); A(f"s_cmp_ge_u32 s{sKW}, {SPIN}"); A(f"s_cbranch_scc1 L_{name}_{lbl}x")
        A("s_mov_b64 exec, vcc")
        if SLEEP: A(f"s_sleep {SLEEP}")
        X(loads)
        A("s_mov_b64 exec, -1")
        A("s_waitcnt vmcnt(0)")
        A(f"s_branch L_{name}_{lbl}")
        A(f"L_{name}_{lbl}x:")
    polled("h1", loads1, [H1 + 4 * j for j in range(4)], "s_waitcnt vmcnt(0)")
    for j in range(16): A(f"v_and_b32 v{H1+j}, 0xffffff00, v{H1+j}")
    for j in (0, 2): A(pk("v_pk_add_f32", H1 + j, H1 + j, H1 + 4 + j)); A(pk("v_pk_add_f32", H1 + 8 + j, H1 + 8 + j, H1 + 12 + j))
    for j in (0, 2): A(pk("v_pk_add_f32", H1 + j, H1 + j, H1 + 8 + j))
    X(zip_streams(*[xreduce(H1 + j, H1 + 4 + j, "v_add_f32") for j in range(4)]))
    for j in range(4): A(f"v_perm_b32 v{H1+j}, v{H1+j}, v{vNON}, s{sSEL+j}")
    A(f"s_lshl_b32 s{sT0}, s{sHP}, 4"); A(f"s_add_u32 s{sT0}, s{sT0}, s{sRB}"); A(f"s_lshl_b32 s{sT0}, s{sT0}, 10")
    A(f"s_lshl_b32 s{sT1}, s{sWAVE}, 8"); A(f"s_add_u32 s{sT0}, s{sT0}, s{sT1}"); A(f"s_add_u32 s{sT0}, s{sT0}, {OFF_KVR}")
    A("s_mov_b64 exec, 0xffff")
    A(f"buffer_store_dwordx4 {vr(H1,4)}, v{vL16}, s[{sWS}:{sWS+3}], s{sT0} offen sc1")
    A("s_mov_b64 exec, -1")
    X(stamp(6))
    A(f"s_lshl_b32 s{sT1}, s{sHP}, 1"); A(f"s_add_u32 s{sT1}, s{sT1}, s{sHD}"); A(f"s_lshl_b32 s{sT2}, s{sT1}, 12"); A(f"s_add_u32 s{sT2}, s{sT2}, {OFF_ZP}")
    loadsz = [f"buffer_load_dwordx4 {vr(ZL+4*j,4)}, v{vL16}, s[{sWS}:{sWS+3}], s{sT2} offen offset:{j*1024} sc1" for j in range(4)]
    for t in loadsz: V(("Z", None, 0), t)
    A("v_min_u32 v7, 55, v0"); A("v_lshlrev_b32 v7, 4, v7")
    SD = 96
    def sideload(j): return [VM(("W13", None, j), f"buffer_load_dwordx4 {vr(SD+4*j,4)}, v7, s[{sW13}:{sW13+3}], s{sT3} offen"), f"s_add_u32 s{sT3}, s{sT3}, 7168"]
    if SIDE:
        for j in range(16): X(sideload(j))
    A("v_and_b32 v6, 3, v0"); A("v_lshlrev_b32 v6, 4, v6")
    A("v_and_b32 v8, 4, v0"); A("v_lshl_add_u32 v6, v8, 5, v6")
    A("v_and_b32 v8, 8, v0"); A("v_lshl_add_u32 v6, v8, 8, v6")
    A("v_and_b32 v8, 48, v0"); A("v_lshl_add_u32 v6, v8, 5, v6")
    A(f"s_lshl_b32 s{sDO}, s{sT1}, 13"); A(f"s_add_u32 s{sDO}, s{sDO}, {OFF_KVR}"); A(f"s_add_u32 s{sDO+1}, s{sDO}, 4096")
    H2 = 200
    loads2 = [f"buffer_load_dwordx4 {vr(H2 + ((fh_*2+dt)*2+h)*4, 4)}, v6, s[{sWS}:{sWS+3}], s{sDO+fh_} offen offset:{dt*64 + h*256} sc1" for fh_ in range(2) for dt in range(2) for h in range(2)]
    if H2AT == 0:
        for t in loads2: V(("H2", None, 0), t)
    A(f"s_lshl_b32 s{sT0}, s{sWAVE}, 11"); A(f"s_add_u32 s{sT0}, s{sT0}, {WPO}")
    A(f"v_lshl_add_u32 v9, v0, 3, s{sT0}"); A(f"v_add_u32 v8, s{sT0}, v8")
    polled("hz", loadsz, [ZL + 4 * j for j in range(4)], WaitVM([("Z", None, 0)]))
    for j in range(16): A(f"v_and_b32 v{ZL+j}, 0xffffff00, v{ZL+j}")
    for j in (0, 2): A(pk("v_pk_add_f32", ZL + j, ZL + j, ZL + 4 + j)); A(pk("v_pk_add_f32", ZL + 8 + j, ZL + 8 + j, ZL + 12 + j))
    for j in (0, 2): A(pk("v_pk_add_f32", ZL + j, ZL + j, ZL + 8 + j))
    X(zip_streams(*[xreduce(ZL + j, ZL + 4 + j, "v_add_f32") for j in range(4)]))
    A(f"v_cvt_pk_bf16_f32 v{ZL}, v{ZL}, v{ZL+1}"); A(f"v_cvt_pk_bf16_f32 v{ZL+1}, v{ZL+2}, v{ZL+3}")
    A(f"ds_write_b64 v9, {vr(ZL,2)}")
    if H2AT == 1:
        for t in loads2: V(("H2", None, 0), t)
    ZQ = 88
    for fh_ in range(2): A(f"ds_read_b128 {vr(ZQ+4*fh_,4)}, v8 offset:{fh_*64}")
    A("v_and_b32 v9, 1, v0"); A("v_cmp_eq_u32 vcc, 0, v9")
    CA = 56
    def sidesum(j):
        L = [WaitVM([("W13", None, j)])]
        o = CA if j == 0 else 64 + 8 * (j & 1)
        for d in range(4): L += [unpack_lo(o + 2*d, SD + 4*j + d), unpack_hi(o + 1 + 2*d, SD + 4*j + d)]
        if j:
            for d in range(4): L.append(pk("v_pk_add_f32", CA + 2*d, CA + 2*d, o + 2*d))
        return L
    if SIDE: X(sidesum(0)); X(sidesum(1))
    A("s_waitcnt lgkmcnt(0)")
    for j in range(8): A(f"v_cndmask_b32 v{ZQ+j}, v{vAM}, v{ZQ+j}, vcc")
    DN = 16
    for tt in range(4):
        for fh_ in range(2): A(f"{MFMA} {vr(DN + tt*8 + 4*fh_, 4)}, {vr(ZQ + 4*fh_, 4)}, {vr(EQ + tt*8 + 4*fh_, 4)}, 0")
    AB = 48
    strs = []
    for tt in range(4):
        d = DN + tt * 8
        strs.append([f"v_rcp_f32 v{d+1}, v{d+1}", f"v_rcp_f32 v{d+5}, v{d+5}", f"v_mul_f32 v{d}, v{d}, v{d+1}",
                     f"v_fmac_f32 v{d}, v{d+4}, v{d+5}", f"v_add_f32 v{d}, {fh(1e-6)}, v{d}", f"v_rcp_f32 v{d}, v{d}",
                     f"v_mul_f32 v{AB+2*tt}, v{d+1}, v{d}", f"v_mul_f32 v{AB+2*tt+1}, v{d+5}, v{d}"])
    X(zip_streams(*strs))
    if SIDE:
        for j in range(2, 16): X(sidesum(j))
        A(f"s_lshl_b32 s{sT0}, s{sWAVE}, 11"); A(f"s_add_u32 s{sT0}, s{sT0}, {CSL}"); A("v_lshlrev_b32 v8, 5, v0"); A(f"v_add_u32 v8, s{sT0}, v8")
        A(f"ds_write_b128 v8, {vr(CA,4)}"); A(f"ds_write_b128 v8, {vr(CA+4,4)} offset:16")
    if H2AT == 2:
        for t in loads2: V(("H2", None, 0), t)
    A(f"s_lshl_b32 s{sT0}, s{sTT0}, 5"); A(f"s_lshl_b32 s{sT1}, s{sHP}, 1"); A(f"s_add_u32 s{sT0}, s{sT0}, s{sT1}"); A(f"s_add_u32 s{sT0}, s{sT0}, s{sHD}")
    A(f"s_lshl_b32 s{sT0}, s{sT0}, 10"); A(f"s_add_u32 s{sT0}, s{sT0}, {OFF_O}")
    A(f"s_lshl_b32 s{sT1}, s{sHD}, 16")
    for tt in range(4): A(f"s_xor_b32 s{sDO+2+tt}, s{sT1}, {tt*32768}"); A(f"s_add_u32 s{sDO+2+tt}, s{sDO+2+tt}, s{sT0}")
    X(lane16(7))
    polled("h2", loads2, [H2 + 4 * j for j in range(8)], "s_waitcnt vmcnt(0)")
    KQ = 16
    for j in range(16): A(f"v_cvt_pk_bf16_f32 v{KQ+j}, v{H2+2*j}, v{H2+2*j+1}")
    OD = ACC
    for tt in range(4):
        for fh_ in range(2):
            for dt in range(2):
                A(f"{MFMA} {vr(OD + tt*16 + fh_*8 + dt*4, 4)}, {vr(KQ + (fh_*2+dt)*4, 4)}, {vr(EQ + tt*8 + 4*fh_, 4)}, 0")
    for tt in range(4):
        d = OD + tt * 16
        for j in range(0, 8, 2): A(pk("v_pk_mul_f32", d + j, d + j, AB + 2*tt, None, "[0,0]", "[1,0]"))
        for j in range(0, 8, 2): A(pk("v_pk_fma_f32", d + j, d + 8 + j, AB + 2*tt, d + j, "[0,1,0]", "[1,1,1]"))
        X(pack(d + 8, d, d + 4))
        A(f"buffer_store_dwordx4 {vr(d+8,4)}, v7, s[{sWS}:{sWS+3}], s{sDO+2+tt} offen{' sc1' if 'wt1' in abl else ''}")
    if SIDE:
        A("s_waitcnt lgkmcnt(0)"); A("s_barrier")
        A(f"s_lshl_b32 s{sT0}, s{sWAVE}, 6"); A(f"v_add_u32 v8, s{sT0}, v0"); A("v_lshlrev_b32 v9, 2, v8"); A(f"v_add_u32 v9, {CSL}, v9")
        for c in range(2):
            for w in range(4): A(f"ds_read_b32 v{CA + c*4 + w}, v9 offset:{w*2048 + c*1024}")
        A(f"s_lshr_b32 s{sT0}, s2, 7"); A(f"s_mul_i32 s{sT0}, s{sT0}, 3584"); A(f"s_and_b32 s{sT1}, s2, 7"); A(f"s_mul_i32 s{sT1}, s{sT1}, 448"); A(f"s_add_u32 s{sT0}, s{sT0}, s{sT1}")
        A(f"s_lshl_b32 s{sT0}, s{sT0}, 6"); A(f"s_lshr_b32 s{sT1}, s2, 3"); A(f"s_and_b32 s{sT1}, s{sT1}, 15"); A(f"s_lshl_b32 s{sT1}, s{sT1}, 2"); A(f"s_add_u32 s{sT0}, s{sT0}, s{sT1}")
        A(f"s_add_u32 s{sT0}, s{sT0}, {OFF_CS}"); A(f"s_add_u32 s{sT1}, s{sT0}, {256*64}")
        A("v_lshlrev_b32 v9, 6, v8")
        A("s_waitcnt lgkmcnt(0)")
        for c in range(2):
            A(f"v_add_f32 v{CA+c*4}, v{CA+c*4}, v{CA+1+c*4}"); A(f"v_add_f32 v{CA+2+c*4}, v{CA+2+c*4}, v{CA+3+c*4}"); A(f"v_add_f32 v{CA+c*4}, v{CA+c*4}, v{CA+2+c*4}")
        A(f"buffer_store_dword v{CA}, v9, s[{sWS}:{sWS+3}], s{sT0} offen")
        A(f"s_cmp_ge_u32 s{sWAVE}, 3"); A(f"s_cbranch_scc1 L_{name}_skip")
        A(f"buffer_store_dword v{CA+4}, v9, s[{sWS}:{sWS+3}], s{sT1} offen")
        A(f"L_{name}_skip:")
    if gen.STAMPS:
        A("s_waitcnt vmcnt(0)"); X(stamp(7)); X(stamp_store(1, 8, sWS))
    A(f"L_{name}_end:"); A("s_endpgm")
    X(OUT); A(f"L_{name}_fin:")
    if "dma" in abl: P.skip.add("D")
    return finish(P, name, 256 + 8, 256, WPO + 8192)
SLEEP = 1
```

```python
from gen import *
import gen

M = 1 << 20
OFF_KVP = WB0 + 56 * M
OFF_KVR = WB0 + 60 * M
OFF_QCS = WB0 + 60 * M + (256 << 10)
OFF_ZP  = WB0 + 60 * M + (448 << 10)
OFF_FL  = WB0 + 60 * M + (576 << 10)
OFF_XS  = WB0 + 60 * M + (768 << 10)
F3, F4, F5 = OFF_FL + 4096, OFF_FL + 6144, OFF_FL + 7168
SPIN = 20000
NST = 16

def sw16(a, b): return f"v_permlane16_swap_b32 v{a}, v{b}"
def sw32(a, b): return f"v_permlane32_swap_b32 v{a}, v{b}"
def pk(op, d, a, b_, c=None, sel=None, selhi=None, neg=None):
    t = f"{op} {vr(d,2)}, {vr(a,2)}, {vr(b_,2)}" + (f", {vr(c,2)}" if c is not None else "")
    if sel: t += f" op_sel:{sel} op_sel_hi:{selhi}"
    if neg: t += f" neg_lo:{neg} neg_hi:{neg}"
    return t
def pack(d, a0, a1):
    return [f"v_cvt_pk_bf16_f32 v{d}, v{a0}, v{a0+1}", f"v_cvt_pk_bf16_f32 v{d+1}, v{a0+2}, v{a0+3}",
            f"v_cvt_pk_bf16_f32 v{d+2}, v{a1}, v{a1+1}", f"v_cvt_pk_bf16_f32 v{d+3}, v{a1+2}, v{a1+3}"]
def red4(b):
    return [sw16(b, b + 1), sw16(b + 2, b + 3), f"v_add_f32 v{b+1}, v{b}, v{b+1}", f"v_add_f32 v{b+3}, v{b+2}, v{b+3}",
            sw32(b + 1, b + 3), f"v_add_f32 v{b+1}, v{b+1}, v{b+3}", f"v_mov_b32 v{b+3}, v{b+1}", sw32(b + 1, b + 3),
            f"v_mov_b32 v{b}, v{b+1}", f"v_mov_b32 v{b+2}, v{b+3}", sw16(b, b + 1), sw16(b + 2, b + 3)]

def gen_mega(name="mega_kernel", abl=()):
    P = Prog(); A = P.pre.append
    def X(l): P.pre.extend(flat(l))
    def V(tag, text): P.pre.append(VM(tag, text))
    def W(tags, extra=""): P.pre.append(WaitVM(tags, extra))
    def opt(prefix, default):
        for k in abl:
            if k.startswith(prefix) and k[len(prefix):].lstrip("-").isdigit(): return int(k[len(prefix):])
        return default
    def stamp(i):
        if not gen.STAMPS: return []
        return ["s_memrealtime s[96:97]", "s_waitcnt lgkmcnt(0)", f"s_mov_b32 s{72+i}, s96"]
    L = lambda t: f"L_{t}"
    sWAVE, sWS, sNON, sT0, sT1, sT2, sCNT, sSEL, sXO, sM0X, sW13, sPC = 3, 12, 63, 38, 39, 61, 65, 44, 66, 70, 24, 58
    DUM = "a[254:255]"
    OUT = []
    def flush_out(tag):
        nonlocal OUT
        A(f"s_branch L_skip{tag}"); X(OUT); A(f"L_skip{tag}:"); OUT = []
    def refetch(tag, endlabel, n, vt): return code_refetch("m", tag, endlabel, n, vt, DUM, sPC, sWAVE)
    def touch13(rowoff, n, vt):
        return [[f"s_and_b32 s{sT1}, s2, 63", f"s_lshl_b32 s{sT1}, s{sT1}, 2", f"s_add_u32 s{sT1}, s{sT1}, s{sWAVE}", f"s_mul_i32 s{sT1}, s{sT1}, {n*128}",
                 f"s_bfe_u32 s{sT2}, s2, 0x10006", f"s_mul_i32 s{sT2}, s{sT2}, {512*7168}", f"s_add_u32 s{sT1}, s{sT1}, s{sT2}", f"s_add_u32 s{sT1}, s{sT1}, {rowoff*7168}",
                 f"v_min_u32 v{vt}, {n-1}, v0", f"v_lshlrev_b32 v{vt}, 7, v{vt}",
                 VM(("T", None, 0), f"buffer_load_dwordx2 {DUM}, v{vt}, s[{sW13}:{sW13+3}], s{sT1} offen offset:60")]]
    def touch_lin(srd_, base, n, vt):
        return [[f"s_lshl_b32 s{sT1}, s2, 2", f"s_add_u32 s{sT1}, s{sT1}, s{sWAVE}", f"s_mul_i32 s{sT1}, s{sT1}, {n*128}", f"s_add_u32 s{sT1}, s{sT1}, {base}",
                 f"v_min_u32 v{vt}, {n-1}, v0", f"v_lshlrev_b32 v{vt}, 7, v{vt}",
                 VM(("T", None, 0), f"buffer_load_dwordx2 {DUM}, v{vt}, s[{srd_}:{srd_+3}], s{sT1} offen offset:60")]]
    def handoff(tag, wait, s_pub, s_sub, n, va, vb, between):
        X([wait]); A("s_barrier")
        A(f"s_cmp_lg_u32 s{sWAVE}, 0"); A(f"s_cbranch_scc1 L_hs{tag}")
        A(f"v_mov_b32 v{va}, 0"); A(f"v_mov_b32 v{vb}, s{sNON}")
        A("s_mov_b64 exec, 1"); A(f"buffer_store_dword v{vb}, v{va}, s[{sWS}:{sWS+3}], s{s_pub} offen sc1"); A("s_mov_b64 exec, -1")
        A(f"L_hs{tag}:")
        X(between)
        A(f"s_cmp_lg_u32 s{sWAVE}, 0"); A(f"s_cbranch_scc1 L_hd{tag}")
        A(f"v_and_b32 v{va}, {n-1}, v0"); A(f"v_lshlrev_b32 v{va}, 2, v{va}"); A(f"s_mov_b32 s{sCNT}, 0")
        A(f"L_hp{tag}:")
        A(f"buffer_load_dword v{vb}, v{va}, s[{sWS}:{sWS+3}], s{s_sub} offen sc1"); A("s_waitcnt vmcnt(0)")
        A(f"v_cmp_ne_u32 vcc, s{sNON}, v{vb}")
        A(f"s_add_u32 s{sCNT}, s{sCNT}, 1"); A(f"s_cmp_ge_u32 s{sCNT}, {SPIN}"); A(f"s_cbranch_scc1 L_hd{tag}")
        A(f"s_cbranch_vccnz L_hp{tag}")
        A(f"L_hd{tag}:")
        A("s_barrier")

    NT, S = 16, 3
    H1AT = opt("h1_", 2)
    XS, WB, WS_ = 16384, 49152, 24576
    WPO = WB + 3 * WS_
    RS = 608
    ZSC = 128 * RS
    sXs, sW, sDBG, sWP, sWO = 4, 8, 16, 20, 28
    sM, sHD, sRB, sHP, sR, sTT0 = 33, 34, 35, 36, 37, 62
    sM0W, sKX, sKW, sDO, sMK, PTR = 71, 69, 60, 88, 48, 40
    sW3, sRB3, sCB3, sTT3 = 20, 54, 55, 64
    vL16, vXD, vWD, vXR, vWR, vXR2 = 1, 2, 4, 6, 8, 12
    FR, ACC, vWP, vST, vCS = 16, 96, 192, 200, 232
    vFM, vFA, vFV, vFL = 224, 225, 226, 227
    def xf(b, tt): return FR + b * 40 + tt * 4
    def wf(b, k): return FR + b * 40 + 16 + k * 4
    def acc(k, tt): return ACC + (k * 4 + tt) * 4
    X(kernel_header(name))
    A("s_cmp_ge_u32 s2, 256"); A("s_cbranch_scc1 L_end")
    A(f"s_load_dwordx16 s[{PTR}:{PTR+15}], s[0:1], 0")
    A("s_load_dwordx4 s[56:59], s[0:1], 72")
    X(code_prefetch("m", "L_fin", 6, 10, DUM, 92))
    A("v_lshrrev_b32 v1, 6, v0"); A("v_and_b32 v0, 63, v0")
    A(f"v_readfirstlane_b32 s{sWAVE}, v1")
    X(wg_decode(sRB, sHP, sT0, sT1, sT2, 1, 8, 4))
    A(f"s_lshr_b32 s{sM}, s{sWAVE}, 1"); A(f"s_and_b32 s{sHD}, s{sWAVE}, 1")
    A(f"s_and_b32 s{sT0}, s{sHP}, 3"); A(f"s_lshl_b32 s{sT0}, s{sT0}, 2"); A(f"s_lshr_b32 s{sT1}, s{sHP}, 2"); A(f"s_add_u32 s{sR}, s{sT0}, s{sT1}")
    A(f"s_and_b32 s{sT0}, s{sRB}, 7"); A(f"s_lshl_b32 s{sT0}, s{sT0}, 1"); A(f"s_lshr_b32 s{sT1}, s{sRB}, 3"); A(f"s_add_u32 s{sR}, s{sR}, s{sT0}"); A(f"s_add_u32 s{sR}, s{sR}, s{sT1}")
    A(f"s_and_b32 s{sR}, s{sR}, 15")
    A(f"v_lshlrev_b32 v{vL16}, 4, v0")
    A("v_lshrrev_b32 v12, 3, v0"); A("v_lshrrev_b32 v13, 4, v0"); A("v_xor_b32 v13, v13, v0"); A("v_and_b32 v13, 7, v13")
    A("v_lshlrev_b32 v14, 11, v12")
    A(f"s_lshl_b32 s{sT0}, s{sRB}, 18"); A(f"s_lshl_b32 s{sT1}, s{sWAVE}, 16"); A(f"s_add_u32 s{sT0}, s{sT0}, s{sT1}")
    A(f"v_add_u32 v14, s{sT0}, v14")
    A(f"v_lshl_add_u32 v{vXD}, v13, 4, v14"); A("v_xor_b32 v13, 4, v13"); A(f"v_lshl_add_u32 v{vXD+1}, v13, 4, v14")
    A("v_and_b32 v13, 2, v12"); A("v_xor_b32 v13, v13, v0"); A("v_and_b32 v13, 7, v13")
    A("v_mul_u32_u24 v14, 6144, v12"); A(f"s_lshl_b32 s{sT0}, s{sHP}, 7"); A(f"v_add_u32 v14, s{sT0}, v14")
    A(f"v_lshl_add_u32 v{vWD}, v13, 4, v14"); A("v_xor_b32 v13, 4, v13"); A(f"v_lshl_add_u32 v{vWD+1}, v13, 4, v14")
    for q in range(1, 4): A(f"s_mov_b32 s{sXO+q-1}, {q*15360}")
    A(f"s_lshl_b32 s{sM0X}, s{sWAVE}, 12")
    A(f"s_mul_i32 s{sM0W}, s{sWAVE}, 6144"); A(f"s_add_u32 s{sM0W}, s{sM0W}, {WB}")
    A(f"s_mul_i32 s{sT0}, s{sWAVE}, 6")
    for q in range(6):
        A(f"s_add_u32 s{sT1}, s{sT0}, {q}")
        A(f"s_and_b32 s{sT2}, s{sT1}, 7"); A(f"s_mul_i32 s{sT2}, s{sT2}, {8*6144}")
        A(f"s_lshr_b32 s{sT1}, s{sT1}, 3"); A(f"s_lshl_b32 s{sT1}, s{sT1}, 11")
        A(f"s_add_u32 s{sDO+q}, s{sT1}, s{sT2}")
        if q & 3: A(f"s_sub_u32 s{sDO+q}, s{sDO+q}, {(q&3)*1024}")
    A(f"s_mov_b32 s{sXs+2}, {2048*2048 - 15*128}"); A(f"s_mov_b32 s{sXs+3}, 0x00020000")
    A(f"s_mov_b32 s{sW+2}, {64*6144}"); A(f"s_mov_b32 s{sW+3}, 0x00020000")
    A("s_waitcnt lgkmcnt(0)")
    X(stamp(0))
    def settile(si):
        if si == 0: pre = [f"s_mov_b32 s{sKX}, s{sR}"]
        else: pre = [f"s_cmp_le_u32 s{sR}, {si-1}", f"s_addc_u32 s{sKX}, 0, {si-1}"]
        return [pre + [f"s_lshl_b32 s{sT0}, s{sKX}, 7", f"s_add_u32 s{sXs}, s{PTR}, s{sT0}", f"s_addc_u32 s{sXs+1}, s{PTR+1}, 0"],
                [f"s_mul_i32 s{sT0}, s{sKX}, {64*6144}", f"s_add_u32 s{sW}, s{PTR+2}, s{sT0}", f"s_addc_u32 s{sW+1}, s{PTR+3}, 0"]]
    def dma(si):
        stg = si % S
        Lq = settile(si)
        for q in range(4):
            grp = [f"s_add_u32 m0, s{sM0X}, {stg*XS}"] if q == 0 else []
            grp.append(VM(("D", si, q), f"buffer_load_dwordx4 v{vXD+(q&1)}, s[{sXs}:{sXs+3}], {'0' if q == 0 else 's%d' % (sXO+q-1)} offen offset:{q*1024} lds"))
            Lq.append(grp)
        for q in range(6):
            grp = [f"s_add_u32 m0, s{sM0W}, {stg*WS_ + q*1024}"] if q in (0, 4) else []
            grp.append(VM(("D", si, 4 + q), f"buffer_load_dwordx4 v{vWD+(q&1)}, s[{sW}:{sW+3}], s{sDO+q} offen offset:{(q&3)*1024} lds"))
            Lq.append(grp)
        return Lq
    X(dma(0)); X(dma(1))
    A("s_bitcmp1_b32 s2, 7")
    A(f"s_cselect_b32 s{sW13}, s{PTR+12}, s{PTR+10}"); A(f"s_cselect_b32 s{sW13+1}, s{PTR+13}, s{PTR+11}")
    A(f"s_mov_b32 s{sW13+2}, {1024*7168}"); A(f"s_mov_b32 s{sW13+3}, 0x00020000")
    X(srd(sWP, PTR + 4, PTR + 5, 65536)); X(srd(sWO, PTR + 6, PTR + 7, 2097152))
    X(srd(sDBG, 56, 57, 256)); X(srd(sWS, 58, 59, WS_BYTES))
    A(f"s_lshl_b32 s{sT0}, s{sHP}, 1"); A(f"s_add_u32 s{sT0}, s{sT0}, s{sHD}"); A(f"s_lshl_b32 s{sT0}, s{sT0}, 11")
    A(f"s_lshl_b32 s{sT1}, s{sWAVE}, 11"); A(f"s_add_u32 m0, s{sT1}, {WPO}")
    for q in range(2): V(("P", None, 0), f"buffer_load_dwordx4 v{vL16}, s[{sWP}:{sWP+3}], s{sT0} offen offset:{q*1024} lds")
    if "pt" in abl: X(touch_lin(sWS, OFF_KVR, 5, 14))
    if "wo0" in abl: X(touch_lin(sWO, 0, 16, 14))
    A(f"s_lshl_b32 s{sTT0}, s{sRB}, 3"); A(f"s_lshl_b32 s{sT1}, s{sM}, 2"); A(f"s_add_u32 s{sTT0}, s{sTT0}, s{sT1}")
    A("v_and_b32 v14, 15, v0"); A("v_lshrrev_b32 v15, 1, v14"); A("v_lshrrev_b32 v16, 4, v0"); A("v_xor_b32 v15, v15, v16")
    A("v_lshlrev_b32 v14, 7, v14"); A(f"s_lshl_b32 s{sT0}, s{sM}, 13"); A(f"s_lshl_b32 s{sT1}, s{sHD}, 12"); A(f"s_add_u32 s{sT0}, s{sT0}, s{sT1}")
    A(f"v_add_u32 v14, s{sT0}, v14")
    A(f"v_lshl_add_u32 v{vXR}, v15, 4, v14"); A(f"v_xor_b32 v{vXR+1}, 64, v{vXR}")
    A(f"v_xor_b32 v{vXR2}, 4096, v{vXR}"); A(f"v_xor_b32 v{vXR2+1}, 4096, v{vXR+1}")
    A("v_lshrrev_b32 v14, 4, v0"); A("v_bfe_u32 v15, v0, 2, 2")
    A("v_lshl_add_u32 v16, v14, 3, v15"); A("v_lshlrev_b32 v16, 7, v16")
    A("v_and_b32 v17, 3, v0"); A("v_lshl_add_u32 v16, v17, 3, v16")
    A("v_and_b32 v14, 1, v14"); A("v_lshrrev_b32 v15, 1, v15"); A("v_lshl_add_u32 v14, v14, 1, v15")
    A(f"s_lshl_b32 s{sT0}, s{sHD}, 1"); A(f"v_xor_b32 v14, s{sT0}, v14")
    A("v_lshl_add_u32 v16, v14, 5, v16")
    A(f"v_add_u32 v{vWR}, {WB}, v16"); A(f"v_xor_b32 v{vWR+1}, 32, v{vWR}")
    A(f"v_add_u32 v{vWR+2}, {2*WS_}, v{vWR}"); A(f"v_add_u32 v{vWR+3}, {2*WS_}, v{vWR+1}")
    vONE = 220
    for j in range(4): A(f"v_mov_b32 v{vONE+j}, 0x3f803f80")
    A("v_and_b32 v14, 15, v0")
    for k in range(6):
        A(f"v_cmp_eq_u32 vcc, {k}, v14"); A(f"v_cndmask_b32 v{vCS+4*k}, 0, v{vONE}, vcc")
        for j in range(1, 4): A(f"v_mov_b32 v{vCS+4*k+j}, v{vCS+4*k}")
    for i, m in enumerate((0x22222222, 0x44444444, 0x88888888)):
        A(f"s_mov_b32 s{sMK+2*i}, {m}"); A(f"s_mov_b32 s{sMK+2*i+1}, {m}")
    for i in range(4): A(f"s_mov_b32 s{sSEL+i}, {0x07060500 | i}")
    A(f"s_lshl_b32 s{sT0}, s{sRB}, 7"); A(f"s_lshl_b32 s{sT1}, s{sHP}, 7"); A(f"s_add_u32 s{sT1}, s{sT1}, 2048")
    A(f"v_mov_b32 v14, s{sT0}"); A(f"v_mov_b32 v15, s{sT1}"); A("v_cmp_gt_u32 vcc, 16, v0"); A(f"v_cndmask_b32 v{vFA}, v15, v14, vcc")
    A("v_and_b32 v16, 15, v0"); A(f"v_lshl_add_u32 v{vFA}, v16, 2, v{vFA}")
    A(f"v_lshl_add_u32 v14, s{sHP}, 2, v14"); A(f"v_lshl_add_u32 v15, s{sRB}, 2, v15"); A("v_cmp_eq_u32 vcc, 0, v0"); A(f"v_cndmask_b32 v{vFM}, v15, v14, vcc")
    A(f"v_mov_b32 v{vFV}, 0")
    A(f"s_and_b32 s{sRB3}, s2, 7"); A(f"s_lshl_b32 s{sRB3}, s{sRB3}, 1"); A(f"s_bfe_u32 s{sT0}, s2, 0x10003"); A(f"s_add_u32 s{sRB3}, s{sRB3}, s{sT0}")
    A(f"s_lshr_b32 s{sCB3}, s2, 4")
    A(f"s_lshl_b32 s{sTT3}, s{sRB3}, 3"); A(f"s_lshl_b32 s{sT0}, s{sWAVE}, 1"); A(f"s_add_u32 s{sTT3}, s{sTT3}, s{sT0}")
    X(dma_voff_128(14, 15, 16, 2048))
    A(f"s_lshl_b32 s{sT0}, s{sWAVE}, 16"); A(f"v_add_u32 v14, s{sT0}, v14"); A("v_accvgpr_write_b32 a253, v14")
    A(f"s_or_b32 s{sT0}, s2, s{sWAVE}"); A(f"s_cmp_lg_u32 s{sT0}, 0"); A("s_cbranch_scc1 L_nn")
    A("s_memtime s[96:97]"); A("s_waitcnt lgkmcnt(0)"); A("s_or_b32 s96, s96, 0x01010101"); A("v_mov_b32 v14, s96")
    A("s_mov_b64 exec, 1"); A(f"buffer_store_dword v14, v{vFV}, s[{sDBG}:{sDBG+3}], 0 offen sc1"); A("s_mov_b64 exec, -1")
    A("L_nn:")
    def reads(si, ks, b):
        stg = si % S
        Lq = []
        for tt in range(4):
            Lq.append(f"ds_read_b128 {vr(xf(b,tt),4)}, v{(vXR if tt < 2 else vXR2) + ks} offset:{stg*XS + (tt&1)*2048}")
        for k in range(6):
            m, dh = k >> 1, k & 1
            va = vWR + dh + (2 if stg == 2 else 0)
            for t in range(2):
                Lq.append(f"ds_read_b64_tr_b16 {vr(wf(b,k)+2*t,2)}, v{va} offset:{(stg & 1)*WS_ + m*8192 + (32*ks + 4*t)*128}")
        return Lq[4:6] + Lq[0:4] + Lq[6:]
    W([("D", 0, None)])
    A("s_barrier")
    X(reads(0, 0, 0))
    X(stamp(1))
    ex = {}; prex = {}; wtags = {}
    def EXF(si, ks, groups): ex.setdefault((si, ks), []).extend(groups)
    g = []
    for tt in range(2):
        gr = 208 + 4 * tt
        g.append(f"v_cndmask_b32 v{gr}, v{gr}, v{gr+1}, s[{sMK}:{sMK+1}]"); g.append(f"v_cndmask_b32 v{gr}, v{gr}, v{gr+2}, s[{sMK+2}:{sMK+3}]")
        g.append(f"v_cndmask_b32 v{201+2*tt}, v{gr}, v{gr+3}, s[{sMK+4}:{sMK+5}]")
    g.append("v_mov_b32 v202, v204")
    g.append("v_and_b32 v14, 15, v0"); g.append("v_lshlrev_b32 v15, 4, v14")
    g.append([f"s_lshr_b32 s{sT1}, s{sTT0}, 1", f"s_add_u32 s{sT1}, s{sT1}, s{sHD}", f"s_lshl_b32 s{sT1}, s{sT1}, 12",
              f"s_lshl_b32 s{sT2}, s{sHP}, 8", f"s_add_u32 s{sT1}, s{sT1}, s{sT2}", f"s_add_u32 s{sT1}, s{sT1}, {OFF_XS}"])
    g.append(["s_mov_b32 exec_lo, 0x00f0000f", "s_mov_b32 exec_hi, 0xf0000f00",
              VM(("SS", None, 0), f"buffer_store_dwordx4 v[200:203], v15, s[{sWS}:{sWS+3}], s{sT1} offen sc1"), "s_mov_b64 exec, -1"])
    g.append("v_lshlrev_b32 v14, 10, v14"); g.append("v_and_b32 v15, 48, v0"); g.append("v_lshl_add_u32 v14, v15, 4, v14")
    g.append([f"s_lshl_b32 s{sT1}, s{sHP}, 1", f"s_add_u32 s{sT1}, s{sT1}, s{sHD}", f"s_mul_i32 s{sT1}, s{sT1}, 6144",
              f"s_lshl_b32 s{sT2}, s{sRB}, 4", f"s_add_u32 s{sT1}, s{sT1}, s{sT2}", f"s_add_u32 s{sT1}, s{sT1}, {OFF_QCS}"])
    g.append([f"s_mul_i32 s{sT2}, s{sM}, 3", f"s_lshl_b32 s{sT2}, 0x00070007, s{sT2}", f"s_mov_b32 exec_lo, s{sT2}", f"s_mov_b32 exec_hi, s{sT2}",
              VM(("SS", None, 1), f"buffer_store_dwordx4 v[216:219], v14, s[{sWS}:{sWS+3}], s{sT1} offen sc1"), "s_mov_b64 exec, -1"])
    EXF(1, 0, g)
    EXF(1, 1, ["v_lshrrev_b32 v14, 2, v0", "v_lshlrev_b32 v14, 6, v14", "v_and_b32 v15, 3, v0", "v_lshl_add_u32 v14, v15, 3, v14",
               [f"s_lshl_b32 s{sT1}, s{sWAVE}, 11", f"s_add_u32 s{sT1}, s{sT1}, {WPO}", f"v_add_u32 v14, s{sT1}, v14"]] +
              [f"ds_read_b64_tr_b16 {vr(vWP + ft*4 + 2*t, 2)}, v14 offset:{t*1024 + ft*32}" for ft in range(2) for t in range(2)])
    SPUB, SFL, SCHK = 3, 6, 7
    wtags[SPUB] = [("SS", None, None)]
    nload = f"buffer_load_dword v{vFL}, v{vFV}, s[{sDBG}:{sDBG+3}], 0 offen sc1"
    EXF(1, 1, [VM(("NO", None, 0), nload)])
    prex[(3, 0)] = [WaitVM([("NO", None, 0)]), f"v_readfirstlane_b32 s{sNON}, v{vFL}", f"s_cmp_eq_u32 s{sNON}, 0", "s_cbranch_scc1 L_nsp", "L_nok:"]
    OUT.extend(["L_nsp:", f"s_mov_b32 s{sCNT}, 0", "L_nsp2:", "s_sleep 2", nload, "s_waitcnt vmcnt(0)", f"v_readfirstlane_b32 s{sNON}, v{vFL}",
                f"s_add_u32 s{sCNT}, s{sCNT}, 1", f"s_cmp_ge_u32 s{sCNT}, {SPIN}", "s_cbranch_scc1 L_nok",
                f"s_cmp_eq_u32 s{sNON}, 0", "s_cbranch_scc1 L_nsp2", "s_branch L_nok"])
    EXF(3, 0, [f"v_mov_b32 v{vFV}, s{sNON}", f"s_mov_b32 s{sKW}, {OFF_FL}"])
    EXF(SPUB, 1, [[f"s_cmp_eq_u32 s{sWAVE}, 0", "s_cbranch_scc1 L_pf", "L_pfr:"]])
    OUT.extend(["L_pf:", "s_mov_b64 exec, 3", f"buffer_store_dword v{vFV}, v{vFM}, s[{sWS}:{sWS+3}], s{sKW} offen sc1", "s_mov_b64 exec, -1", "s_branch L_pfr"])
    fload = f"buffer_load_dword v{vFL}, v{vFA}, s[{sWS}:{sWS+3}], s{sKW} offen sc1"
    EXF(SFL, 0, [VM(("FL", None, 0), fload)])
    prex[(SCHK, 0)] = [WaitVM([("FL", None, 0)]), f"v_cmp_ne_u32 vcc, v{vFL}, v{vFV}", "s_cbranch_vccnz L_fsp", "L_fok:"]
    OUT.extend(["L_fsp:", f"s_mov_b32 s{sCNT}, 0", "L_fsp2:", "s_sleep 1", fload, "s_waitcnt vmcnt(0)", f"v_cmp_ne_u32 vcc, v{vFL}, v{vFV}",
                f"s_add_u32 s{sCNT}, s{sCNT}, 1", f"s_cmp_ge_u32 s{sCNT}, {SPIN}", "s_cbranch_scc1 L_fok", "s_cbranch_vccnz L_fsp2", "s_branch L_fok"])
    WOAT = opt("wo_", 4)
    if "wo0" not in abl: EXF(WOAT, 1, touch_lin(sWO, 0, 16, 14))
    EXF(8, 0, refetch("rf1", "L_p3end", 2, 14))
    g = [[f"s_lshr_b32 s{sT1}, s{sTT0}, 1", f"s_add_u32 s{sT1}, s{sT1}, s{sHD}", f"s_lshl_b32 s{sT1}, s{sT1}, 12", f"s_add_u32 s{sT1}, s{sT1}, {OFF_XS}",
          f"s_xor_b32 s{sT2}, s{sT1}, 4096"]]
    for p in range(2):
        for i in range(4):
            g.append(VM(("RS", None, p), f"buffer_load_dwordx4 {vr(vST + p*16 + i*4, 4)}, v{vL16}, s[{sWS}:{sWS+3}], s{sT1 if p == 0 else sT2} offen offset:{i*1024} sc1"))
    EXF(SCHK, 0, g)
    g = [[f"s_lshl_b32 s{sT1}, s{sHP}, 1", f"s_add_u32 s{sT1}, s{sT1}, s{sHD}", f"s_mul_i32 s{sT1}, s{sT1}, 6144", f"s_add_u32 s{sT1}, s{sT1}, {OFF_QCS}",
          f"s_add_u32 s{sT2}, s{sT1}, 4096"]]
    for k in range(6):
        g.append(VM(("QC", None, k), f"buffer_load_dwordx4 {vr(vCS + k*4, 4)}, v{vL16}, s[{sWS}:{sWS+3}], s{sT1 if k < 4 else sT2} offen offset:{(k&3)*1024} sc1"))
    EXF(SCHK, 0, g)
    wtags[SCHK + 1] = [("RS", None, 1), ("QC", None, 5)]
    def KP(tt): return vST + (tt >> 1) * 16 + 4 + 2 * (tt & 1)
    def CR(tt): return vST + (tt >> 1) * 16 + 8 + (tt & 1)
    def CC(p): return vST + p * 16 + 10
    strs = []
    for p in range(2):
        b = vST + p * 16
        s = []
        for j in range(4): s.append(f"v_add_f32 v{b+j}, v{b+j}, v{b+4+j}")
        for j in range(4): s.append(f"v_add_f32 v{b+8+j}, v{b+8+j}, v{b+12+j}")
        for j in range(4): s.append(f"v_add_f32 v{b+j}, v{b+j}, v{b+8+j}")
        s += red4(b)
        fin = []
        for t in range(2):
            tt = 2 * p + t
            sm, sq, nm, rs = b + 2 * t, b + 2 * t + 1, KP(tt), KP(tt) + 1
            fin.append([f"v_mul_f32 v{nm}, {fh(-1.0/1024)}, v{sm}", f"v_mul_f32 v{sq}, {fh(1.0/1024)}, v{sq}", f"v_fma_f32 v{sq}, -v{nm}, v{nm}, v{sq}",
                        f"v_max_f32 v{sq}, 0, v{sq}", f"v_add_f32 v{sq}, {fh(1e-5)}, v{sq}", f"v_rsq_f32 v{rs}, v{sq}", f"v_mul_f32 v{CR(tt)}, {fh(LOG2E)}, v{rs}"])
        s += zip_streams(*fin)
        s.append(f"v_cndmask_b32 v{CC(p)}, v{CR(2*p)}, v{CR(2*p+1)}, s[{sMK}:{sMK+1}]")
        strs.append(s)
    red = [[f"s_mov_b32 s{sMK}, 0", f"s_mov_b32 s{sMK+1}, -1"]] + zip_streams(*strs)
    for sh in (8, 4, 2, 1):
        for j in range(24): red.append(f"v_add_f32_dpp v{vCS+j}, v{vCS+j}, v{vCS+j} row_ror:{sh} row_mask:0xf bank_mask:0xf")
    vIE, vIV, vIR, vAP, vAM, vNON, vD3 = 212, 213, 214, 228, 2, 15, 215
    prep = ["v_and_b32 v14, 15, v0", [f"s_lshl_b32 s{sT1}, s{sM}, 6", f"v_add_u32 v14, s{sT1}, v14"], f"v_mul_u32_u24 v14, {RS}, v14",
            f"v_and_b32 v{vIV}, 48, v0", [f"s_lshl_b32 s{sT1}, s{sHD}, 7", f"v_add3_u32 v{vIE}, v14, v{vIV}, s{sT1}"],
            f"v_lshrrev_b32 v{vIR}, 2, v{vIV}", [f"s_lshl_b32 s{sT1}, s{sHD}, 5", f"s_add_u32 s{sT1}, s{sT1}, 512", f"v_add3_u32 v{vIR}, v14, v{vIR}, s{sT1}"],
            "v_and_b32 v14, 1, v0", "v_cmp_eq_u32 vcc, 0, v14", "v_mov_b32 v14, 0x3f803f80",
            f"v_cndmask_b32 v{vAP}, 0, v14, vcc", f"v_cndmask_b32 v{vAM}, v14, 0, vcc"]
    prep += [f"v_mov_b32 v{vAP+j}, v{vAP}" for j in range(1, 4)] + [f"v_mov_b32 v{vAM+j}, v{vAM}" for j in range(1, 4)]
    prep += [f"v_mov_b32 v{vNON}, s{sNON}"]
    phases = [(SCHK + 1, 1)] + [(si, ks) for si in range(SCHK + 2, 15) for ks in range(2)] + [(15, 0)]
    k0 = 0; cum = [0]
    for x in red: cum.append(cum[-1] + icost(x))
    for i, ph in enumerate(phases):
        k1 = k0
        while k1 < len(red) and cum[k1 + 1] <= cum[-1] * (i + 1) / len(phases) + 1e-6: k1 += 1
        EXF(*ph, red[k0:k1]); k0 = k1
    assert k0 == len(red)
    EXF(15, 1, prep)
    SLOT3 = [0, 16384, 32768, 81920, 98304, 114688, 131072, 147456]
    def dma3(t):
        Lq = [[f"s_add_u32 s{sW3}, s{sWO}, s{sKX}", f"s_addc_u32 s{sW3+1}, s{sWO+1}, 0", f"s_add_u32 s{sW3}, s{sW3}, {t << 18}", f"s_addc_u32 s{sW3+1}, s{sW3+1}, 0",
               f"s_add_u32 m0, s{sM0X}, {SLOT3[t]}"]]
        for q in range(4):
            Lq.append(VM(("D3", t, q), f"buffer_load_dwordx4 v{vD3}, s[{sW3}:{sW3+3}], {'0' if q == 0 else 's%d' % (sXO+q-1)} offen offset:{q*1024} lds"))
        return Lq
    N13 = opt("n13_", 28)
    sidef = {(13, 1): [[f"v_accvgpr_read_b32 v{vD3}, a253", f"s_lshl_b32 s{sKX}, s{sCB3}, 7", f"s_mov_b32 s{sW3+2}, {127*2048+128}"]] + dma3(6),
             (14, 0): dma3(7) + dma3(3), (14, 1): dma3(4), (15, 0): dma3(5), (15, 1): touch13(0, N13, 6)}
    for si in range(NT):
        for ks in range(2):
            b = ks
            mf = []
            for k in range(6):
                for tt in (range(4) if k % 2 == 0 else range(3, -1, -1)):
                    mf.append(f"{MFMA} {vr(acc(k,tt),4)}, {vr(wf(b,k),4)}, {vr(xf(b,tt),4)}, {'0' if (si == 0 and ks == 0) else vr(acc(k,tt),4)}")
            def C(r): return '0' if ks == 0 else vr(r, 4)
            if si == 0:
                for tt in range(2):
                    mf.append(f"{MFMA} {vr(200+4*tt,4)}, {vr(vONE,4)}, {vr(xf(b,tt),4)}, {C(200+4*tt)}")
                    mf.append(f"{MFMA} {vr(208+4*tt,4)}, {vr(xf(b,tt),4)}, {vr(xf(b,tt),4)}, {C(208+4*tt)}")
                for k in range(6):
                    mf.append(f"{MFMA} v[216:219], {vr(wf(b,k),4)}, {vr(vCS+4*k,4)}, {'0' if (ks == 0 and k == 0) else 'v[216:219]'}")
            if ks == 0: pre = ["s_waitcnt lgkmcnt(0)"]
            else:
                tags = ([("D", si + 1, None)] if si + 1 < NT else []) + wtags.get(si, [])
                if si == 0: tags.append(("P", None, 0))
                pre = [WaitVM(tags, " lgkmcnt(0)") if tags else "s_waitcnt lgkmcnt(0)", "s_barrier"]
            pre = pre + prex.get((si, ks), [])
            rd = reads(si, 1, 1) if ks == 0 else (reads(si + 1, 0, 0) if si + 1 < NT else [])
            dl = []
            if ks == 0:
                if si == 0: dl = dma(2)
                elif si + 2 < NT: dl = dma(si + 2)[7:]
            elif si + 3 < NT: dl = dma(si + 3)[:7]
            dl = dl + sidef.get((si, ks), [])
            X(pre); X(pack_gaps(mf, rd, dl, ex.get((si, ks), []), last=19, ex_first=(6 if (si, ks) == (1, 0) else 0)))
    X(stamp(2))
    def lnfix(m, tt):
        Lq = []
        for dh in range(2):
            a = acc(2*m + dh, tt); c = vCS + 4 * (2*m + dh)
            for j in (0, 2): Lq.append(pk("v_pk_fma_f32", a + j, c + j, KP(tt), a + j, "[0,0,0]", "[1,0,1]"))
        return Lq
    PB, TB, MX, SM = 16, 48, 64, 72
    def pmf(m, tt):
        q = acc(2*m, tt)
        return lnfix(m, tt) + pack(q, q, acc(2*m + 1, tt)) + [f"{MFMA} {vr(PB + tt*8 + 4*ft, 4)}, {vr(vWP + 4*ft, 4)}, {vr(q, 4)}, 0" for ft in range(2)]
    def maxes(tt):
        s, mx, mn = PB + tt * 8, MX + 2 * tt, MX + 2 * tt + 1
        a = [f"v_max3_f32 v{mx}, v{s}, v{s+1}, v{s+2}", f"v_max3_f32 v{mx}, v{mx}, v{s+3}, v{s+4}", f"v_max3_f32 v{mx}, v{mx}, v{s+5}, v{s+6}", f"v_max_f32 v{mx}, v{mx}, v{s+7}"]
        b_ = [f"v_max3_f32 v{mn}, -v{s}, -v{s+1}, -v{s+2}", f"v_max3_f32 v{mn}, v{mn}, -v{s+3}, -v{s+4}", f"v_max3_f32 v{mn}, v{mn}, -v{s+5}, -v{s+6}", f"v_max_f32 v{mn}, v{mn}, -v{s+7}"]
        return zip_streams(a, b_)
    def xmax(p):
        a, b_ = MX + 4 * p, MX + 4 * p + 2
        return [sw16(a, a + 1), sw16(b_, b_ + 1), f"v_max_f32 v{a}, v{a}, v{a+1}", f"v_max_f32 v{b_}, v{b_}, v{b_+1}",
                sw32(a, b_), f"v_max_f32 v{a}, v{a}, v{b_}", f"v_mul_f32 v{a+1}, -v{a}, v{CC(p)}", f"v_mul_f32 v{b_+1}, -v{a}, v{CC(p)}",
                sw32(a + 1, b_ + 1), f"v_mov_b32 v{a}, v{a+1}", f"v_mov_b32 v{b_}, v{b_+1}", sw16(a, a + 1), sw16(b_, b_ + 1)]
    def exps(tt, dp, dn):
        s, t, mx = PB + tt * 8, TB + (tt & 1) * 8, MX + 2 * tt
        cp, cs_ = CR(tt) & ~1, CR(tt) & 1
        Lq = []
        for j in range(0, 8, 2): Lq.append(pk("v_pk_fma_f32", t + j, s + j, cp, mx, f"[0,{cs_},1]", f"[1,{cs_},1]", "[1,0,0]"))
        for j in range(0, 8, 2): Lq.append(pk("v_pk_fma_f32", s + j, s + j, cp, mx, f"[0,{cs_},0]", f"[1,{cs_},0]"))
        for j in range(8): Lq.append(f"v_exp_f32 v{s+j}, v{s+j}")
        for j in range(8): Lq.append(f"v_exp_f32 v{t+j}, v{t+j}")
        return Lq + pack(dp, s, s + 4) + pack(dn, t, t + 4)
    for tt in range(4): X(pmf(1, tt))
    X(zip_streams(*[lnfix(2, tt) for tt in range(2)]))
    X(zip_streams(maxes(0), maxes(1))); X(zip_streams(maxes(2), maxes(3)))
    X(zip_streams(xmax(0), xmax(1), lnfix(2, 2) + lnfix(2, 3)))
    def vside(tt):
        sm = SM + 4 * tt; a0, a1 = acc(4, tt), acc(5, tt); t = TB + (tt & 1) * 8
        Lq = [f"v_rcp_f32 v{sm}, v{sm}", f"v_rcp_f32 v{sm+1}, v{sm+1}",
              pk("v_pk_mul_f32", sm + 2, sm, KP(tt), None, "[0,1]", "[1,1]"), f"v_cvt_pk_bf16_f32 v{sm}, v{sm}, v{sm+1}",
              f"ds_write_b32 v{vIR}, v{sm} offset:{tt*16*RS}"]
        for j, a in enumerate((a0, a0 + 2, a1, a1 + 2)): Lq.append(pk("v_pk_mul_f32", t + 2 * j, a, sm + 2, None, "[0,0]", "[1,0]"))
        for j, a in enumerate((a0, a0 + 2, a1, a1 + 2)): Lq.append(pk("v_pk_mul_f32", a, a, sm + 2, None, "[0,1]", "[1,1]"))
        Lq += pack(t, t, t + 4) + [f"ds_write_b128 v{vIE}, {vr(t,4)} offset:{tt*16*RS + 256}"]
        Lq += pack(a0, a0, a1) + [f"ds_write_b128 v{vIE}, {vr(a0,4)} offset:{tt*16*RS + 320}"]
        return Lq
    for tt in range(4):
        dp, dn = acc(2, tt), acc(3, tt)
        X(exps(tt, dp, dn))
        A(f"{MFMA} {vr(SM+4*tt,4)}, {vr(vAP,4)}, {vr(dp,4)}, 0"); A(f"{MFMA} {vr(SM+4*tt,4)}, {vr(vAM,4)}, {vr(dn,4)}, {vr(SM+4*tt,4)}")
        A(f"ds_write_b128 v{vIE}, {vr(dp,4)} offset:{tt*16*RS}"); A(f"ds_write_b128 v{vIE}, {vr(dn,4)} offset:{tt*16*RS + 64}")
        if tt >= 1: X(vside(tt - 1))
    A("v_lshrrev_b32 v6, 2, v0"); A(f"v_mul_u32_u24 v6, {RS}, v6"); A("v_and_b32 v7, 3, v0"); A("v_lshl_add_u32 v6, v7, 3, v6")
    A(f"s_lshl_b32 s{sT0}, s{sM}, 5"); A(f"v_add_u32 v7, s{sT0}, v6")
    A(f"s_lshl_b32 s{sT0}, s{sWAVE}, 6"); A(f"v_add_u32 v6, s{sT0}, v6")
    A(f"v_add_u32 v10, {64*RS}, v6"); A(f"v_add_u32 v11, {64*RS}, v7")
    X(vside(3))
    A("s_waitcnt lgkmcnt(0)"); A("s_barrier")
    KF = 16
    for ks in range(4):
        for x, (va, c) in enumerate(((6, 0), (6, 256), (6, 32), (6, 288), (7, 512))):
            xx = (0, 2, 1, 3, 4)[x]
            for t in range(2): A(f"ds_read_b64_tr_b16 {vr(KF + ks*20 + xx*4 + 2*t, 2)}, v{va + 4*(ks>>1)} offset:{(32*(ks&1) + 16*t)*RS + c}")
    KV = acc(2, 0)
    A(f"s_lshl_b32 s{sT0}, s{sHP}, 4"); A(f"s_lshl_b32 s{sT1}, s{sWAVE}, 2"); A(f"s_add_u32 s{sT0}, s{sT0}, s{sT1}"); A(f"s_lshl_b32 s{sT0}, s{sT0}, 4")
    A(f"s_add_u32 s{sT0}, s{sT0}, s{sRB}"); A(f"s_lshl_b32 s{sT0}, s{sT0}, 10"); A(f"s_add_u32 s{sT0}, s{sT0}, {OFF_KVP}")
    for k in range(1, 4): A(f"s_add_u32 s{sDO+k}, s{sT0}, {k*16384}")
    A(f"s_lshl_b32 s{sT2}, s{sHP}, 1"); A(f"s_add_u32 s{sT2}, s{sT2}, s{sM}"); A(f"s_lshl_b32 s{sT2}, s{sT2}, 4"); A(f"s_add_u32 s{sT2}, s{sT2}, s{sRB}")
    A(f"s_lshl_b32 s{sT2}, s{sT2}, 1"); A(f"s_add_u32 s{sT2}, s{sT2}, s{sHD}"); A(f"s_lshl_b32 s{sT2}, s{sT2}, 7"); A(f"s_add_u32 s{sT2}, s{sT2}, {OFF_ZP}")
    A(f"s_lshl_b32 s{sT1}, 0x00010001, s{sHD}")
    A("v_and_b32 v8, 48, v0")
    lq = lnfix(0, 0) + lnfix(0, 1) + lnfix(0, 2) + lnfix(0, 3)
    for ks in range(4):
        A(f"s_waitcnt lgkmcnt({min(15, (3-ks)*10)})")
        for ft in range(2):
            for dt in range(3):
                d = KV + (dt * 2 + ft) * 4
                A(f"{MFMA} {vr(d,4)}, {vr(KF + ks*20 + ft*4, 4)}, {vr(KF + ks*20 + 8 + dt*4, 4)}, {'0' if ks == 0 else vr(d,4)}")
    X(lq[:6])
    for k in (0, 2, 1, 3):
        for j in range(4): A(f"v_perm_b32 v{KV+4*k+j}, v{KV+4*k+j}, v{vNON}, s{sSEL + j}")
        A(f"buffer_store_dwordx4 {vr(KV+4*k,4)}, v{vL16}, s[{sWS}:{sWS+3}], s{sT0 if k == 0 else sDO+k} offen sc1")
    for j in range(16, 24): A(f"v_perm_b32 v{KV+j}, v{KV+j}, v{vNON}, s{sSEL + (j&3)}")
    A(f"s_mov_b32 exec_lo, s{sT1}"); A(f"s_mov_b32 exec_hi, s{sT1}")
    for ft in range(2): A(f"buffer_store_dwordx4 {vr(KV+16+4*ft,4)}, v8, s[{sWS}:{sWS+3}], s{sT2} offen offset:{ft*64} sc1")
    A("s_mov_b64 exec, -1")
    X(stamp(3))
    A("s_barrier")
    X(dma3(0)); X(dma3(1))
    X(lq[6:])
    for tt in range(4):
        q = acc(0, tt)
        X(pack(q, q, acc(1, tt)))
        for ft in range(2): A(f"{MFMA} {vr(PB + tt*8 + 4*ft, 4)}, {vr(vWP + 4*ft, 4)}, {vr(q, 4)}, 0")
    A(f"s_mov_b32 s{sMK+2}, 0x0c0c0400"); A(f"s_mov_b32 s{sMK+3}, 0x04000c0c")
    A("v_lshrrev_b32 v6, 4, v0"); A("v_lshlrev_b32 v6, 10, v6"); A("v_and_b32 v7, 15, v0"); A("v_lshl_add_u32 v6, v7, 4, v6")
    A(f"s_lshl_b32 s{sT0}, s{sHP}, 4"); A(f"s_add_u32 s{sT0}, s{sT0}, s{sRB}"); A(f"s_lshl_b32 s{sT0}, s{sT0}, 14")
    A(f"s_lshl_b32 s{sT1}, s{sWAVE}, 8"); A(f"s_add_u32 s{sT0}, s{sT0}, s{sT1}"); A(f"s_add_u32 s{sDO}, s{sT0}, {OFF_KVP}")
    for j in range(1, 4): A(f"s_add_u32 s{sDO+j}, s{sDO}, {j*4096}")
    A(f"s_lshl_b32 s{sDO+5}, s{sHP}, 1"); A(f"s_add_u32 s{sDO+5}, s{sDO+5}, s{sHD}"); A(f"s_lshl_b32 s{sDO+4}, s{sDO+5}, 12"); A(f"s_add_u32 s{sDO+4}, s{sDO+4}, {OFF_ZP}")
    X(zip_streams(maxes(0), maxes(1))); X(zip_streams(maxes(2), maxes(3)))
    X(zip_streams(xmax(0), xmax(1)))
    EQ = acc(4, 0)
    H1, ZL = 232, 72
    loads1 = [f"buffer_load_dwordx4 {vr(H1+4*j,4)}, v6, s[{sWS}:{sWS+3}], s{sDO+j} offen sc1" for j in range(4)]
    loadsz = [f"buffer_load_dwordx4 {vr(ZL+4*j,4)}, v{vL16}, s[{sWS}:{sWS+3}], s{sDO+4} offen offset:{j*1024} sc1" for j in range(4)]
    for tt in range(4):
        X(exps(tt, EQ + tt * 8, EQ + tt * 8 + 4))
        if tt == H1AT: X(loads1); X(loadsz)
    def tagcheck(quads, t1, t2, accr):
        Lq = []
        for i, q in enumerate(quads):
            Lq += [f"v_perm_b32 v{t1}, v{q+1}, v{q}, s{sMK+2}", f"v_perm_b32 v{t2}, v{q+3}, v{q+2}, s{sMK+3}"]
            if i == 0: Lq += [f"v_or_b32 v{t1}, v{t1}, v{t2}", f"v_xor_b32 v{accr}, v{t1}, v{vNON}"]
            else: Lq += [f"v_or_b32 v{t1}, v{t1}, v{t2}", f"v_xor_b32 v{t1}, v{t1}, v{vNON}", f"v_or_b32 v{accr}, v{accr}, v{t1}"]
        return Lq + [f"v_cmp_ne_u32 vcc, 0, v{accr}"]
    def polled(lbl, loads, quads, wait):
        A(f"s_mov_b32 s{sKW}, 0")
        X([wait])
        A(f"L_{lbl}:")
        X(tagcheck(quads, 12, 13, 14))
        A(f"s_cbranch_vccnz L_{lbl}r")
        A(f"L_{lbl}x:")
        OUT.extend([f"L_{lbl}r:", f"s_add_u32 s{sKW}, s{sKW}, 1", f"s_cmp_ge_u32 s{sKW}, {SPIN}", f"s_cbranch_scc1 L_{lbl}x",
                    "s_mov_b64 exec, vcc", "s_sleep 1"] + loads + ["s_mov_b64 exec, -1", "s_waitcnt vmcnt(0)", f"s_branch L_{lbl}"])
    A(f"s_lshl_b32 s{sT0}, s{sHP}, 4"); A(f"s_add_u32 s{sT0}, s{sT0}, s{sRB}"); A(f"s_lshl_b32 s{sT0}, s{sT0}, 10")
    A(f"s_lshl_b32 s{sT1}, s{sWAVE}, 8"); A(f"s_add_u32 s{sT0}, s{sT0}, s{sT1}"); A(f"s_add_u32 s{sT0}, s{sT0}, {OFF_KVR}")
    polled("h1", loads1, [H1 + 4 * j for j in range(4)], "s_waitcnt vmcnt(4)")
    for j in range(16): A(f"v_and_b32 v{H1+j}, 0xffffff00, v{H1+j}")
    for j in (0, 2): A(pk("v_pk_add_f32", H1 + j, H1 + j, H1 + 4 + j)); A(pk("v_pk_add_f32", H1 + 8 + j, H1 + 8 + j, H1 + 12 + j))
    for j in (0, 2): A(pk("v_pk_add_f32", H1 + j, H1 + j, H1 + 8 + j))
    X(red4(H1))
    for j in range(4): A(f"v_perm_b32 v{H1+j}, v{H1+j}, v{vNON}, s{sSEL+j}")
    A("s_mov_b64 exec, 0xffff")
    A(f"buffer_store_dwordx4 {vr(H1,4)}, v{vL16}, s[{sWS}:{sWS+3}], s{sT0} offen sc1")
    A("s_mov_b64 exec, -1")
    X(stamp(4))
    polled("hz", loadsz, [ZL + 4 * j for j in range(4)], "s_waitcnt vmcnt(1)")
    X(dma3(2))
    R3 = 236
    X(rowmajor_voff(10, 9, 11, 11))
    A(f"s_mov_b32 s{sXs}, s{PTR}"); A(f"s_mov_b32 s{sXs+1}, s{PTR+1}"); A(f"s_mov_b32 s{sXs+2}, {2048*2048}")
    A(f"s_lshl_b32 s{sT0}, s{sTT3}, 15"); A(f"s_add_u32 s{sT0}, s{sT0}, s{sKX}"); A(f"s_add_u32 s{sT1}, s{sT0}, 32768")
    for tt in range(2):
        for m in range(2): A(f"buffer_load_dwordx4 {vr(R3 + (tt*2+m)*4, 4)}, v10, s[{sXs}:{sXs+3}], s{sT0 if tt == 0 else sT1} offen offset:{m*64}")
    A("v_and_b32 v6, 3, v0"); A("v_lshlrev_b32 v6, 4, v6")
    A("v_and_b32 v8, 4, v0"); A("v_lshl_add_u32 v6, v8, 5, v6")
    A("v_and_b32 v8, 8, v0"); A("v_lshl_add_u32 v6, v8, 8, v6")
    A("v_and_b32 v8, 48, v0"); A("v_lshl_add_u32 v6, v8, 5, v6")
    A(f"s_lshl_b32 s{sDO}, s{sDO+5}, 13"); A(f"s_add_u32 s{sDO}, s{sDO}, {OFF_KVR}"); A(f"s_add_u32 s{sDO+1}, s{sDO}, 4096")
    H2 = 200
    loads2 = [f"buffer_load_dwordx4 {vr(H2 + ((fh_*2+dt)*2+h)*4, 4)}, v6, s[{sWS}:{sWS+3}], s{sDO+fh_} offen offset:{dt*64 + h*256} sc1" for fh_ in range(2) for dt in range(2) for h in range(2)]
    H2AT = opt("h2_", 1)
    if H2AT == 0: X(loads2)
    A(f"s_lshl_b32 s{sT0}, s{sWAVE}, 9"); A(f"s_add_u32 s{sT0}, s{sT0}, {ZSC}")
    A(f"v_lshl_add_u32 v9, v0, 3, s{sT0}"); A(f"v_add_u32 v8, s{sT0}, v8")
    for j in range(16): A(f"v_and_b32 v{ZL+j}, 0xffffff00, v{ZL+j}")
    for j in (0, 2): A(pk("v_pk_add_f32", ZL + j, ZL + j, ZL + 4 + j)); A(pk("v_pk_add_f32", ZL + 8 + j, ZL + 8 + j, ZL + 12 + j))
    for j in (0, 2): A(pk("v_pk_add_f32", ZL + j, ZL + j, ZL + 8 + j))
    X(red4(ZL))
    A(f"v_cvt_pk_bf16_f32 v{ZL}, v{ZL}, v{ZL+1}"); A(f"v_cvt_pk_bf16_f32 v{ZL+1}, v{ZL+2}, v{ZL+3}")
    A(f"ds_write_b64 v9, {vr(ZL,2)}")
    ZQ = 88
    for fh_ in range(2): A(f"ds_read_b128 {vr(ZQ+4*fh_,4)}, v8 offset:{fh_*64}")
    if H2AT == 1: X(loads2)
    A("v_and_b32 v9, 1, v0"); A("v_cmp_eq_u32 vcc, 0, v9")
    A("s_waitcnt lgkmcnt(0)")
    for j in range(8): A(f"v_cndmask_b32 v{ZQ+j}, v{vAM}, v{ZQ+j}, vcc")
    DN, AB = 16, 48
    for tt in range(4):
        for fh_ in range(2): A(f"{MFMA} {vr(DN + tt*8 + 4*fh_, 4)}, {vr(ZQ + 4*fh_, 4)}, {vr(EQ + tt*8 + 4*fh_, 4)}, 0")
    strs = []
    for tt in range(4):
        d = DN + tt * 8
        strs.append([f"v_rcp_f32 v{d+1}, v{d+1}", f"v_rcp_f32 v{d+5}, v{d+5}", f"v_mul_f32 v{d}, v{d}, v{d+1}",
                     f"v_fmac_f32 v{d}, v{d+4}, v{d+5}", f"v_add_f32 v{d}, {fh(1e-6)}, v{d}", f"v_rcp_f32 v{d}, v{d}",
                     f"v_mul_f32 v{AB+2*tt}, v{d+1}, v{d}", f"v_mul_f32 v{AB+2*tt+1}, v{d+5}, v{d}"])
    X(zip_streams(*strs))
    if H2AT == 2: X(loads2)
    A(f"s_lshl_b32 s{sT0}, s{sTT0}, 5"); A(f"s_add_u32 s{sT0}, s{sT0}, s{sDO+5}")
    A(f"s_lshl_b32 s{sT0}, s{sT0}, 10"); A(f"s_add_u32 s{sT0}, s{sT0}, {OFF_O}")
    A(f"s_lshl_b32 s{sT1}, s{sHD}, 16")
    for tt in range(4): A(f"s_xor_b32 s{sDO+2+tt}, s{sT1}, {tt*32768}"); A(f"s_add_u32 s{sDO+2+tt}, s{sDO+2+tt}, s{sT0}")
    vXO = 1
    X(lane16(vXO))
    sPUB, sSUB = 56, 57
    A(f"s_lshl_b32 s{sPUB}, s{sRB}, 5"); A(f"s_add_u32 s{sPUB}, s{sPUB}, s{sHP}"); A(f"s_lshl_b32 s{sPUB}, s{sPUB}, 2"); A(f"s_add_u32 s{sPUB}, s{sPUB}, {F3}")
    A(f"s_lshl_b32 s{sSUB}, s{sRB3}, 7"); A(f"s_add_u32 s{sSUB}, s{sSUB}, {F3}")
    polled("h2", loads2, [H2 + 4 * j for j in range(8)], "s_waitcnt vmcnt(0)")
    KQ = 16
    for j in range(16): A(f"v_cvt_pk_bf16_f32 v{KQ+j}, v{H2+2*j}, v{H2+2*j+1}")
    OD = ACC
    for tt in range(4):
        for fh_ in range(2):
            for dt in range(2):
                A(f"{MFMA} {vr(OD + tt*16 + fh_*8 + dt*4, 4)}, {vr(KQ + (fh_*2+dt)*4, 4)}, {vr(EQ + tt*8 + 4*fh_, 4)}, 0")
    for tt in range(4):
        d = OD + tt * 16
        for j in range(0, 8, 2): A(pk("v_pk_mul_f32", d + j, d + j, AB + 2*tt, None, "[0,0]", "[1,0]"))
        for j in range(0, 8, 2): A(pk("v_pk_fma_f32", d + j, d + 8 + j, AB + 2*tt, d + j, "[0,1,0]", "[1,1,1]"))
        X(pack(d + 8, d, d + 4))
        A(f"buffer_store_dwordx4 {vr(d+8,4)}, v{vXO}, s[{sWS}:{sWS+3}], s{sDO+2+tt} offen sc1")
    X(stamp(5))

    UPO, SS, CSO = 14336, 32768, 3 * 32768 + 28672
    sW4, sX4, sXO4, sM04, sRB4, sCB4, sTT4, sO4, sWB, sXB, sW2, sKEY, sMK4 = 4, 8, 32, 35, 36, 37, 69, 71, 40, 42, 28, 88, 92
    vDS, vDS2, vDMA = 2, 3, 4
    prep4 = ["s_load_dwordx4 s[48:51], s[0:1], 40", f"s_load_dwordx2 s[{sW2}:{sW2+1}], s[0:1], 56"]
    prep4 += wg_decode(sRB4, sCB4, sT0, sT1, sT2, 1, 4, 8)
    prep4 += [f"s_and_b32 s{sO4}, s{sRB4}, 4", f"s_lshl_b32 s{sO4}, s{sO4}, 1",
              f"s_and_b32 s{sT0}, s{sWAVE}, 1", f"s_mul_i32 s{sT0}, s{sT0}, {32*7168}", f"s_mul_i32 s{sT1}, s{sCB4}, 224", f"s_add_u32 s{sT0}, s{sT0}, s{sT1}",
              f"s_and_b32 s{sT1}, s{sCB4}, 1", f"s_lshl_b32 s{sT1}, s{sT1}, 1"]
    for q in range(7):
        prep4 += [f"v_add_u32 v11, {64*q}, v0", "v_mul_u32_u24 v12, 4682, v11", "v_lshrrev_b32 v12, 16, v12", "v_mul_u32_u24 v13, 14, v12", "v_sub_u32 v13, v11, v13",
                  f"v_add_u32 v13, s{sT1}, v13", "v_subrev_u32 v14, 14, v13", "v_min_u32 v13, v13, v14", "v_mul_u32_u24 v12, 7168, v12", "v_lshlrev_b32 v13, 4, v13",
                  f"v_add3_u32 v{vDMA+q}, v12, v13, s{sT0}"]
        if q & 3: prep4.append(f"v_subrev_u32 v{vDMA+q}, {(q&3)*1024}, v{vDMA+q}")
    prep4 += [f"s_mov_b32 s{sXO4+tt-1}, {tt*32768}" for tt in range(1, 4)]
    prep4 += [f"s_lshr_b32 s{sT0}, s{sWAVE}, 1", f"s_mul_i32 s{sM04}, s{sT0}, {UPO}", f"s_and_b32 s{sT0}, s{sWAVE}, 1", f"s_mul_i32 s{sT0}, s{sT0}, 7168", f"s_add_u32 s{sM04}, s{sM04}, s{sT0}",
              f"s_lshl_b32 s{sTT4}, s{sRB4}, 4", f"s_lshl_b32 s{sT1}, s{sWAVE}, 2", f"s_add_u32 s{sTT4}, s{sTT4}, s{sT1}",
              f"s_lshl_b32 s{sT0}, s{sTT4}, 15", f"s_add_u32 s{sT0}, s{sT0}, {OFF_H}", f"s_add_u32 s{sXB}, s{sWS}, s{sT0}", f"s_addc_u32 s{sXB+1}, s{sWS+1}, 0",
              f"s_mov_b32 s{sW4+2}, {64*7168}", f"s_mov_b32 s{sX4+2}, {C3D + 4*32768}", f"s_mov_b32 s{sW2+2}, {3584*2048}",
              "v_lshrrev_b32 v11, 2, v0", "v_mul_u32_u24 v11, 224, v11", "v_and_b32 v12, 3, v0", f"v_lshl_add_u32 v{vDS}, v12, 3, v11", f"v_add_u32 v{vDS2}, 0x10000, v{vDS}",
              f"s_cmp_ge_u32 s{sWAVE}, 2", "s_waitcnt lgkmcnt(0)", f"s_cselect_b32 s{sWB}, s50, s48", f"s_cselect_b32 s{sWB+1}, s51, s49"]
    def setw4(t): return [f"s_xor_b32 s{sT0}, s{sO4}, {t}", f"s_mul_i32 s{sT0}, s{sT0}, {64*7168}", f"s_add_u32 s{sW4}, s{sWB}, s{sT0}", f"s_addc_u32 s{sW4+1}, s{sWB+1}, 0"]
    def setx4(t): return [f"s_xor_b32 s{sT0}, s{sO4}, {t}", f"s_lshl_b32 s{sT0}, s{sT0}, 11", f"s_add_u32 s{sX4}, s{sXB}, s{sT0}", f"s_addc_u32 s{sX4+1}, s{sXB+1}, 0"]
    def dma4(t):
        Lq = [setw4(t)]
        for q in range(7):
            grp = []
            if q in (0, 4): grp.append(f"s_add_u32 m0, s{sM04}, {(t & 3)*SS + q*1024}")
            grp.append(VM(("D4", t, q), f"buffer_load_dwordx4 v{vDMA+q}, s[{sW4}:{sW4+3}], 0 offen offset:{(q&3)*1024} lds"))
            Lq.append(grp)
        return Lq

    sX3 = 16
    vT3, W3, A3 = 128, 16, 96
    prep3 = tr_addr_128(vT3, 11, 12, 13)
    prep3 += [f"v_add_u32 v{vT3+4+i}, 0x10000, v{vT3+i}" for i in range(4)] + [f"v_add_u32 v{vT3+8+i}, 0x20000, v{vT3+i}" for i in range(4)]
    prep3 += [f"s_lshl_b32 s{sT0}, s{sTT3}, 15", f"s_add_u32 s{sT0}, s{sT0}, {OFF_O}", f"s_add_u32 s{sX3}, s{sWS}, s{sT0}", f"s_addc_u32 s{sX3+1}, s{sWS+1}, 0",
              f"s_mov_b32 s{sX3+2}, {C3D + 65536}"]
    def w3reg(b, j, t=None):
        r = W3 + b * 32 + j * 4
        return vr(r, 4) if t is None else vr(r + 2 * t, 2)
    def x3reg(ks, tt): return ar(((ks % 28) * 2 + tt) * 4, 4)
    def acc3(n, tt): return A3 + (n * 2 + tt) * 4
    def reads3(pi):
        t, h = pi >> 1, pi & 1
        base, off = divmod(SLOT3[t], 65536)
        return [f"ds_read_b64_tr_b16 {w3reg(pi & 1, k2*4 + n, tt)}, v{vT3 + 4*base + n} offset:{off + (32*(2*h + k2) + 16*tt)*128}" for k2 in range(2) for n in range(4) for tt in range(2)]
    def xload3(pi):
        Lq = [VM(("X3", pi, 0), f"buffer_load_dwordx4 {x3reg(2*pi + k2, tt)}, v{vXO}, s[{sX3}:{sX3+3}], {'0' if tt == 0 else 's%d' % sXO4} offen offset:{((2*pi + k2) & 3)*1024} sc1") for k2 in range(2) for tt in range(2)]
        if pi & 1: Lq.append([f"s_add_u32 s{sX3}, s{sX3}, 4096", f"s_addc_u32 s{sX3+1}, s{sX3+1}, 0"])
        return Lq
    handoff("3", "s_waitcnt vmcnt(0)", sPUB, sSUB, 16, 14, 15, prep4 + prep3 + reads3(0))
    X(stamp(6))
    LA3 = opt("la3_", 6)
    for pi in range(LA3): X(xload3(pi))
    d4 = dma4(0) + dma4(1)
    tail3 = {10: d4[0:4], 11: d4[4:8], 12: d4[8:12], 13: d4[12:16], 14: touch13(N13 * 32 // 7, 14, 11), 15: refetch("rf3", "L_p4mid", 2, 11)}
    for pi in range(16):
        mf = []
        for k2 in range(2):
            for n in range(4):
                for tt in ((0, 1) if n % 2 == 0 else (1, 0)):
                    mf.append(f"{MFMA} {vr(acc3(n,tt),4)}, {w3reg(pi & 1, k2*4 + n)}, {x3reg(2*pi + k2, tt)}, {'0' if (pi == 0 and k2 == 0) else vr(acc3(n,tt),4)}")
        pre = [WaitVM([("X3", pi, 0)], " lgkmcnt(0)")] + (["s_barrier"] if pi == 8 else [])
        dl = (xload3(pi + LA3) if pi + LA3 < 16 else []) + tail3.get(pi, [])
        X(pre); X(pack_gaps(mf, reads3(pi + 1) if pi < 15 else [], dl, [], last=13))
    X(stamp(7))
    A(f"s_lshl_b32 s{sT0}, s{sTT3}, 15"); A(f"s_lshl_b32 s{sT1}, s{sCB3}, 11"); A(f"s_add_u32 s{sT0}, s{sT0}, s{sT1}")
    A(f"s_add_u32 s{sT0}, s{sT0}, {OFF_H}"); A(f"s_add_u32 s{sT1}, s{sT0}, 32768")
    A(f"s_mov_b32 s{sT2}, 0x3f803f80")
    for q in range(4):
        r = R3 + 4 * q
        A(sw16(r, r + 2)); A(sw16(r + 1, r + 3))
    for j in range(4): A(f"v_mov_b32 v{16+j}, 0")
    for tt in range(2):
        for m in range(2):
            r = R3 + (tt * 2 + m) * 4
            for d in range(4):
                a = acc3(2 * m + (d >> 1), tt) + 2 * (d & 1)
                A(unpack_lo(12, r + d)); A(unpack_hi(13, r + d))
                A(pk("v_pk_add_f32", a, a, 12))
                A(f"v_cvt_pk_bf16_f32 v{r+d}, v{a}, v{a+1}")
            V(("HS", None, 0), f"buffer_store_dwordx4 {vr(r,4)}, v{vXO}, s[{sWS}:{sWS+3}], s{sT0 if tt == 0 else sT1} offen offset:{m*1024} sc1")
    for tt in range(2):
        for j in range(8):
            r = R3 + tt * 8 + j
            A(f"v_dot2c_f32_bf16 v{16+2*tt}, s{sT2}, v{r}"); A(f"v_dot2c_f32_bf16 v{17+2*tt}, v{r}, v{r}")
    X(red4(16))
    A(f"s_lshl_b32 s{sT0}, s{sTT3}, 11"); A(f"s_lshl_b32 s{sT1}, s{sCB3}, 8"); A(f"s_add_u32 s{sT0}, s{sT0}, s{sT1}"); A(f"s_add_u32 s{sT0}, s{sT0}, {OFF_ST}")
    A("s_mov_b64 exec, 0xffff")
    A(f"buffer_store_dwordx4 v[16:19], v{vXO}, s[{sWS}:{sWS+3}], s{sT0} offen sc1")
    A("s_mov_b64 exec, -1")
    A(f"s_lshl_b32 s{sPUB}, s{sRB3}, 4"); A(f"s_add_u32 s{sPUB}, s{sPUB}, s{sCB3}"); A(f"s_lshl_b32 s{sPUB}, s{sPUB}, 2"); A(f"s_add_u32 s{sPUB}, s{sPUB}, {F4}")
    A(f"s_lshl_b32 s{sSUB}, s{sRB4}, 7"); A(f"s_add_u32 s{sSUB}, s{sSUB}, {F4}")
    X(stamp(8))
    flush_out("1"); A("L_p3end:")

    aX, aW, aOH, aCA, aST = 0, 64, 120, 148, 152
    def acc4(h, i, tt): return 32 + ((h * 7 + i) * 4 + tt) * 4
    def wreg(p, i, t=None):
        b = aW + (p & 1) * 28 + 4 * i
        return ar(b, 4) if t is None else ar(b + 2 * t, 2)
    def xreg(slot, tt): return ar(aX + slot * 16 + tt * 4, 4)
    def xload4(t, ks):
        slot = (t & 1) * 2 + ks
        return [VM(("X4", t, ks), f"buffer_load_dwordx4 {xreg(slot, tt)}, v{vXO}, s[{sX4}:{sX4+3}], {'0' if tt == 0 else 's%d' % (sXO4+tt-1)} offen offset:{ks*1024} sc1") for tt in range(4)]
    def trreads(t, p):
        ks, h = p >> 1, p & 1
        return [f"ds_read_b64_tr_b16 {wreg(p, i, tt)}, v{vDS2 if t & 2 else vDS} offset:{(t & 1)*SS + h*UPO + (32*ks + 16*tt)*224 + i*32}" for i in range(7) for tt in range(2)]
    btw = ["v_and_b32 v11, 15, v0", "v_mov_b32 v12, 0x3f803f80"]
    for i in range(7):
        btw += [f"v_cmp_eq_u32 vcc, {i}, v11", "v_cndmask_b32 v13, 0, v12, vcc"] + [f"v_accvgpr_write_b32 a{aOH+4*i+j}, v13" for j in range(4)]
    btw += [f"s_and_b32 s{sT0}, s{sRB4}, 3"]
    for p in range(4): btw += [f"s_cmp_eq_u32 s{sWAVE}, {p}", f"s_cselect_b32 s{sKEY+p}, s{sT0}, 99"]
    btw += [f"s_mov_b32 s{sMK4}, 0x0c0c0400", f"s_mov_b32 s{sMK4+1}, 0x0c040100", f"s_mov_b32 s{sMK4+2}, 0x04020100"]
    btw += trreads(0, 0) + setx4(0)
    handoff("4", "s_waitcnt vmcnt(0)", sPUB, sSUB, 32, 14, 15, btw)
    X(stamp(9))
    X(xload4(0, 0)); X(xload4(0, 1)); X(setx4(1)); X(xload4(1, 0))
    ex = {}; prex = {}
    def EXF(t, p, g): ex.setdefault((t, p), []).extend(g)
    g = [f"v_mov_b32 v11, s{sNON}"]
    g += [f"v_accvgpr_read_b32 v{12+j}, a{aCA+j}" for j in range(4)]
    g += [f"v_perm_b32 v{12+j}, v{12+j}, v11, s{sSEL+j}" for j in range(4)]
    g += ["v_and_b32 v16, 15, v0", "v_lshlrev_b32 v16, 6, v16", "v_and_b32 v17, 48, v0", "v_add_u32 v16, v16, v17"]
    g += [[f"s_lshl_b32 s{sT1}, s{sCB4}, 3", f"s_add_u32 s{sT1}, s{sT1}, s{sRB4}", f"s_lshl_b32 s{sT1}, s{sT1}, 2", f"s_add_u32 s{sT1}, s{sT1}, s{sWAVE}",
           f"s_lshl_b32 s{sT1}, s{sT1}, 9", f"s_add_u32 s{sT1}, s{sT1}, {OFF_CS}"]]
    g += [["s_mov_b32 exec_lo, 0x00ff00ff", "s_mov_b32 exec_hi, 0x00ff00ff",
           VM(("CP", None, 0), f"buffer_store_dwordx4 v[12:15], v16, s[{sWS}:{sWS+3}], s{sT1} offen sc1"), "s_mov_b64 exec, -1"]]
    EXF(8, 1, g)
    sEX = 95
    g = [[f"s_lshl_b32 s{sEX}, s2, 2", f"s_add_u32 s{sEX}, s{sEX}, s{sWAVE}", f"s_lshl_b32 s{sEX}, s{sEX}, 12", f"s_add_u32 s{sEX}, s{sEX}, {OFF_EX}"]] + [f"v_mov_b32 v{12+j}, -1" for j in range(4)]
    g += [VM(("PF", None, k), f"buffer_store_dwordx4 v[12:15], v{vXO}, s[{sWS}:{sWS+3}], s{sEX} offen offset:{k*1024} sc1") for k in range(4)]
    EXF(opt("pf_", 10), 1, g)
    r0 = N13 * 32 // 7 + 64
    for j in range((512 - r0) // 64): EXF(j, 1, touch13(r0 + 64 * j, 14, 11))
    for j in range(4): EXF(5 + j, 3, touch_lin(sW2, j * 1024 * 14 * 128, 14, 11))
    g = [[f"s_lshl_b32 s{sT1}, s{sTT4}, 11", f"s_add_u32 s{sT1}, s{sT1}, {OFF_ST}", f"s_add_u32 s{sT2}, s{sT1}, 4096", "v_lshlrev_b32 v12, 4, v0"]]
    for p in range(2):
        for i in range(4): g.append(VM(("S", None, 0), f"buffer_load_dwordx4 {ar(aST + p*16 + i*4, 4)}, v12, s[{sWS}:{sWS+3}], s{sT1 if p == 0 else sT2} offen offset:{i*1024} sc1"))
    EXF(11, 0, g)
    EXF(6, 0, refetch("rf4a", "L_p4end", 2, 13))
    EXF(12, 0, refetch("rf4b", "L_p5mid", 2, 13))
    vS4 = 20
    for p in range(2):
        b = 12
        g = [f"v_accvgpr_read_b32 v{b+j}, a{aST + p*16 + j}" for j in range(4)]
        for i in range(1, 4):
            g += [f"v_accvgpr_read_b32 v{b+4+j}, a{aST + p*16 + 4*i + j}" for j in range(4)]
            g += [f"v_add_f32 v{b+j}, v{b+j}, v{b+4+j}" for j in range(4)]
        g += red4(b)
        fin = []
        for t in range(2):
            tt = 2 * p + t
            nm, c1, ve = vS4 + tt * 3, vS4 + tt * 3 + 1, vS4 + tt * 3 + 2
            fin.append([f"v_mul_f32 v{nm}, {fh(-1.0/1024)}, v{b+2*t}", f"v_mul_f32 v{ve}, {fh(1.0/1024)}, v{b+2*t+1}", f"v_fma_f32 v{ve}, -v{nm}, v{nm}, v{ve}",
                        f"v_max_f32 v{ve}, 0, v{ve}", f"v_add_f32 v{ve}, {fh(1e-5)}, v{ve}", f"v_rsq_f32 v{c1}, v{ve}", f"v_mul_f32 v{c1}, {fh(-LOG2E)}, v{c1}"])
        g += zip_streams(*fin)
        h2 = len(g) // 2
        EXF(13, 2 * p, g[:h2]); EXF(13, 2 * p + 1, g[h2:])
    prex[(13, 0)] = [WaitVM([("S", None, 0)])]
    CQ = 4
    cloads = [f"buffer_load_dwordx4 {vr(CQ+4*j,4)}, v{vDS}, s[{sWS}:{sWS+3}], s{sKEY+j} offen sc1" for j in range(4)]
    g = [["v_lshrrev_b32 v12, 4, v0", "v_lshlrev_b32 v12, 10, v12", "v_and_b32 v13, 15, v0", f"v_lshl_add_u32 v{vDS}, v13, 4, v12"],
         [f"s_lshl_b32 s{sT1}, s{sCB4}, 14", f"s_lshl_b32 s{sT2}, s{sWAVE}, 8", f"s_add_u32 s{sT1}, s{sT1}, s{sT2}", f"s_add_u32 s{sKEY}, s{sT1}, {OFF_CS}"],
         [f"s_add_u32 s{sKEY+j}, s{sKEY}, {j*4096}" for j in range(1, 4)]]
    g += [VM(("CL", None, 0), t) for t in cloads]
    EXF(14, 0, g)
    J = opt("J", 13)
    NT5 = 28 - J
    sW50, sW51, sB0, sB1, sST, sTB, sCB5, sTT5 = 16, 20, 40, 4, 6, 7, 35, 62
    ST5 = [0, 32768, 131072]
    def tidx(t):
        if t >= J: return [f"s_mov_b32 s{sT0}, {t}"]
        return [f"s_add_u32 s{sT0}, s{sTB}, {t}"]
    def setw5(t):
        Lq = tidx(t) + [f"s_lshl_b32 s{sT0}, s{sT0}, 18", f"s_add_u32 s{sW50}, s{sB0}, s{sT0}", f"s_addc_u32 s{sW50+1}, s{sB0+1}, 0"]
        if t < J: Lq += [f"s_add_u32 s{sW51}, s{sB1}, s{sT0}", f"s_addc_u32 s{sW51+1}, s{sB1+1}, 0"]
        return Lq
    def dma5(t, vd):
        Lq = []
        for im in range(2 if t < J else 1):
            for q in range(4):
                grp = [f"s_add_u32 m0, s{sM0X}, {ST5[t % 3] + im*16384}"] if q == 0 else []
                sw = sW51 if im else sW50
                grp.append(VM(("D5", t, im * 4 + q), f"buffer_load_dwordx4 v{vd}, s[{sw}:{sw+3}], {'0' if q == 0 else 's%d' % (sXO+q-1)} offen offset:{q*1024} lds"))
                Lq.append(grp)
        n = len(Lq) // 4
        parts = [Lq[i*n:(i+1)*n] for i in range(4)]
        parts[0] = [setw5(t)] + parts[0]
        return parts
    g5 = [[f"s_bfe_u32 s{sT1}, s2, 0x10005", f"s_lshl_b32 s{sTT5}, s{sRB4}, 1", f"s_add_u32 s{sTT5}, s{sTT5}, s{sT1}", f"s_lshl_b32 s{sTT5}, s{sTT5}, 2", f"s_add_u32 s{sTT5}, s{sTT5}, s{sWAVE}", f"s_lshl_b32 s{sTT5}, s{sTT5}, 1"],
          [f"s_and_b32 s{sCB5}, s2, 2", f"s_lshl_b32 s{sCB5}, s{sCB5}, 1", f"s_lshr_b32 s{sT1}, s2, 6", f"s_add_u32 s{sCB5}, s{sCB5}, s{sT1}",
           f"s_bfe_u32 s{sT1}, s2, 0x10002", f"s_lshl_b32 s{sCB5}, s{sCB5}, 1", f"s_add_u32 s{sCB5}, s{sCB5}, s{sT1}", f"s_mul_i32 s{sTB}, s{sT1}, {28 - J}"],
          [f"s_lshl_b32 s{sT1}, s{sCB5}, 7", f"s_add_u32 s{sB0}, s{sW2}, s{sT1}", f"s_addc_u32 s{sB0+1}, s{sW2+1}, 0",
           f"s_xor_b32 s{sT1}, s{sT1}, 128", f"s_add_u32 s{sB1}, s{sW2}, s{sT1}", f"s_addc_u32 s{sB1+1}, s{sW2+1}, 0"],
          [f"s_mov_b32 s{sW50+2}, {127*2048+128}", f"s_mov_b32 s{sW51+2}, {127*2048+128}", f"v_accvgpr_read_b32 v{vXO}, a253"]]
    d5 = [x for t in range(3) for part in dma5(t, vXO) for x in part]
    n5 = len(d5)
    dl5 = {(14, 1): g5 + d5[:n5 // 4], (14, 2): d5[n5 // 4: n5 // 2], (14, 3): d5[n5 // 2: 3 * n5 // 4], (15, 0): d5[3 * n5 // 4:]}
    def tagcheck4():
        Lq = []
        for j in range(4):
            q = CQ + 4 * j
            Lq += [f"v_perm_b32 v{vXO}, v{q+1}, v{q}, s{sMK4}", f"v_perm_b32 v{vXO}, v{q+2}, v{vXO}, s{sMK4+1}", f"v_perm_b32 v{vXO}, v{q+3}, v{vXO}, s{sMK4+2}",
                   f"v_cmp_ne_u32 {'vcc' if j == 0 else 's[56:57]'}, s{sNON}, v{vXO}"]
            if j: Lq.append("s_or_b64 vcc, vcc, s[56:57]")
        return Lq
    chk = tagcheck4()
    prex[(15, 1)] = [WaitVM([("CL", None, 0)])]
    g = chk + [["s_cbranch_vccnz L_cr", "L_cok:"]]
    OUT.extend(["L_cr:", f"s_mov_b32 s{sCNT}, 0", "L_cr2:", "s_sleep 1"] + cloads + ["s_waitcnt vmcnt(0)"] + chk +
               [f"s_add_u32 s{sCNT}, s{sCNT}, 1", f"s_cmp_ge_u32 s{sCNT}, {SPIN}", "s_cbranch_scc1 L_cok", "s_cbranch_vccnz L_cr2", "s_branch L_cok"])
    g += [f"v_and_b32 v{CQ+j}, 0xffffff00, v{CQ+j}" for j in range(16)]
    EXF(15, 1, g)
    g = [f"v_add_f32 v{CQ+j}, v{CQ+j}, v{CQ+4+j}" for j in range(4)] + [f"v_add_f32 v{CQ+8+j}, v{CQ+8+j}, v{CQ+12+j}" for j in range(4)]
    g += [f"v_add_f32 v{CQ+j}, v{CQ+j}, v{CQ+8+j}" for j in range(4)]
    g += red4(CQ)[:6]
    g += [f"v_and_b32 v{CQ+8}, 15, v0", f"v_lshrrev_b32 v{CQ+9}, 4, v0", f"v_lshlrev_b32 v{CQ+9}, 2, v{CQ+9}", f"v_lshl_add_u32 v{CQ+8}, v{CQ+8}, 4, v{CQ+9}",
          [f"s_lshl_b32 s{sT1}, s{sWAVE}, 8", f"s_add_u32 s{sT1}, s{sT1}, {CSO}", f"v_add_u32 v{CQ+8}, s{sT1}, v{CQ+8}"], f"ds_write_b32 v{CQ+8}, v{CQ+1}"]
    EXF(15, 2, g)
    sOb = 48
    g = lane16(vXO) + ["v_and_b32 v2, 48, v0", f"v_add_u32 v2, {CSO}, v2"]
    g += [[f"s_mul_i32 s{sT0}, s{sCB4}, 7", f"s_and_b32 s{sT1}, s{sCB4}, 1", f"s_add_u32 s{sT0}, s{sT0}, s{sT1}", f"s_lshr_b32 s{sT0}, s{sT0}, 1"],
          [f"s_mul_i32 s{sT2}, s{sTT4}, 112", f"s_add_u32 s{sT0}, s{sT0}, s{sT2}", f"s_lshl_b32 s{sT0}, s{sT0}, 10", f"s_add_u32 s{sT0}, s{sT0}, {OFF_HH}"],
          [f"s_add_u32 s{sOb+tt}, s{sT0}, {tt*112*1024}" for tt in range(4)],
          [f"s_mov_b32 s{sT2}, {(-1024 + 8) & 0xffffffff}", f"s_cmp_eq_u32 s{sT1}, 0", f"s_cselect_b32 s{sT2}, {3*1024}, s{sT2}"],
          [f"s_add_u32 s{sOb+4+tt}, s{sOb+tt}, s{sT2}" for tt in range(4)],
          [f"s_lshl_b32 s{sSUB}, s{sRB4}, 7", f"s_add_u32 s{sSUB}, s{sSUB}, {F5}", f"s_lshl_b32 s{sPUB}, s{sCB4}, 2", f"s_add_u32 s{sPUB}, s{sPUB}, s{sSUB}"]]
    def csread(grp, buf):
        Lq = []
        for k, i in enumerate(grp):
            Lq.append(f"ds_read_b128 {vr(buf + 8*k, 4)}, v2 offset:{i*64}")
            Lq.append(f"ds_read_b128 {vr(buf + 8*k + 4, 4)}, v2 offset:{512 + i*64}")
        return Lq
    groups = [(0, 1), (2, 3), (4, 5), (6,)]
    g += csread(groups[0], 4)
    EXF(15, 3, g)
    for t in range(16):
        if t == 8: A("L_p4mid:")
        for p in range(4):
            ks, h = p >> 1, p & 1
            slot = (t & 1) * 2 + ks
            first = t == 0 and ks == 0
            mf = [f"{MFMA} {vr(acc4(h,i,tt),4)}, {wreg(p,i)}, {xreg(slot,tt)}, {'0' if first else vr(acc4(h,i,tt),4)}" for i in range(7) for tt in (range(4) if i % 2 == 0 else range(3, -1, -1))]
            if p == 3: pre = [WaitVM([("D4", t + 1, None)], " lgkmcnt(0)") if t + 1 < 16 else "s_waitcnt lgkmcnt(0)", "s_barrier"]
            elif h == 0: pre = [WaitVM([("X4", t, ks)], " lgkmcnt(0)")]
            else: pre = ["s_waitcnt lgkmcnt(0)"]
            pre = pre + prex.get((t, p), [])
            rd = trreads(t, p + 1) if p < 3 else (trreads(t + 1, 0) if t + 1 < 16 else [])
            dl = []
            if p == 0 and t + 1 < 16: dl = xload4(t + 1, 1)
            elif p == 2 and t + 2 < 16: dl = [setx4(t + 2)] + xload4(t + 2, 0)
            elif p == 1 and t + 2 < 16: dl = dma4(t + 2)[0:5]
            elif p == 3 and t + 2 < 16: dl = dma4(t + 2)[5:8]
            dl = dl + dl5.get((t, p), [])
            if t < 8:
                lb = f"L_st{t}{p}"
                dl = dl + [[f"s_cmp_eq_u32 s{sKEY+p}, {t >> 1}", f"s_cbranch_scc1 {lb}", f"{lb}r:"]]
                OUT.append(f"{lb}:")
                for i in range(7):
                    OUT.append(f"{MFMA} {ar(aCA,4)}, {wreg(p,i)}, {ar(aOH+4*i,4)}, {'0' if (t & 1 == 0 and i == 0) else ar(aCA,4)}")
                OUT.append(f"s_branch {lb}r")
            X(pre); X(pack_gaps(mf, rd, dl, ex.get((t, p), [])))
    X(stamp(10))
    A("s_waitcnt lgkmcnt(0)")
    for gi, grp in enumerate(groups):
        cbuf = 4 if gi == 0 else acc4(0, 0, 0) + 16 * ((gi - 1) & 1)
        for tt in range(4):
            nm, c1, ve = vS4 + tt * 3, vS4 + tt * 3 + 1, vS4 + tt * 3 + 2
            (pn, sn), (pc, sc), (pv, sv) = bc(nm), bc(c1), bc(ve)
            G = [acc4(0, i, tt) for i in grp]; U = [acc4(1, i, tt) for i in grp]
            for k in range(len(grp)):
                for j in (0, 2): A(f"v_pk_fma_f32 {vr(G[k]+j,2)}, {vr(cbuf+8*k+j,2)}, {pn}, {vr(G[k]+j,2)} op_sel:[0,{sn},0] op_sel_hi:[1,{sn},1]")
                for j in (0, 2): A(f"v_pk_fma_f32 {vr(U[k]+j,2)}, {vr(cbuf+8*k+4+j,2)}, {pn}, {vr(U[k]+j,2)} op_sel:[0,{sn},0] op_sel_hi:[1,{sn},1]")
            for k in range(len(grp)):
                for j in (0, 2): A(f"v_pk_mul_f32 {vr(U[k]+j,2)}, {vr(U[k]+j,2)}, {vr(G[k]+j,2)}")
            for k in range(len(grp)):
                for j in (0, 2): A(f"v_pk_mul_f32 {vr(G[k]+j,2)}, {vr(G[k]+j,2)}, {pc} op_sel:[0,{sc}] op_sel_hi:[1,{sc}]")
            for k in range(len(grp)):
                for j in range(4): A(f"v_exp_f32 v{G[k]+j}, v{G[k]+j}")
            for k in range(len(grp)):
                for j in (0, 2): A(f"v_pk_fma_f32 {vr(G[k]+j,2)}, {vr(G[k]+j,2)}, {pv}, {pv} op_sel:[0,{sv},{sv}] op_sel_hi:[1,{sv},{sv}]")
            for k in range(len(grp)):
                for j in range(4): A(f"v_rcp_f32 v{G[k]+j}, v{G[k]+j}")
            for k in range(len(grp)):
                for j in (0, 2): A(f"v_pk_mul_f32 {vr(G[k]+j,2)}, {vr(G[k]+j,2)}, {vr(U[k]+j,2)}")
            for k in range(len(grp)):
                for j in (0, 1): A(f"v_cvt_pk_bf16_f32 v{U[0]+2*k+j}, v{G[k]+2*j}, v{G[k]+2*j+1}")
            if len(grp) == 2: A(f"buffer_store_dwordx4 {vr(U[0],4)}, v{vXO}, s[{sWS}:{sWS+3}], s{sOb+tt} offen offset:{gi*1024} sc1")
            else: A(f"buffer_store_dwordx2 {vr(U[0],2)}, v{vXO}, s[{sWS}:{sWS+3}], s{sOb+4+tt} offen sc1")
            if tt == 3 and gi == 0:
                X(csread(groups[1], acc4(0, 0, 0))); X(csread(groups[2], acc4(0, 0, 0) + 16)); A("s_waitcnt lgkmcnt(4)")
            if tt == 3 and gi == 1:
                X(csread(groups[3], acc4(0, 0, 0))); A("s_waitcnt lgkmcnt(2)")
            if tt == 3 and gi == 2: A("s_waitcnt lgkmcnt(0)")
    X(stamp(11))
    flush_out("4"); A("L_p4end:")

    KS = 112
    sX5, sAUX, sXK = 8, 24, 32
    vD5, vT5, vRM, vRES, A5, EXL = 2, 4, 12, 16, 32, 96
    def acc5(n, tt): return A5 + (n * 2 + tt) * 4
    def w5reg(b, j, t=None):
        r = 64 + b * 32 + j * 4
        return ar(r, 4) if t is None else ar(r + 2 * t, 2)
    def x5reg(t, ks, tt): return ar((((t & 1) * 4 + ks) * 2 + tt) * 4, 4)
    def setx5(t): return tidx(t) + [f"s_lshl_b32 s{sT0}, s{sT0}, 12", f"s_add_u32 s{sX5}, s{sXB}, s{sT0}", f"s_addc_u32 s{sX5+1}, s{sXB+1}, 0"]
    def xload5(t, ks):
        Lq = [setx5(t)] if ks == 0 else []
        return Lq + [VM(("X5", t, ks), f"buffer_load_dwordx4 {x5reg(t, ks, tt)}, v{vXO}, s[{sX5}:{sX5+3}], {'0' if tt == 0 else 's%d' % sXK} offen offset:{ks*1024} sc1") for tt in range(2)]
    PH = []
    for t in range(NT5):
        if t < J:
            for ks in range(4): PH.append((t, [(ks, n) for n in range(8)]))
        else:
            for h in range(2): PH.append((t, [(2 * h + k2, n) for k2 in range(2) for n in range(4)]))
    def reads5(pi):
        t, fr = PH[pi]
        st = t % 3
        return [f"ds_read_b64_tr_b16 {w5reg(pi & 1, j, tt)}, v{vT5 + (n & 3) + (4 if st == 2 else 0)} offset:{(st & 1)*SS + (n >> 2)*16384 + (32*ks + 16*tt)*128}" for j, (ks, n) in enumerate(fr) for tt in range(2)]
    btw = [f"s_load_dwordx2 s[{sAUX}:{sAUX+1}], s[0:1], 64", f"v_accvgpr_read_b32 v{vD5}, a253"]
    btw += tr_addr_128(vT5, 12, 13, 3) + [f"v_add_u32 v{vT5+4+i}, 0x20000, v{vT5+i}" for i in range(4)]
    btw += rowmajor_voff(vRM, 13, 3, 11)
    btw += [f"s_mov_b32 s{sXK}, {KS*1024}", f"s_mul_i32 s{sT2}, s{sTT5}, {KS*1024}", f"s_add_u32 s{sT2}, s{sT2}, {OFF_HH}",
            f"s_add_u32 s{sXB}, s{sWS}, s{sT2}", f"s_addc_u32 s{sXB+1}, s{sWS+1}, 0", f"s_mov_b32 s{sX5+2}, {C3D + KS*1024 + 4096}",
            f"s_mov_b32 s{sAUX+2}, {2048*2048}", f"s_xor_b32 s{sEX-1}, s{sEX}, {4 << 14}", "s_waitcnt lgkmcnt(0)"] + reads5(0)
    handoff("5", "s_waitcnt vmcnt(0)", sPUB, sSUB, 32, 14, 15, btw)
    X(stamp(12))
    X([xload5(0, ks) for ks in range(4)]); X([xload5(1, ks) for ks in range(3)])
    first_of = {}; last_of = {}
    for pi, (t, fr) in enumerate(PH):
        first_of.setdefault(t, pi); last_of[t] = pi
    dls = [[] for _ in PH]
    for t in range(3, NT5):
        p0 = last_of[t - 3]
        for i, part in enumerate(dma5(t, vD5)):
            pi = min(p0 + i, last_of[t - 2] - 1) if t - 2 >= J else p0 + i
            dls[pi].extend(part)
    for t in range(1, NT5):
        for ks in range(4):
            if t == 1 and ks < 3: continue
            if t == 1: pi = 0
            else: pi = max(i for i, (tt_, fr) in enumerate(PH) if tt_ == t - 2 and any(k == ks for k, n in fr)) + 1
            dls[pi].extend(xload5(t, ks))
    ex5 = [[] for _ in PH]
    pj = first_of[J]
    ex5[first_of[4]].extend(refetch("rf5a", "L_fin", 1, 14))
    ex5[first_of[J - 3]].extend(refetch("rf5b", "L_fin", 1, 14))
    estore = []
    for k in range(4):
        tt, m = k >> 1, k & 1
        a0, a1 = acc5(4 + 2 * m, tt), acc5(5 + 2 * m, tt)
        estore += pack(a0, a0, a1)
        estore.append(VM(("ES", None, k), f"buffer_store_dwordx4 {vr(a0,4)}, v{vXO}, s[{sWS}:{sWS+3}], s{sEX-1} offen offset:{k*1024} sc1"))
    g = [[f"s_lshl_b32 s{sT2}, s{sTT5}, 15", f"s_lshl_b32 s{sCNT}, s{sCB5}, 11", f"s_add_u32 s{sT2}, s{sT2}, s{sCNT}", f"s_add_u32 s{sT2}, s{sT2}, {OFF_H}", f"s_add_u32 s{sCNT}, s{sT2}, 32768"]]
    for tt in range(2):
        for m in range(2):
            g.append(VM(("R", None, 0), f"buffer_load_dwordx4 {vr(vRES + (tt*2+m)*4, 4)}, v{vXO}, s[{sWS}:{sWS+3}], s{sT2 if tt == 0 else sCNT} offen offset:{m*1024} sc1"))
    dls[pj - 2].extend(g)
    prex5 = {pj: dls[pj] + estore}; dls[pj] = []
    eloads = [f"buffer_load_dwordx4 {vr(EXL + 4*k, 4)}, v{vXO}, s[{sWS}:{sWS+3}], s{sEX} offen offset:{k*1024} sc1" for k in range(4)]
    dls[len(PH) - 1].extend([VM(("EL", None, 0), t) for t in eloads])
    for pi, (t, fr) in enumerate(PH):
        if pi == first_of[6]: A("L_p5mid:")
        mf = []
        for j, (ks, n) in enumerate(fr):
            for tt in ((0, 1) if j % 2 == 0 else (1, 0)):
                mf.append(f"{MFMA} {vr(acc5(n,tt),4)}, {w5reg(pi & 1, j)}, {x5reg(t, ks, tt)}, {'0' if pi == 0 else vr(acc5(n,tt),4)}")
        tags = [("X5", t, max(k for k, n in fr))]
        bar = pi == last_of[t] and t + 1 < NT5
        if bar: tags.append(("D5", t + 1, None))
        pre = [WaitVM(tags, " lgkmcnt(0)")] + (["s_barrier"] if bar else [])
        rd = reads5(pi + 1) if pi + 1 < len(PH) else []
        if pi == pj: X(stamp(13))
        X(prex5.get(pi, []))
        X(pre); X(pack_gaps(mf, rd, dls[pi], ex5[pi], last=13))
    A(f"s_lshl_b32 s{sT0}, s{sTT5}, 15"); A(f"s_lshl_b32 s{sT1}, s{sCB5}, 7"); A(f"s_add_u32 s{sT0}, s{sT0}, s{sT1}")
    A(f"s_add_u32 s{sT1}, s{sT0}, 32768")
    W([("R", None, 0)])
    for tt in range(2):
        for m in range(2):
            r = vRES + (tt * 2 + m) * 4
            for d in range(4):
                a = acc5(2 * m + (d >> 1), tt) + 2 * (d & 1)
                A(unpack_lo(14, r + d)); A(unpack_hi(15, r + d))
                A(pk("v_pk_add_f32", a, a, 14))
    A(f"s_mov_b32 s{sCNT}, 0")
    A("s_waitcnt vmcnt(0)")
    A("L_ck:")
    X([f"v_max3_u32 v14, v{EXL}, v{EXL+4}, v{EXL+8}", f"v_max3_u32 v15, v{EXL+3}, v{EXL+7}, v{EXL+11}", f"v_max3_u32 v14, v14, v{EXL+12}, v{EXL+15}",
       "v_max_u32 v14, v14, v15", "v_cmp_eq_u32 vcc, -1, v14"])
    A("s_cbranch_vccnz L_rt")
    A("L_ok:")
    OUT.extend(["L_rt:", f"s_add_u32 s{sCNT}, s{sCNT}, 1", f"s_cmp_ge_u32 s{sCNT}, {SPIN}", "s_cbranch_scc1 L_ok",
                "s_mov_b64 exec, vcc", "s_sleep 1"] + eloads + ["s_mov_b64 exec, -1", "s_waitcnt vmcnt(0)", "s_branch L_ck"])
    X(stamp(14))
    for tt in range(2):
        for m in range(2):
            r = vRES + (tt * 2 + m) * 4
            for d in range(4):
                a = acc5(2 * m + (d >> 1), tt) + 2 * (d & 1); e = EXL + (tt * 2 + m) * 4 + d
                A(unpack_lo(14, e)); A(unpack_hi(15, e))
                A(pk("v_pk_add_f32", a, a, 14))
                A(f"v_cvt_pk_bf16_f32 v{r+d}, v{a}, v{a+1}")
            A(sw16(r, r + 2)); A(sw16(r + 1, r + 3))
            A(f"buffer_store_dwordx4 {vr(r,4)}, v{vRM}, s[{sAUX}:{sAUX+3}], s{sT0 if tt == 0 else sT1} offen offset:{m*64}")
    if gen.STAMPS:
        A("s_waitcnt vmcnt(0)"); X(stamp(15))
        A("s_lshl_b32 s98, s2, 6"); A(f"s_add_u32 s98, s98, {OFF_DBG}"); A("v_mov_b32 v1, 0"); A("s_mov_b64 exec, 1")
        for i in range(NST): A(f"v_mov_b32 v2, s{72+i}"); A(f"buffer_store_dword v2, v1, s[{sWS}:{sWS+3}], s98 offen offset:{4*i}")
    A("L_end:"); A("s_endpgm")
    X(OUT); A("L_fin:")
    return finish(P, name, 512, 256, 163840)
```

```python
import sys
import gen
from gen_mega import gen_mega
DEFM = ("pt",)
if __name__ == "__main__":
    REF = "sequential_preLN__linear_kernel_hedgehog__glu_gated_swiglu__prompt.s"
    HEADER = open(REF + ".ref").read().split("; Override launch")[0]
    out = sys.argv[1] if len(sys.argv) > 1 else REF
    abl = tuple(sys.argv[2].split(",")) if len(sys.argv) > 2 else DEFM
    open(out, "w").write(HEADER + gen.build([gen_mega(abl=abl)]))
```

```python
import sys
import gen
from gen_mega import gen_mega
DEFM = ("pt",)
KN = "sequential_preLN__linear_kernel_hedgehog__glu_gated_swiglu__prompt_kernel"
def make(out, abl, single=True):
    REF = "sequential_preLN__linear_kernel_hedgehog__glu_gated_swiglu__prompt.s"
    HEADER = open(REF + ".ref").read().split("; Override launch")[0]
    t = gen.build([gen_mega(name=(KN if single else "mega_kernel"), abl=abl)])
    if single: t = t.replace(f"; @launch kernel={KN} ", "; @launch ")
    open(out or REF, "w").write(HEADER + t)
if __name__ == "__main__":
    out = sys.argv[1] if len(sys.argv) > 1 and sys.argv[1] != "-" else None
    abl = tuple(sys.argv[2].split(",")) if len(sys.argv) > 2 else DEFM
    make(out, abl, single="list" not in abl)
```
